```python
import torch

def _softmax(x, axis=-1):
    return torch.softmax(x, dim=axis)
def _gelu(x):
    return torch.nn.functional.gelu(x, approximate="tanh")
def _silu(x):
    return torch.nn.functional.silu(x)
def _sigmoid(x):
    return torch.sigmoid(x)
def _layernorm(x, axis=-1, eps=1e-5):
    m = x.mean(dim=axis, keepdim=True)
    v = x.var(dim=axis, keepdim=True, unbiased=False)
    return (x - m) / torch.sqrt(v + eps)
def _scatter_add(tgt, idx, src, axis=0):
    return tgt.clone().index_add_(axis, idx, src)
def _segment_sum(src, seg, n):
    out = torch.zeros((n,) + src.shape[1:], dtype=src.dtype)
    return out.index_add_(0, seg, src)
def _pad(x, pw):
    flat = tuple(v for pair in reversed(pw) for v in pair)
    return torch.nn.functional.pad(x, flat)

kernel_name = 'recurrent_scan__sliding_block__mixer_channel_mlp__prompt'

def setup_inputs():

    _w = (lambda a: (lambda t: t.to(torch.bfloat16) if t.is_floating_point() else t)(torch.as_tensor(a)))
    def _A_setup():
        B, S, D = 1, 2048, 512
        return {
            "x": _w((lambda *s: torch.randn(*s, dtype=torch.bfloat16) * 0.05)(B, S, D)),
            "wqkv": _w((lambda *s: torch.randn(*s, dtype=torch.bfloat16) * 0.05)(D, 3 * D)),
            "wo": _w((lambda *s: torch.randn(*s, dtype=torch.bfloat16) * 0.05)(D, D)),
        }
    _A_in = _A_setup()

    def _B_setup():
        B, S, D, F = 1, 2048, 512, 1792
        return {
            "x": _w((lambda *s: torch.randn(*s, dtype=torch.bfloat16) * 0.05)(B, S, D)),
            "w1": _w((lambda *s: torch.randn(*s, dtype=torch.bfloat16) * 1.6)(D, F) * (D ** -0.5)),
            "b1": _w((lambda *s: torch.randn(*s, dtype=torch.bfloat16) * 0.8)(F)),
            "w2": _w((lambda *s: torch.randn(*s, dtype=torch.bfloat16) * 0.05)(F, D) * (F ** -0.5)),
            "b2": _w((lambda *s: torch.randn(*s, dtype=torch.bfloat16) * 0.05)(D)),
        }
    _B_in = _B_setup()

    return {
        "A_x": _A_in["x"],
        "A_wqkv": _A_in["wqkv"],
        "A_wo": _A_in["wo"],
        "B_x": _B_in["x"],
        "B_w1": _B_in["w1"],
        "B_b1": _B_in["b1"],
        "B_w2": _B_in["w2"],
        "B_b2": _B_in["b2"],
    }

def reference(A_x, A_wqkv, A_wo, B_x, B_w1, B_b1, B_w2, B_b2):
    def _A_ref(x, wqkv, wo):
        B, S, D = x.shape
        H = 32; Dh = D // H; W = 256
        qkv = (lambda x, *d: x.permute(*d))((x @ wqkv).reshape(B, S, 3, H, Dh), 2, 0, 3, 1, 4)
        q, k, v = qkv[0], qkv[1], qkv[2]
        scores = torch.einsum("bhqd,bhkd->bhqk", q, k) * (Dh ** -0.5)
        idx = torch.arange(S)
        mask = (idx[:, None] - idx[None, :] >= 0) & (idx[:, None] - idx[None, :] < W)
        scores = torch.where(mask[None, None], scores, -1e9)
        p = _softmax(scores, axis=-1)
        o = torch.einsum("bhqk,bhkd->bhqd", p, v)
        return (lambda x, *d: x.permute(*d))(o, 0, 2, 1, 3).reshape(B, S, D) @ wo

    def _B_ref(x, w1, b1, w2, b2):
        y = _layernorm(x, axis=-1)
        h = _gelu(torch.einsum("bsd,df->bsf", y, w1) + b1)
        return torch.einsum("bsf,fd->bsd", h, w2) + b2

    x = A_x
    xn = _layernorm(x, axis=-1)
    s = _A_ref(xn, A_wqkv, A_wo)
    g = _silu(_B_ref(xn, B_w1, B_b1, B_w2, B_b2))
    return x + s * g
```

```python
import re

class Item:
    pass

class Ins(Item):
    __slots__ = ("text", "vm", "lg", "note", "nocount")
    def __init__(self, text, vm=None, lg=None, note=None, nocount=False):
        self.nocount = nocount
        self.text = text.strip()
        self.vm = vm
        self.lg = lg
        self.note = note
    def __repr__(self):
        return self.text

class WaitVM(Item):
    def __init__(self, *tags):
        self.tags = tags

class WaitLG(Item):
    def __init__(self, *tags):
        self.tags = tags

class Raw(Item):
    def __init__(self, text):
        self.text = text

class Group(Item):
    def __init__(self, items):
        self.items = list(items)

def flatten(items):
    out = []
    for it in items:
        if isinstance(it, Group):
            out += flatten(it.items)
        elif isinstance(it, (list, tuple)):
            out += flatten(it)
        elif isinstance(it, str):
            out.append(Ins(it))
        elif it is None:
            continue
        else:
            out.append(it)
    return out

_REG = re.compile(r"^(-|\|)?([vas])(\d+)\|?$")
_RNG = re.compile(r"^(-)?([vas])\[(\d+):(\d+)\]$")

def regs_of(op):
    op = op.strip()
    if op.startswith("abs(") and op.endswith(")"):
        op = op[4:-1]
    if op.startswith("-abs(") and op.endswith(")"):
        op = op[5:-1]
    m = _REG.match(op)
    if m:
        return [(m.group(2), int(m.group(3)))]
    m = _RNG.match(op)
    if m:
        return [(m.group(2), i) for i in range(int(m.group(3)), int(m.group(4)) + 1)]
    if op == "vcc":
        return [("s", "vcc")]
    if op == "exec":
        return [("s", "exec")]
    if op == "m0":
        return [("s", "m0")]
    return []

TRANS = ("v_exp_f32", "v_rcp_f32", "v_rsq_f32", "v_log_f32", "v_sqrt_f32")

class Dec:
    def __init__(self, text):
        self.text = text
        parts = text.split(None, 1)
        self.mn = mn = parts[0]
        rest = parts[1] if len(parts) > 1 else ""
        ops, cur, depth = [], "", 0
        for ch in rest:
            if ch == "[" or ch == "(":
                depth += 1
            if ch == "]" or ch == ")":
                depth -= 1
            if ch == "," and depth == 0:
                ops.append(cur.strip()); cur = ""
            else:
                cur += ch
        if cur.strip():
            ops.append(cur.strip())
        mods = ""
        if ops:
            last = ops[-1].split(None, 1)
            if len(last) > 1 and not last[0].endswith(":"):
                ops[-1] = last[0]; mods = last[1]
        self.ops, self.mods = ops, mods
        R = lambda i: regs_of(ops[i]) if i < len(ops) else []
        self.reads, self.writes = [], []
        self.kind = "other"
        self.ws = 1
        if mn == "s_nop":
            self.kind = "nop"; self.ws = int(ops[0], 0) + 1
        elif mn.startswith("v_mfma"):
            self.kind = "mfma"
            self.D, self.A, self.B, self.C = R(0), R(1), R(2), R(3)
            self.writes = self.D; self.reads = self.A + self.B + self.C
        elif mn.startswith("v_"):
            self.kind = "valu"
            self.trans = mn.replace("_e32", "").replace("_e64", "") in TRANS
            if mn.startswith("v_cmp"):
                self.writes = R(0); self.reads = sum((R(i) for i in range(1, len(ops))), [])
            elif mn.startswith("v_permlane32_swap") or mn.startswith("v_permlane16_swap"):
                self.writes = R(0) + R(1); self.reads = R(0) + R(1)
            elif mn.startswith("v_add_co") or mn.startswith("v_addc_co"):
                self.writes = R(0) + R(1); self.reads = sum((R(i) for i in range(2, len(ops))), [])
            else:
                self.writes = R(0); self.reads = sum((R(i) for i in range(1, len(ops))), [])
                if mn.startswith("v_fmac") or mn.startswith("v_writelane"):
                    self.reads += R(0)
        elif mn.startswith("ds_read"):
            self.kind = "ds"; self.writes = R(0); self.reads = R(1); self.load = True
        elif mn.startswith("ds_write"):
            self.kind = "ds"; self.reads = R(0) + R(1); self.load = False
        elif mn.startswith("buffer_load"):
            self.kind = "vmem"
            if " lds" in (" " + mods):
                self.lds = True; self.reads = R(0) + R(1) + R(2) + [("s", "m0")]
            else:
                self.lds = False; self.writes = R(0); self.reads = R(1) + R(2) + R(3)
            self.store = False
        elif mn.startswith("buffer_store"):
            self.kind = "vmem"; self.lds = False; self.store = True
            self.data = R(0); self.reads = R(0) + R(1) + R(2) + R(3)
            self.wide = mn.endswith("x4") or mn.endswith("x3")
        elif mn.startswith("global_load"):
            self.kind = "vmem"; self.lds = False; self.store = False
            self.writes = R(0); self.reads = R(1) + R(2)
        elif mn.startswith("global_store"):
            self.kind = "vmem"; self.lds = False; self.store = True
            self.data = R(1); self.reads = R(0) + R(1) + R(2)
            self.wide = mn.endswith("x4") or mn.endswith("x3")
        elif mn.startswith("global_atomic"):
            self.kind = "vmem"; self.lds = False; self.store = True; self.wide = False
            self.data = R(1); self.reads = R(0) + R(1) + R(2)
        elif mn.startswith("buffer_inv") or mn.startswith("buffer_wbl2"):
            self.kind = "vmem"; self.lds = False; self.store = False
        elif mn.startswith("s_load") or mn.startswith("s_memtime") or mn.startswith("s_memrealtime"):
            self.kind = "smem"; self.writes = R(0); self.reads = R(1)
        elif mn.startswith("s_cmp"):
            self.kind = "salu"; self.reads = R(0) + R(1)
        elif mn.startswith("s_waitcnt") or mn in ("s_barrier", "s_endpgm", "s_setprio", "s_sleep") or mn.startswith("s_cbranch") or mn == "s_branch":
            self.kind = "ctl"
        elif mn.startswith("s_"):
            self.kind = "salu"; self.writes = R(0); self.reads = sum((R(i) for i in range(1, len(ops))), [])
        else:
            raise ValueError("unknown instruction: " + text)

class State:
    def __init__(self):
        self.vm = {}
        self.lg = {}
        self.vm_regs = {}
        self.lg_regs = {}
        self.n = 0
    def copy(self):
        s = State()
        s.vm = dict(self.vm); s.lg = dict(self.lg)
        s.vm_regs = dict(self.vm_regs); s.lg_regs = dict(self.lg_regs)
        s.n = self.n
        return s
    @staticmethod
    def merge(a, b):
        s = State()
        for (da, db, ra, rb, d, r) in ((a.vm, b.vm, a.vm_regs, b.vm_regs, s.vm, s.vm_regs),
                                       (a.lg, b.lg, a.lg_regs, b.lg_regs, s.lg, s.lg_regs)):
            for t in set(da) | set(db):
                d[t] = min(da.get(t, 10 ** 9), db.get(t, 10 ** 9))
                rr = set(ra.get(t, ())) | set(rb.get(t, ()))
                if rr:
                    r[t] = rr
        s.n = max(a.n, b.n)
        return s

_auto = [0]

def resolve(items, st, errors):
    out = []
    def retire(d, r, n):
        for t in [t for t, c in d.items() if c >= n or n == 0]:
            del d[t]; r.pop(t, None)
    for it in flatten(items):
        if isinstance(it, Raw):
            out.append(it); continue
        if isinstance(it, WaitVM) or isinstance(it, WaitLG):
            isvm = isinstance(it, WaitVM)
            d, r, cap, nm = (st.vm, st.vm_regs, 63, "vmcnt") if isvm else (st.lg, st.lg_regs, 15, "lgkmcnt")
            ns = [d[t] for t in it.tags if t in d]
            if not ns:
                continue
            n = max(0, min(min(ns), cap))
            if isvm and min(ns) > 63:
                n = 63
            out.append(Ins(f"s_waitcnt {nm}({n})"))
            retire(d, r, n)
            continue
        assert isinstance(it, Ins), it
        dec = Dec(it.text)
        if dec.mn == "s_waitcnt":
            m = re.search(r"vmcnt\((\d+)\)", it.text)
            if m: retire(st.vm, st.vm_regs, int(m.group(1)))
            m = re.search(r"lgkmcnt\((\d+)\)", it.text)
            if m: retire(st.lg, st.lg_regs, int(m.group(1)))
            out.append(it); continue
        touched = (set(dec.reads) | set(dec.writes)) if not it.nocount else set()
        for nm, r in (("vm", st.vm_regs), ("lg", st.lg_regs)):
            for t, rr in r.items():
                bad = touched & set(rr)
                if bad:
                    errors.append(f"pending {nm} load '{t}' regs {sorted(bad, key=str)[:4]} touched by: {it.text}")
        if dec.kind == "vmem" and it.nocount:
            pass
        elif dec.kind == "vmem":
            for t in st.vm: st.vm[t] += 1
            tag = it.vm
            if tag is None:
                _auto[0] += 1; tag = f"_vm{_auto[0]}"
            st.vm[tag] = 0
            if dec.writes:
                st.vm_regs[tag] = set(st.vm_regs.get(tag, set())) | set(dec.writes)
        elif dec.kind == "ds":
            for t in st.lg: st.lg[t] += 1
            tag = it.lg
            if tag is None:
                _auto[0] += 1; tag = f"_lg{_auto[0]}"
            st.lg[tag] = 0
            if dec.writes:
                st.lg_regs[tag] = set(st.lg_regs.get(tag, set())) | set(dec.writes)
        elif dec.kind == "smem":
            _auto[0] += 1; tag = f"_sm{_auto[0]}"
            for t in st.lg: st.lg[t] = -10 ** 6
            st.lg[tag] = 0
            st.lg_regs[tag] = set(dec.writes)
        out.append(it)
    return out

def isvec(r):
    return r[0] in ("v", "a")

def hazards(items, errors, label=""):
    seq = [Dec(it.text) for it in items if isinstance(it, Ins)]
    W = 24
    for i, c in enumerate(seq):
        dist = 0
        for j in range(i - 1, max(-1, i - 40), -1):
            p = seq[j]
            def err(need, why):
                if dist < need:
                    errors.append(f"{label} hazard {why}: need {need} have {dist}: [{p.text}] -> [{c.text}]")
            pw, cr, cw = set(p.writes), set(c.reads), set(c.writes)
            pwv = {r for r in pw if isvec(r)}
            if p.kind == "valu":
                if c.kind == "mfma" and pwv & cr: err(2, "valu->mfma")
                if c.kind == "valu":
                    if (c.mn.startswith("v_permlane")) and pwv & cr: err(2, "valu->permlane")
                    if (c.mn.startswith("v_readfirstlane") or c.mn.startswith("v_readlane")) and pwv & cr: err(1, "valu->readlane")
                    if p.trans and not c.trans and pwv & cr: err(1, "trans->valu")
                    ps = {r for r in pw if r[0] == "s"}
                    if ps & cr: err(2, "valu sgpr->valu")
                if c.kind in ("vmem", "ds"):
                    ps = {r for r in pw if r[0] == "s"}
                    if ps & cr: err(5, "valu sgpr->vmem")
                    if p.trans and pwv & cr: err(1, "trans->mem")
                if c.kind == "salu":
                    ps = {r for r in pw if r[0] == "s"}
                    if ps & cr: err(1, "valu sgpr->salu")
            if p.kind == "mfma":
                D = set(p.D)
                if c.kind == "mfma":
                    if D & (set(c.A) | set(c.B)): err(12, "mfma D->A/B")
                    if D & set(c.C) and set(c.C) != D: err(10, "mfma D->C partial")
                elif c.kind in ("valu", "vmem", "ds"):
                    if D & (cr | cw): err(12, "mfma D->valu/mem")
                if c.kind == "valu" and set(p.C) & {r for r in cw if isvec(r)}: err(7, "mfma C WAR")
            if p.kind == "salu" and ("s", "m0") in pw and c.kind == "vmem" and c.lds: err(1, "m0->dma")
            if p.kind == "vmem" and p.store and p.wide and c.kind == "valu" and set(p.data) & cw: err(2, "store data WAR")
            dist += p.ws
            if dist > W:
                break
    return errors

def cost(it):
    if isinstance(it, (WaitVM, WaitLG)):
        return 4
    if isinstance(it, Raw):
        return 0
    if isinstance(it, Group):
        return sum(cost(x) for x in flatten(it.items))
    if isinstance(it, str):
        it = Ins(it)
    mn = it.text.split()[0]
    if mn.startswith("v_mfma"):
        return 8
    if mn.replace("_e32", "") in TRANS:
        return 8
    if mn == "s_nop":
        return 4 * (int(it.text.split()[1], 0) + 1)
    return 4

def interleave(steps, fillers, start=0, end=None):
    n = len(steps)
    end = n if end is None else end
    fillers = list(fillers)
    total = sum(cost(f) for f in fillers)
    out = []
    k = 0
    acc = 0
    for i, stp in enumerate(steps):
        out += stp
        if start <= i < end:
            target = total * (i - start + 1) / (end - start)
            while k < len(fillers) and (acc + cost(fillers[k]) / 2 <= target or i == end - 1):
                out.append(fillers[k]); acc += cost(fillers[k]); k += 1
    assert k == len(fillers)
    return out

def text_of(items):
    lines = []
    for it in items:
        if isinstance(it, Raw):
            lines.append(it.text)
        else:
            lines.append("  " + it.text + (f"   ; {it.note}" if it.note else ""))
    return "\n".join(lines) + "\n"

def est_cycles(items):
    t = 0; vec_free = 0; mfma_free = 0
    for it in items:
        if not isinstance(it, Ins):
            continue
        mn = it.text.split()[0]
        if mn.startswith("v_mfma"):
            t = max(t, vec_free, mfma_free); mfma_free = t + 32; vec_free = t + 8; t += 4
        elif mn.startswith("v_") or mn.startswith("ds_") or mn.startswith("buffer") or mn.startswith("global"):
            t = max(t, vec_free); c = 8 if mn.replace("_e32", "") in TRANS else 4; vec_free = t + c; t += 4
        elif mn == "s_nop":
            t += 4 * (int(it.text.split()[1], 0) + 1)
        else:
            t += 4
    return max(t, mfma_free)


def place(steps, at, fillers, start=0, end=None):
    n = len(steps)
    end = n if end is None else end
    fillers = list(fillers)
    base = [sum(cost(x) for x in at.get(i, [])) for i in range(n)]
    total = sum(cost(f) for f in fillers) + sum(base[start:end])
    out = []
    k = 0
    acc = 0
    for i, stp in enumerate(steps):
        out += stp
        out += at.get(i, [])
        if start <= i < end:
            acc += base[i]
            target = total * (i - start + 1) / (end - start)
            while k < len(fillers) and (acc + cost(fillers[k]) / 2 <= target or i == end - 1):
                out.append(fillers[k]); acc += cost(fillers[k]); k += 1
    assert k == len(fillers)
    return out

def steps_for(items, first, stride):
    d = {}
    for n, it in enumerate(items):
        d.setdefault(first + int(n * stride), []).append(it)
    return d

def merge_at(*ds):
    out = {}
    for d in ds:
        for k, v in d.items():
            out.setdefault(k, []).extend(v)
    return out

_SCC_W = ("s_add_u32", "s_sub_u32", "s_addc_u32", "s_lshl_b32", "s_lshr_b32", "s_and_b32", "s_or_b32", "s_xor_b32",
          "s_min_u32", "s_max_u32", "s_ashr_i32", "s_add_i32", "s_sub_i32", "s_and_b64", "s_or_b64")
_MOVABLE = ("s_add_u32", "s_sub_u32", "s_mov_b32", "s_movk_i32", "s_lshl_b32", "s_lshr_b32", "s_and_b32", "s_or_b32",
            "s_xor_b32", "s_mul_i32", "s_cselect_b32", "s_cmp_eq_u32", "s_cmp_ge_u32", "s_cmp_lt_u32")

def _rw(d):
    r, w = set(d.reads), set(d.writes)
    mn = d.mn
    if mn in _SCC_W or mn.startswith("s_cmp"): w = w | {("s", "scc")}
    if mn.startswith("s_cselect") or mn.startswith("s_cbranch_scc") or mn == "s_addc_u32": r = r | {("s", "scc")}
    return r, w

def shadow_fill(items, window=48):
    items = list(items)
    dec = [Dec(it.text) if isinstance(it, Ins) else None for it in items]
    def is_long(d): return d is not None and (d.kind == "mfma" or (d.kind == "valu" and d.trans))
    def is_vec(d): return d is not None and d.kind in ("mfma", "valu", "ds", "vmem")
    p = 0
    moved = 0
    while p < len(items):
        d = dec[p]
        if d is not None and d.kind == "salu" and d.mn in _MOVABLE and not (p > 0 and is_long(dec[p - 1])):
            r, w = _rw(d)
            best = None
            q = p - 1
            while q >= 0 and p - q <= window:
                e = dec[q]
                if e is None or (e.kind == "ctl" and not e.mn.startswith("s_waitcnt") and e.mn != "s_barrier"):
                    break
                er, ew = _rw(e)
                if (ew & (r | w)) or (er & w):
                    break
                if q >= 1 and is_long(dec[q - 1]) and is_vec(e):
                    best = q
                q -= 1
            if best is not None:
                it = items.pop(p); dd = dec.pop(p)
                items.insert(best, it); dec.insert(best, dd)
                moved += 1
        p += 1
    return items

def _need(p, c):
    n = 0
    pw, cr, cw = set(p.writes), set(c.reads), set(c.writes)
    pwv = {r for r in pw if isvec(r)}
    if p.kind == "valu":
        ps = {r for r in pw if r[0] == "s"}
        if c.kind == "mfma" and pwv & cr: n = max(n, 2)
        if c.kind == "valu":
            if c.mn.startswith("v_permlane") and pwv & cr: n = max(n, 2)
            if (c.mn.startswith("v_readfirstlane") or c.mn.startswith("v_readlane")) and pwv & cr: n = max(n, 1)
            if p.trans and not c.trans and pwv & cr: n = max(n, 1)
            if ps & cr: n = max(n, 2)
        if c.kind in ("vmem", "ds"):
            if ps & cr: n = max(n, 5)
            if p.trans and pwv & cr: n = max(n, 1)
        if c.kind == "salu" and ps & cr: n = max(n, 1)
    if p.kind == "mfma":
        D = set(p.D)
        if c.kind == "mfma":
            if D & (set(c.A) | set(c.B)): n = max(n, 12)
            if D & set(c.C) and set(c.C) != D: n = max(n, 10)
        elif c.kind in ("valu", "vmem", "ds"):
            if D & (cr | cw): n = max(n, 12)
        if c.kind == "valu" and set(p.C) & {r for r in cw if isvec(r)}: n = max(n, 7)
    if p.kind == "salu" and ("s", "m0") in pw and c.kind == "vmem" and c.lds: n = max(n, 1)
    if p.kind == "vmem" and p.store and p.wide and c.kind == "valu" and set(p.data) & cw: n = max(n, 2)
    return n

def auto_nop(items, history=()):
    out = list(history); h = len(out)
    dec = [Dec(it.text) if isinstance(it, Ins) else None for it in out]
    added = 0
    for it in items:
        if isinstance(it, Ins):
            c = Dec(it.text)
            dist = 0; deficit = 0
            for j in range(len(out) - 1, max(-1, len(out) - 60), -1):
                p = dec[j]
                if p is None: continue
                deficit = max(deficit, _need(p, c) - dist)
                dist += p.ws
                if dist > 24: break
            while deficit > 0:
                n = min(deficit, 16)
                nop = Ins(f"s_nop {n-1}")
                out.append(nop); dec.append(Dec(nop.text)); deficit -= n; added += n
            out.append(it); dec.append(c)
        else:
            out.append(it); dec.append(None)
    return out[h:]

def fresh_store_check(items, errors, label=""):
    fresh = {}
    for it in items:
        if not isinstance(it, Ins): continue
        d = Dec(it.text)
        if d.kind == "vmem" and getattr(d, "store", False) and it.vm in ("kv", "h", "o", "out"):
            for r in d.data:
                if not fresh.get(r, False):
                    errors.append(f"{label} store of stale register {r}: {it.text}")
                fresh[r] = False
        for r in d.writes:
            fresh[r] = True
```

```python
import sys, os, math, struct
from asmlib import *

NAME = "recurrent_scan__sliding_block__mixer_channel_mlp__prompt_kernel"

def f2u(x):
    return struct.unpack("<I", struct.pack("<f", x))[0]

WS_E = 0x0
WS_FKV = 0x1000
WS_FH = 0x2000
WS_FO = 0x3000
WS_KV = 0x10000
REC = 4096
WS_O = 0x500000
WS_H = 0x700000
WS_DBG = 0xE00000
WS_SIZE = 0x2000000

SX, SWQ, SWO, SW1, SW2, SOUT, SWS, SB1, SB2 = 4, 8, 12, 16, 20, 24, 28, 32, 36
def srd(b): return f"s[{b}:{b+3}]"
sMB, sNB, sW, sTAG, sKT, sHB0 = "s40", "s41", "s42", "s43", "s44", "s45"
sI, sVAR = "s46", "s47"
sT0, sT1, sT2, sT3 = "s48", "s49", "s50", "s51"
sXO, sLW, sQB, sH1, sLD = "s52", "s53", "s54", "s55", "s56"
sKV, sHo, sW2B = "s57", "s58", "s59"
sBIT0, sBIT1, sBIT2, sBIT3, sBIT4 = "s[60:61]", "s[62:63]", "s[64:65]", "s[66:67]", "s[68:69]"
sWOB, sH3, sO3, sF3, sX3 = "s52", "s53", "s54", "s55", "s45"
sPaH, sHr, sPaW, sWr = "s8", "s9", "s10", "s11"
sKVL = "s16"

vL = "v0"
vL16, vWq, vW1, vTr = "v1", "v2", "v3", "v4"
vTrA, vTrB = "v5", "v11"
vK1, vK2, vKinv, vR1, vQs = "v6", "v7", "v8", "v9", "v10"
vPoll, vTag, vPollR, vTmp = "v12", "v13", "v14", "v15"
ACC = (16, 32)
WF = 48
DMEAN = 64
D2 = 80
TT = 80
BINV, RFRAG, CHALF = 84, 88, 92
PB = (96, 104)
CONSTA, SEL0, SEL1 = 112, 116, 120
QF = 112
ABIAS = 120
XS = 124
XF = 128

def vr(b, n=1):
    return f"v{b}" if n == 1 else f"v[{b}:{b+n-1}]"
def ar(b, n=1):
    return f"a{b}" if n == 1 else f"a[{b}:{b+n-1}]"
def X(s): return vr(XF + 4 * s, 4)
def MFMA(d, a, b, c):
    return f"v_mfma_f32_32x32x16_bf16 {d}, {a}, {b}, {c}"

AK, AV = 0, 72
def aK(t, hh): return ar(AK + 8 * t + 4 * hh, 4)
def aV(t, s, hh): return ar(AV + 16 * t + 8 * s + 4 * hh, 4)

SLOT = 32768
KVL = SLOT
KVR = 4160

class Opt:
    stop = None
    stamps = False
    sc = " sc1"
    la = 10
    touch = True
    rot = True
    gh = 6
    gph = 13
    kpo = 30
    kco = 42
    st1 = 24
    st2 = 30
    dstart = 1
    dstride10 = 27
    mall = True
    outsc = " sc1"
    opt = True
    gst = False
    lk = 4
    fend = 29
    tlb = False
    h0s = 4
    gV = -8
    gVs = 10
    wst = 27
    gH0 = 2
    gH1 = 33
    gH2 = 65
    gTq = 90
    gH3 = 104
    gQ0 = 136
    gFkv = 128
    gPkv = 156
    gKv = 167
    kst = 13
    early = False
    v2 = True
    gTwo = 188
    nohl = False
    hsc = " sc1"
    lk3 = 4
    nowait = False
    nobar = False
    nocheck = False
    only = ""
    nost = False
    nodma = False
    nostage = False
    nokv = False
OPT = Opt()

STAMP_NAMES = ["start"]
def sreg(i):
    return 180 + i
LATE = {}
LATE_REGS = [33, 34, 35, 19, 46] + list(range(70, 102))
def stamp(name, late=False):
    if not OPT.stamps:
        return []
    if OPT.only and name not in OPT.only.replace(" ", "").split("+"):
        return []
    if name not in STAMP_NAMES:
        STAMP_NAMES.append(name)
    i = STAMP_NAMES.index(name)
    if late:
        if name not in LATE:
            pool = LATE_REGS[:5] if late is True else LATE_REGS[5:]
            LATE[name] = [r for r in pool if r not in LATE.values()][0]
        mv = f"s_mov_b32 s{LATE[name]}, s0"
    else:
        mv = f"v_accvgpr_write_b32 a{sreg(i)}, s0"
    return [Group(["s_memtime s[0:1]", "s_waitcnt lgkmcnt(0)", mv])]

def stamps_move():
    if not OPT.stamps: return []
    I = ["s_lshl_b32 s3, s2, 2", f"s_add_u32 s3, s3, {sW}", "s_lshl_b32 s3, s3, 7", f"s_add_u32 s3, s3, {WS_DBG + (4 << 20)}"]
    n = len(STAMP_NAMES)
    for i in range(n):
        I.append(f"v_accvgpr_read_b32 v{128+i}, a{sreg(i)}")
    I.append("v_accvgpr_read_b32 v160, a179")
    for i in range(n):
        I.append(Ins(f"buffer_store_dword v{128+i}, off, {srd(SWS)}, s3 offset:{4*i}"))
    I.append(Ins(f"buffer_store_dword v160, off, {srd(SWS)}, s3 offset:120"))
    return I

def stamps_out():
    if not OPT.stamps: return []
    I = ["s_memrealtime s[0:1]", "s_waitcnt lgkmcnt(0)", "v_mov_b32 v16, s0",
         Ins(f"buffer_store_dword v16, off, {srd(SWS)}, s3 offset:124")]
    for n, (name, r) in enumerate(LATE.items()):
        I += [f"v_mov_b32 v{17+n}, s{r}", Ins(f"buffer_store_dword v{17+n}, off, {srd(SWS)}, s3 offset:{4*STAMP_NAMES.index(name)}")]
    return I

def prologue():
    I = []
    a = I.append
    a("s_cmp_ge_u32 s2, 256")
    a("s_cbranch_scc1 L_end")
    for (b, off) in ((SX, 0), (SWQ, 8), (SWS, 80), (SB1, 40), (SW1, 32), (SWO, 16), (SW2, 48), (SB2, 56), (SOUT, 64)):
        a(f"s_load_dwordx2 s[{b}:{b+1}], s[0:1], {off}")
    if OPT.stamps:
        a("s_memtime s[98:99]")
        a("s_memrealtime s[96:97]")
    a("s_getpc_b64 s[60:61]")
    a(Raw("L_pc:"))
    a("v_lshrrev_b32 v2, 6, v0")
    a("v_and_b32 v1, 3, v0")
    a("v_lshl_add_u32 v1, v2, 2, v1")
    a(f"s_lshr_b32 {sI}, s2, 3")
    a(f"s_lshl_b32 s49, {sI}, 11")
    a("v_lshlrev_b32 v1, 7, v1")
    a("v_add_u32 v1, s49, v1")
    a("s_mov_b32 s50, L_hot_end-L_pc-4")
    a("v_min_u32 v1, s50, v1")
    a("v_readfirstlane_b32 s42, v2")
    a(Ins("global_load_dword a255, v1, s[60:61]", vm="pf"))
    a("s_and_b32 s49, s2, 7")
    a("s_lshr_b32 s50, s49, 1")
    a("s_lshl_b32 s50, s50, 2")
    a(f"s_and_b32 s51, {sI}, 3")
    a(f"s_add_u32 {sMB}, s50, s51")
    a("s_and_b32 s50, s49, 1")
    a("s_lshl_b32 s50, s50, 3")
    a(f"s_lshr_b32 s51, {sI}, 2")
    a(f"s_add_u32 {sNB}, s50, s51")
    a("v_and_b32 v0, 63, v0")
    for (b, size) in ((SX, 2048*512*2), (SWQ, 512*1536*2), (SWS, WS_SIZE), (SB1, 1792*2)):
        a(f"s_mov_b32 s{b+2}, {size}")
        a(f"s_mov_b32 s{b+3}, 0x20000")
    a(f"s_lshr_b32 s50, {sNB}, 1")
    a("s_mul_i32 s50, s50, 7")
    a(f"s_and_b32 {sVAR}, {sNB}, 1")
    a(f"s_lshl_b32 s51, {sVAR}, 2")
    a(f"s_add_u32 {sHB0}, s50, s51")
    if OPT.touch:
        a(f"s_cmp_lt_u32 {sW}, 2")
        a("s_cbranch_scc0 L_tw")
        a(f"s_lshr_b32 s50, {sMB}, 2")
        a("s_lshl_b32 s50, s50, 9")
        a(f"s_lshl_b32 s51, {sI}, 4")
        a("s_add_u32 s50, s50, s51")
        a(f"s_lshl_b32 s51, {sW}, 3")
        a("s_add_u32 s50, s50, s51")
        a("s_lshl_b32 s50, s50, 10")
        a(f"v_lshrrev_b32 v1, 3, {vL}")
        a(f"v_and_b32 v2, 7, {vL}")
        a("v_lshlrev_b32 v2, 7, v2")
        a("v_lshl_add_u32 v1, v1, 10, v2")
        a("s_waitcnt lgkmcnt(0)")
        a(Ins(f"buffer_load_dword a254, v1, {srd(SX)}, s50 offen", vm="t1"))
        a("s_branch L_td")
        a(Raw("L_tw:"))
        a(f"s_mul_i32 s50, {sI}, {16*3072}")
        a(f"s_lshr_b32 s51, {sNB}, 3")
        a("s_lshl_b32 s51, s51, 9")
        a("s_add_u32 s50, s50, s51")
        a(f"s_sub_u32 s51, {sW}, 1")
        a("s_lshl_b32 s51, s51, 10")
        a("s_add_u32 s50, s50, s51")
        a(f"v_lshrrev_b32 v1, 2, {vL}")
        a(f"v_and_b32 v2, 3, {vL}")
        a("v_lshlrev_b32 v2, 7, v2")
        a("s_movk_i32 s51, 3072")
        a("v_mad_u32_u24 v1, v1, s51, v2")
        a("s_waitcnt lgkmcnt(0)")
        a(Ins(f"buffer_load_dword a254, v1, {srd(SWQ)}, s50 offen", nocount=True))
        a(Raw("L_td:"))
    a("s_waitcnt lgkmcnt(0)")
    I += stamp("karg")
    a(Ins(f"buffer_load_dword {vTag}, off, {srd(SWS)}, 0 offset:{WS_E}{OPT.sc}", vm="E"))
    a(f"v_and_b32 v14, 31, {vL}")
    a("v_lshlrev_b32 v14, 1, v14")
    a(f"s_lshl_b32 {sT1}, {sHB0}, 6")
    for j in range(4):
        a(Ins(f"buffer_load_ushort v{104+j}, v14, {srd(SB1)}, {sT1} offen offset:{64*j}", vm="bias"))
    if OPT.tlb:
        for (b, size) in ((SW1, 512*1792*2), (SWO, 512*512*2), (SW2, 1792*512*2), (SB2, 512*2), (SOUT, 2048*512*2)):
            a(f"s_mov_b32 s{b+2}, {size}")
            a(f"s_mov_b32 s{b+3}, 0x20000")
        for n, b in enumerate((SW1, SW2, SWO, SB2, SOUT)):
            a(Ins(f"buffer_load_dword a{240+n}, off, {srd(b)}, 0", vm=("tlb", n)))
        a(f"v_and_b32 v12, 7, {vL}")
        a("v_lshlrev_b32 v12, 21, v12")
        a(Ins(f"buffer_load_dword a245, v12, {srd(SWS)}, 0 offen offset:2048 sc1", vm=("tlb", 5)))
    a(f"s_lshl_b32 {sKT}, {sMB}, 2")
    a(f"s_add_u32 {sKT}, {sKT}, {sW}")
    a(f"s_lshl_b32 {sXO}, {sKT}, 15")
    a(f"s_lshl_b32 {sLW}, {sW}, 15")
    a(f"v_lshrrev_b32 v14, 4, {vL}")
    a(f"v_and_b32 v12, 15, {vL}")
    a("v_xor_b32 v12, v12, v14")
    a("v_lshlrev_b32 v12, 4, v12")
    a(f"v_lshl_add_u32 v{XS}, v14, 10, v12")
    for j in range(1, 4):
        a(f"v_xor_b32 v{XS+j}, {64*j}, v{XS}")
    a(f"s_lshl_b32 {sLD}, {sW}, 13")
    a(f"s_mul_i32 {sQB}, {sW}, {8*16*3072}")
    a(f"s_lshl_b32 s50, {sNB}, 6")
    a(f"s_add_u32 {sQB}, {sQB}, s50")
    a(f"v_lshlrev_b32 {vL16}, 4, {vL}")
    a(f"v_lshrrev_b32 v14, 2, {vL}")
    a(f"v_and_b32 v12, 3, {vL}")
    a("v_lshlrev_b32 v12, 4, v12")
    a("s_movk_i32 s50, 3072")
    a("s_movk_i32 s51, 3584")
    a(f"v_mad_u32_u24 {vWq}, v14, s50, v12")
    a(f"v_mad_u32_u24 {vW1}, v14, s51, v12")
    a(f"s_mul_i32 {sH1}, {sW}, {8*16*3584}")
    a(f"s_lshl_b32 s50, {sHB0}, 6")
    a(f"s_add_u32 {sH1}, {sH1}, s50")
    a(f"s_lshl_b32 s50, {sNB}, 6")
    a(f"s_add_u32 s50, s50, {sKT}")
    a(f"s_lshl_b32 {sKV}, s50, 12")
    a(f"s_add_u32 {sKV}, {sKV}, {WS_KV}")
    a(f"s_mul_i32 s50, {sKT}, 112")
    a(f"s_lshl_b32 s51, {sHB0}, 1")
    a("s_add_u32 s50, s50, s51")
    a("s_lshl_b32 s50, s50, 10")
    a(f"s_add_u32 {sHo}, s50, {WS_H}")
    for (b, size) in ((SW1, 512*1792*2), (SWO, 512*512*2), (SW2, 1792*512*2), (SB2, 512*2), (SOUT, 2048*512*2)):
        a(f"s_mov_b32 s{b+2}, {size}")
        a(f"s_mov_b32 s{b+3}, 0x20000")
    if OPT.stamps:
        a("v_accvgpr_write_b32 a180, s98"); a("v_accvgpr_write_b32 a179, s96")
    return I

def dma_x(kq):
    I = []
    for g in range(8):
        I.append(Group([f"s_add_u32 m0, {sLW}, {kq*8192 + g*1024}",
                        f"s_add_u32 {sT0}, {sXO}, {g*4096 + kq*256}",
                        Ins(f"buffer_load_dwordx4 v{XS + (g & 3)}, {srd(SX)}, {sT0} offen lds", vm=("x", kq))]))
    return I

def dma_w(tag, slot, kind, j=0):
    I = []
    if OPT.nodma and tag not in ("wK", "wV"): return I
    for i8 in range(8):
        if kind == "H":
            base, voff, s, c = sH1, vW1, SW1, j * 64 + i8 * 16 * 3584
        else:
            base, voff, s, c = sQB, vWq, SWQ, {"Q": 0, "K": 1024, "V": 2048}[kind] + i8 * 16 * 3072
        I.append(Group([f"s_add_u32 m0, {sLD}, {slot*SLOT + i8*1024}",
                        f"s_add_u32 {sT0}, {base}, {c}",
                        Ins(f"buffer_load_dwordx4 {voff}, {srd(s)}, {sT0} offen lds", vm=tag)]))
    return I

def touch_h():
    return Group([f"v_and_b32 {vTmp}, 3, {vL}", f"s_lshl_b32 {sT2}, {sW}, 2", f"v_add_u32 {vTmp}, {sT2}, {vTmp}",
                  f"v_min_u32 {vTmp}, 13, {vTmp}", f"v_lshlrev_b32 {vTmp}, 7, {vTmp}",
                  f"v_lshrrev_b32 {vPoll}, 2, {vL}", f"s_movk_i32 {sT2}, 3584", f"v_mad_u32_u24 {vTmp}, {vPoll}, {sT2}, {vTmp}",
                  f"s_mul_i32 {sT2}, {sI}, {16*3584}", f"s_lshr_b32 {sT3}, {sNB}, 3", f"s_mul_i32 {sT3}, {sT3}, 1792",
                  f"s_add_u32 {sT2}, {sT2}, {sT3}",
                  Ins(f"buffer_load_dword a253, {vTmp}, {srd(SW1)}, {sT2} offen", vm="t2")])

def touch_q():
    return Group([f"v_bfe_u32 {vPoll}, {vL}, 2, 2", f"v_and_b32 {vTmp}, 3, {vL}", f"v_lshlrev_b32 {vTmp}, 7, {vTmp}",
                  f"s_movk_i32 {sT2}, 3072", f"v_mad_u32_u24 {vTmp}, {vPoll}, {sT2}, {vTmp}",
                  f"s_lshl_b32 {sT2}, {sI}, 2", f"s_add_u32 {sT2}, {sT2}, {sW}", f"s_mul_i32 {sT2}, {sT2}, {4*3072}",
                  f"s_lshr_b32 {sT3}, {sNB}, 3", f"s_lshl_b32 {sT3}, {sT3}, 9", f"s_add_u32 {sT2}, {sT2}, {sT3}",
                  Ins(f"buffer_load_dword a252, {vTmp}, {srd(SWQ)}, {sT2} offen", vm="t3")])

def touch_wo():
    return Group([f"v_bfe_u32 {vPollR}, {vL}, 3, 2", f"v_and_b32 {vTmp}, 7, {vL}", f"v_lshlrev_b32 {vTmp}, 7, {vTmp}",
                  f"v_lshl_add_u32 {vTmp}, {vPollR}, 10, {vTmp}",
                  f"s_lshl_b32 {sT2}, {sI}, 2", f"s_add_u32 {sT2}, {sT2}, {sW}", f"s_lshl_b32 {sT2}, {sT2}, 12",
                  Ins(f"buffer_load_dword a249, {vTmp}, {srd(SWO)}, {sT2} offen", vm="t4")])

def setup_idle():
    I = []
    a = I.append
    a(f"v_lshrrev_b32 v14, 5, {vL}")
    a("v_lshlrev_b32 v14, 2, v14")
    a(f"v_bfe_u32 v15, {vL}, 2, 2")
    a("v_add_u32 v14, v14, v15")
    a("v_lshlrev_b32 v14, 6, v14")
    a(f"v_bfe_u32 v15, {vL}, 4, 1")
    a("v_lshl_add_u32 v14, v15, 5, v14")
    a(f"v_and_b32 v15, 3, {vL}")
    a(f"v_lshl_add_u32 {vTr}, v15, 3, v14")
    a(f"v_and_b32 v14, 31, {vL}")
    a(f"v_lshrrev_b32 v15, 5, {vL}")
    a(f"v_and_b32 v96, 15, {vL}")
    a("v_xor_b32 v15, v15, v96")
    a("v_lshlrev_b32 v15, 4, v15")
    a("v_lshl_add_u32 v14, v14, 8, v15")
    a(f"v_add_u32 v96, {sLW}, v14")
    for sp in range(1, 8):
        a(f"v_xor_b32 v{96+sp}, {32*sp}, v96")
    for r in range(4):
        a(f"v_mov_b32 v{CONSTA+r}, 0xbb00bb00")
    a(f"v_and_b32 v14, 31, {vL}")
    a(f"v_lshrrev_b32 v15, 5, {vL}")
    a("v_lshlrev_b32 v15, 3, v15")
    a("v_sub_u32 v14, v14, v15")
    a("v_and_b32 v15, 1, v14")
    a("v_lshlrev_b32 v15, 4, v15")
    a("v_mov_b32 v16, 0x3f80")
    a("v_lshlrev_b32 v15, v15, v16")
    a("v_lshrrev_b32 v16, 1, v14")
    a("v_subrev_u32 v17, 8, v16")
    for (sel, src) in ((SEL0, "v16"), (SEL1, "v17")):
        for j in range(4):
            p = 60 + 2 * (j & 1)
            a(f"v_cmp_eq_u32 s[{p}:{p+1}], {j}, {src}")
            a(f"v_cndmask_b32 v{sel+j}, 0, v15, s[{p}:{p+1}]")
    for (p, val) in ((60, 0xAAAAAAAA), (62, 0xCCCCCCCC), (64, 0xF0F0F0F0), (66, 0xFF00FF00), (68, 0xFFFF0000)):
        a(f"s_mov_b32 s{p}, {hex(val)}")
        a(f"s_mov_b32 s{p+1}, {hex(val)}")
    a(f"v_and_b32 v14, 31, {vL}")
    a(f"v_lshrrev_b32 v15, 5, {vL}")
    a("v_lshlrev_b32 v15, 2, v15")
    a("v_sub_u32 v14, v14, v15")
    for r in range(16):
        a(f"v_cmp_le_i32 s[{70+2*r}:{71+2*r}], {8*(r>>2) + (r&3)}, v14")
    return I

def pass1():
    I = dma_x(0) + dma_x(1) + stamp("xissued")
    t2 = [touch_h()] if OPT.touch else []
    if OPT.early: t2 += ([touch_q()] if OPT.touch else []) + (touch_mall() if OPT.mall else [])
    later = [dma_x(2), dma_x(3), dma_w("wK", 4, "K"), t2]
    for kq in range(4):
        I.append(WaitVM(("x", kq)))
        if kq in (0, 3): I += stamp(f"x{kq}")
        for sp in range(8):
            s = 8 * kq + sp
            I.append(Ins(f"ds_read_b128 {X(s)}, v{96+sp} offset:{kq*8192}", lg=("xr", s)))
        if kq == 2:
            I.append(WaitVM("bias"))
            I += [f"v_mov_b32 v{XS+j}, v{104+j}" for j in range(4)]
        steps = []
        for sp in range(8):
            s = 8 * kq + sp
            steps.append([WaitLG(("xr", s)),
                          MFMA(vr(DMEAN, 16), vr(CONSTA, 4), X(s), vr(DMEAN, 16) if s else "0"),
                          MFMA(vr(D2, 16), X(s), X(s), vr(D2, 16) if s else "0")])
        I += place(steps, steps_for(later[kq], 0, 1), [])
    I += stamp("pass1")
    I.append("s_barrier")
    return I

def stats():
    I = []
    a = I.append
    d = lambda i: f"v{D2+i}"
    for p in range(8): a(f"v_cndmask_b32 {d(2*p)}, {d(2*p)}, {d(2*p+1)}, {sBIT0}")
    for p in range(4): a(f"v_cndmask_b32 {d(4*p)}, {d(4*p)}, {d(4*p+2)}, {sBIT1}")
    for p in range(2): a(f"v_cndmask_b32 {d(8*p)}, {d(8*p)}, {d(8*p+4)}, {sBIT3}")
    a(f"v_cndmask_b32 {d(0)}, {d(0)}, {d(8)}, {sBIT4}")
    a(f"v_mul_f32 {d(2)}, v{DMEAN}, v{DMEAN}")
    a(f"v_mov_b32 {d(1)}, {d(0)}")
    a(f"v_mov_b32 {d(3)}, 0x3b000000")
    a(f"v_permlane32_swap_b32 {d(0)}, {d(1)}")
    a(f"v_mov_b32 {d(4)}, 0x3727c5ac")
    a(f"v_cndmask_b32 {d(0)}, {d(0)}, {d(1)}, {sBIT2}")
    a(f"v_fma_f32 {d(0)}, {d(0)}, {d(3)}, -{d(2)}")
    a(f"v_max_f32 {d(0)}, 0, {d(0)}")
    a(f"v_add_f32 {d(1)}, {d(0)}, {d(4)}")
    a(f"v_rsq_f32 {vR1}, {d(1)}")
    a(f"v_mul_f32 {d(1)}, {vR1}, {vR1}")
    a(f"v_fma_f32 {d(1)}, {d(0)}, {d(1)}, {d(4)}")
    a(f"v_rsq_f32 {d(1)}, {d(1)}")
    a(f"v_mul_f32 {d(1)}, {d(1)}, {vR1}")
    a(f"v_mul_f32 {vQs}, {hex(f2u(math.log2(math.e) / 4))}, {vR1}")
    a(f"v_rcp_f32 {vKinv}, {d(1)}")
    c1 = -2 * math.log2(math.e) * math.sqrt(2 / math.pi)
    a(f"v_mul_f32 {vK1}, {hex(f2u(c1))}, {d(1)}")
    a(f"v_mul_f32 {d(2)}, {d(1)}, {d(1)}")
    a(f"v_mul_f32 {d(2)}, {d(2)}, {d(1)}")
    a(f"v_mul_f32 {vK2}, {hex(f2u(c1 * 0.044715))}, {d(2)}")
    a(f"v_mul_f32 {d(0)}, 0.5, {vKinv}")
    a(f"v_cvt_pk_bf16_f32 {d(1)}, {d(0)}, {d(0)}")
    a(f"v_cvt_pk_bf16_f32 {d(2)}, {vR1}, {vR1}")
    a(f"v_and_b32 {d(1)}, 0xffff0000, {d(1)}")
    a(f"v_and_b32 {d(2)}, 0xffff0000, {d(2)}")
    a(f"v_sub_f32 {d(1)}, {d(0)}, {d(1)}")
    a(f"v_sub_f32 {d(2)}, {vR1}, {d(2)}")
    a(f"v_cvt_pk_bf16_f32 v{BINV}, {d(0)}, {d(1)}")
    a(f"v_cvt_pk_bf16_f32 v{RFRAG}, {vR1}, {d(2)}")
    a(f"v_mov_b32 v{CHALF}, 0x3f003f00")
    for b in (BINV, RFRAG, CHALF):
        for r in range(1, 4):
            a(f"v_mov_b32 v{b+r}, 0")
    return I

def centering(at, fillers, mid):
    steps = []
    bufs = (ACC[0], ACC[1], WF)
    def cvts(j):
        buf = bufs[j % 3]
        return [f"v_cvt_pk_bf16_f32 v{XF + 8*j + q}, v{buf + 2*q}, v{buf + 2*q + 1}" for q in range(8)]
    for j in range(16):
        st = []
        buf = vr(bufs[j % 3], 16)
        st.append(MFMA(buf, vr(SEL0, 4), X(2 * j), vr(DMEAN, 16)))
        if j >= 2:
            st += cvts(j - 2)[:4]
        st.append(MFMA(buf, vr(SEL1, 4), X(2 * j + 1), buf))
        if j >= 2:
            st += cvts(j - 2)[4:]
        steps.append(st)
    I = place(steps, at, fillers, start=3, end=16)
    I += cvts(14) + mid + cvts(15)
    I += stamp("center")
    return I

AWF = 216
def wf(n): return ar(AWF + 4 * (n % 8), 4)

def tr_reads(gstep, s, addr):
    b = AWF + 4 * (gstep % 8)
    return [Ins(f"ds_read_b64_tr_b16 {ar(b, 2)}, {addr} offset:{s*1024}", lg=("w", gstep)),
            Ins(f"ds_read_b64_tr_b16 {ar(b+2, 2)}, {addr} offset:{s*1024 + 512}", lg=("w", gstep))]

def epi_scale(acc, scale, pbuf):
    I = []
    for g in range(4):
        for r in range(4 * g, 4 * g + 4):
            sc = scale(r) if callable(scale) else scale
            I.append(f"v_mul_f32 v{acc+r}, v{acc+r}, {sc}")
        I.append(f"v_cvt_pk_bf16_f32 v{pbuf+2*g}, v{acc+4*g}, v{acc+4*g+1}")
        I.append(f"v_cvt_pk_bf16_f32 v{pbuf+2*g+1}, v{acc+4*g+2}, v{acc+4*g+3}")
    return I

def st_frag(reg, soff, off, tag):
    if OPT.nost and tag in ("kv", "h"): return "s_nop 0"
    return Ins(f"buffer_store_dwordx4 {vr(reg, 4)}, {vL16}, {srd(SWS)}, {soff} offen offset:{off}{OPT.sc}", vm=tag)

def epi_k(acc):
    return epi_scale(acc, vR1, PB[0])
def st_k():
    return [st_frag(PB[0], sKV, 0, "kv"), st_frag(PB[0] + 4, sKV, 1024, "kv")]

def epi_v(acc):
    return epi_scale(acc, lambda r: f"v{DMEAN+r}", PB[1])
def st_v():
    return [st_frag(PB[1], sKV, 2048, "kv"), st_frag(PB[1] + 4, sKV, 3072, "kv")]

def epi_q(acc):
    return epi_scale(acc, vQs, QF)

def epi_h(acc, j):
    p = PB[j & 1]
    I = []
    for g in range(4):
        u = [f"v{acc + 4*g + i}" for i in range(4)]
        t = [f"v{TT + i}" for i in range(4)]
        for i in range(4): I.append(f"v_mul_f32 {t[i]}, {u[i]}, {u[i]}")
        for i in range(4): I.append(f"v_fma_f32 {t[i]}, {t[i]}, {vK2}, {vK1}")
        for i in range(4): I.append(f"v_mul_f32 {t[i]}, {u[i]}, {t[i]}")
        for i in range(4): I.append(f"v_exp_f32 {t[i]}, {t[i]}")
        for i in range(4): I.append(f"v_fma_f32 {t[i]}, {t[i]}, {vKinv}, {vKinv}")
        for i in range(4): I.append(f"v_rcp_f32 {t[i]}, {t[i]}")
        for i in range(4): I.append(f"v_mul_f32 {t[i]}, {u[i]}, {t[i]}")
        I.append(f"v_cvt_pk_bf16_f32 v{p+2*g}, {t[0]}, {t[1]}")
        I.append(f"v_cvt_pk_bf16_f32 v{p+2*g+1}, {t[2]}, {t[3]}")
    return I

def st_h(j):
    p = PB[j & 1]
    return [Group([f"s_add_u32 {sT1}, {sHo}, {j*2048}", st_frag(p + 4 * s, sT1, s * 1024, "h")]) for s in range(2)]

def stores_at(st):
    return {OPT.st1: [st[0]], OPT.st2: [st[1]]}

def bias_prep(j):
    return [f"v_lshl_or_b32 v{ABIAS}, v{XS+j}, 16, v{XS+j}"]

def run_blocks(blocks):
    I = []
    trs = (vTrA, vTrB)
    nb = len(blocks)
    I.append(WaitLG(("w", 0)))
    for bi, B in enumerate(blocks):
        addr = trs[bi & 1]
        naddr = trs[(bi + 1) & 1]
        steps = []
        accr = vr(B["acc"], 16)
        for s in range(32):
            g = 32 * bi + s
            st = []
            if s == 0 and B.get("bias") is not None:
                st.append(MFMA(accr, vr(ABIAS, 4), vr(BINV, 4), "0"))
            c = accr if (s or B.get("bias") is not None) else "0"
            if B.get("swap"):
                st.append(MFMA(accr, X(s), wf(g), c))
            else:
                st.append(MFMA(accr, wf(g), X(s), c))
            if s + 1 < 32 or bi + 1 < nb:
                st.append(WaitLG(("w", g + 1)))
            LK = OPT.lk
            if s + LK < 32:
                st += tr_reads(g + LK, s + LK, addr)
            elif bi + 1 < nb:
                if s == 32 - LK:
                    st += [WaitVM(blocks[bi + 1]["tag"]), "s_barrier"]
                st += tr_reads(g + LK, s + LK - 32, naddr)
            steps.append(st)
        fill = list(B.get("fill", []))
        if bi + 1 < nb:
            fill = [f"v_add_u32 {naddr}, {blocks[bi+1]['slot']*SLOT}, {vTr}"] + fill
        I += place(steps, B.get("at", {}), fill, start=B.get("fstart", 2), end=OPT.fend)
        I += stamp(f"blk{bi}" if B["name"] != "Q" else "blkQ")
    return I

def touch_mall():
    return [Group([f"v_and_b32 {vTmp}, 15, {vL}", f"v_lshlrev_b32 {vTmp}, 7, {vTmp}",
                   f"s_lshl_b32 {sT2}, s2, 2", f"s_add_u32 {sT2}, {sT2}, {sW}", f"s_lshl_b32 {sT2}, {sT2}, 11",
                   Ins(f"buffer_load_dword a251, {vTmp}, {srd(SW2)}, {sT2} offen", vm="t5")]),
            Group([f"v_and_b32 {vTmp}, 3, {vL}", f"v_lshlrev_b32 {vTmp}, 7, {vTmp}",
                   f"s_lshl_b32 {sT2}, s2, 2", f"s_add_u32 {sT2}, {sT2}, {sW}", f"s_lshl_b32 {sT2}, {sT2}, 9",
                   Ins(f"buffer_load_dword a250, {vTmp}, {srd(SWO)}, {sT2} offen", vm="t6")])]

def sched(*entries):
    at = {}
    for items, g0, stride in entries:
        for n, it in enumerate(items):
            at.setdefault(g0 + int(n * stride), []).append(it)
    return at

def sub_at(at, lo, hi):
    return {g - lo: v for g, v in at.items() if lo <= g < hi}

def phase1(variant):
    O = OPT
    I = []
    I += prologue()
    I += setup_idle()
    I += pass1()
    first = [WaitVM("wK"), "s_barrier", f"v_add_u32 {vTrA}, {4*SLOT}, {vTr}"]
    for s in range(OPT.lk):
        first += tr_reads(s, s, vTrA)
    A, B_ = ACC
    flag_kv = flag_store([f"s_lshl_b32 {sT1}, {sNB}, 8", f"s_lshl_b32 {sT2}, {sKT}, 2", f"s_add_u32 {sT1}, {sT1}, {sT2}",
                          f"s_add_u32 {sT1}, {sT1}, {WS_FKV}"], "fkv", "kv")
    st = O.wst / 10
    E = [(dma_w("wV", 0, "V"), O.gV, O.gVs / 10),
         (dma_w("wH0", 1, "H", 0), O.gH0, st), (dma_w("wH1", 2, "H", 1), O.gH1, st), (dma_w("wH2", 3, "H", 2), O.gH2, st)]
    tq = ([touch_q()] if O.touch else []) + (touch_mall() if O.mall else [])
    if not O.early: E.append((tq, O.gTq, 1))
    def S(stl, b): return [([stl[0]], 32 * b + O.st1, 1), ([stl[1]], 32 * b + O.st2, 1)]
    E += S(st_k(), 1) + S(st_v(), 2) + S(st_h(0), 3) + S(st_h(1), 4) + S(st_h(2), 5)
    E.append(([flag_kv], O.gFkv, 1))
    E.append((poll_kv_issue(), O.gPkv, 1))
    if variant == 0:
        E += [(dma_w("wH3", 0, "H", 3), O.gH3, st), (dma_w("wQ", 4, "Q"), O.gQ0, st)] + S(st_h(3), 6)
    else:
        E += [(dma_w("wQ", 4, "Q"), O.gH3, st)]
    ck, ld = kv_stage(variant)
    E += [(ck, O.gKv, 1), (ld, O.gKv + 1, O.kst / 10)]
    if O.touch:
        E.append(([touch_wo()], O.gTwo, 1))
    at = sched(*E)
    I += centering(merge_at(sub_at(at, -16, 0), {1: ["s_nop 2"]}), stats(), first)
    zero_abias = [f"v_mov_b32 v{ABIAS+r}, 0" for r in range(1, 4)]
    tagcalc = [WaitVM("E"),
               Group([f"v_readfirstlane_b32 {sTAG}, {vTag}",
                      f"s_mul_i32 {sTAG}, {sTAG}, 0x41c64e6d", f"s_add_u32 {sTAG}, {sTAG}, 0x3039"]),
               f"v_mov_b32 {vTag}, {sTAG}"]
    rt = [MFMA(vr(DMEAN, 16), vr(RFRAG, 4), vr(CHALF, 4), "0")]
    blocks = [
        dict(name="K", slot=4, acc=A, tag="wK", fill=rt + zero_abias + tagcalc, fstart=0),
        dict(name="V", slot=0, acc=B_, swap=True, tag="wV", fill=epi_k(A) + bias_prep(0)),
        dict(name="H0", slot=1, acc=A, bias=0, tag="wH0", fill=epi_v(B_) + bias_prep(1) + mask_regs()),
        dict(name="H1", slot=2, acc=B_, bias=1, tag="wH1", fill=epi_h(A, 0) + bias_prep(2)),
    ]
    if variant == 0:
        blocks += [
            dict(name="H2", slot=3, acc=A, bias=2, tag="wH2", fill=epi_h(B_, 1) + bias_prep(3) + kv_prep()),
            dict(name="H3", slot=0, acc=B_, bias=3, tag="wH3", fill=epi_h(A, 2)),
            dict(name="Q", slot=4, acc=A, tag="wQ", fill=epi_h(B_, 3))]
        qacc = A
    else:
        blocks += [
            dict(name="H2", slot=3, acc=A, bias=2, tag="wH2", fill=epi_h(B_, 1) + kv_prep()),
            dict(name="Q", slot=4, acc=B_, tag="wQ", fill=epi_h(A, 2))]
        qacc = B_
    for bi, B in enumerate(blocks):
        B["at"] = sub_at(at, 32 * bi, 32 * bi + 32)
    assert max(at) < 32 * len(blocks), max(at)
    I += run_blocks(blocks)
    I += [WaitVM("kvs"), "s_barrier"]
    I += att_first_reads() + epi_q(qacc)
    return I

VA = 124
vKa = "v3"
MM = 88
SBUF = (16, 32)
SDIAG = 64
PBUF = (96, 104)
PFAR = 80
OACC = (48, 64)
OPK = (16, 20)
cold = []

def mask_regs():
    I = [f"s_mov_b32 {sT2}, 0xffff"]
    for j in range(8):
        I += [f"v_cndmask_b32 v{MM+j}, 0, -1, s[{70+4*j}:{71+4*j}]",
              f"v_cndmask_b32 {vTmp}, 0, -1, s[{72+4*j}:{73+4*j}]",
              f"v_bfi_b32 v{MM+j}, {sT2}, v{MM+j}, {vTmp}"]
    return [I[0]] + [Group(I[1+3*j:4+3*j]) for j in range(8)]

def poll(tag, voff, soff, res=vPollR):
    return Ins(f"buffer_load_dword {res}, {voff}, {srd(SWS)}, {soff} offen sc1", vm=tag)

def poll_check(tag, voff, soff_setup, soff, name, res=vPollR, pre=()):
    cold.extend([Raw(f"L_spin_{name}:")] + [Ins(x) if isinstance(x, str) else x for x in pre] +
                [Ins(f"s_mov_b32 {sT3}, 0x4000"), Raw(f"L_spin2_{name}:")] +
                [Ins(x) for x in soff_setup] +
                [Ins(f"buffer_load_dword {res}, {voff}, {srd(SWS)}, {soff} offen sc1"),
                 Ins("s_waitcnt vmcnt(0)"),
                 Ins(f"v_cmp_ne_u32 vcc, {sTAG}, {res}"),
                 Ins("s_nop 0"),
                 Ins(f"s_cbranch_vccz L_back_{name}"),
                 Ins(f"s_sub_u32 {sT3}, {sT3}, 1"),
                 Ins(f"s_cmp_lg_u32 {sT3}, 0"),
                 Ins(f"s_cbranch_scc1 L_spin2_{name}"),
                 Ins(f"s_branch L_back_{name}")])
    return Group([WaitVM(tag), f"v_cmp_ne_u32 vcc, {sTAG}, {res}", "s_nop 0",
                  f"s_cbranch_vccnz L_spin_{name}", Raw(f"L_back_{name}:")])

KV_SOFF = [f"s_lshl_b32 {sT2}, {sNB}, 8", f"s_add_u32 {sT2}, {sT2}, {WS_FKV}"]
def poll_kv_issue():
    return [Group([f"v_min_u32 {vPoll}, 11, {vL}", f"s_lshl_b32 {sT2}, {sMB}, 2", f"s_sub_u32 {sT2}, {sT2}, 8",
                   f"v_add_u32 {vPoll}, {sT2}, {vPoll}", f"v_max_i32 {vPoll}, 0, {vPoll}", f"v_lshlrev_b32 {vPoll}, 2, {vPoll}"]
                  + KV_SOFF + [poll("pkv", vPoll, sT2)])]

def kv_prep():
    I = [f"s_mul_i32 {sT2}, {sW}, {KVR}", f"s_add_u32 {sT2}, {sT2}, {KVL}", f"v_add_u32 {vKa}, {sT2}, {vL16}",
         f"v_add_u32 v{VA}, 2048, {vKa}", f"v_add_u32 v{VA+1}, 3072, {vKa}",
         f"s_add_u32 {sT2}, {sT2}, 4096", f"v_mov_b32 {vTmp}, {sT2}"]
    I = [Group(I),
         f"v_cndmask_b32 v{VA+2}, {vTmp}, v{VA}, {sBIT4}", f"v_cndmask_b32 v{VA+3}, {vTmp}, v{VA+1}, {sBIT4}",
         f"v_cndmask_b32 v{VA}, v{VA}, {vTmp}, {sBIT4}", f"v_cndmask_b32 v{VA+1}, v{VA+1}, {vTmp}, {sBIT4}",
         Group([f"s_lshl_b32 {sT2}, {sNB}, 6", f"s_lshl_b32 {sT3}, {sMB}, 2", f"s_add_u32 {sT2}, {sT2}, {sT3}",
                f"s_mul_i32 {sT3}, {sW}, 3", f"s_add_u32 {sT2}, {sT2}, {sT3}", f"s_lshl_b32 {sKVL}, {sT2}, 12",
                f"s_add_u32 {sKVL}, {sKVL}, {WS_KV - 8*REC}",
                f"s_mul_i32 s17, {sW}, {3*KVR}"])]
    return I

def kv_stage(variant):
    ones = Group([f"v_mov_b32 v{TT+r}, 0x3f803f80" for r in range(0)] +
                 [f"v_min_u32 {vTmp}, 11, {vL}", f"s_movk_i32 {sT2}, {KVR}", f"v_mul_u32_u24 {vTmp}, {sT2}, {vTmp}",
                  f"v_add_u32 {vTmp}, {KVL + 4096}, {vTmp}", f"v_mov_b32 {vPollR}, 0x3f803f80",
                  Ins(f"ds_write2_b32 {vTmp}, {vPollR}, {vPollR} offset0:0 offset1:1", lg="ones"),
                  Ins(f"ds_write2_b32 {vTmp}, {vPollR}, {vPollR} offset0:2 offset1:3", lg="ones")])
    L = []
    for q in range(3):
        for u in range(4):
            pre = [f"s_add_u32 m0, s17, {KVL + q*KVR}", f"s_add_u32 s18, {sKVL}, {q*REC}"] if u == 0 else []
            L.append(Group(pre + [Ins(f"buffer_load_dwordx4 {vL16}, {srd(SWS)}, s18 offen offset:{u*1024}{OPT.sc} lds", vm="kvs")]))
    return [Group([poll_check("pkv", vPoll, KV_SOFF, sT2, f"kv{variant}"), ones])], (L if not OPT.nokv else [])

def rdK(t, hh):
    return Ins(f"ds_read_b128 {aK(t, hh)}, {vKa} offset:{t*KVR + hh*1024}", lg=("k", t, hh))
def rdV(t, s, hh):
    return Ins(f"ds_read_b128 {aV(t, s, hh)}, v{VA + 2*hh + s} offset:{t*KVR}", lg=("v", t, hh))

def att_first_reads():
    return [rdK(0, 0), rdK(8, 0), rdK(1, 0), rdK(2, 0)]

def att_reads():
    L = []
    V = lambda t, hh: [rdV(t, 0, hh), rdV(t, 1, hh)]
    L += V(0, 0) + V(8, 0) + [rdK(3, 0)] + V(1, 0) + [rdK(4, 0)] + V(2, 0) + [rdK(5, 0)] + V(3, 0) + [rdK(6, 0)]
    L += V(4, 0) + [rdK(7, 0)] + V(5, 0) + V(6, 0) + V(7, 0)
    L += [rdK(0, 1), rdK(8, 1), rdK(1, 1)] + V(0, 1) + V(8, 1) + [rdK(2, 1)]
    for t in range(1, 8):
        L += V(t, 1) + ([rdK(t + 2, 1)] if t + 2 <= 7 else [])
    return L

def zero_invalid():
    C = [Raw("L_zero:")]
    C += [Ins(x.text) for x in att_reads()]
    C += [Ins("s_waitcnt lgkmcnt(0)"), Ins("v_mov_b32 v15, 0")]
    for t in range(8):
        C += [Ins(f"s_add_u32 {sT2}, {sKT}, {t}"), Ins(f"s_cmp_ge_u32 {sT2}, 8"), Ins("s_cbranch_scc1 L_zero_done")]
        regs = [AK + 8*t + i for i in range(8)] + [AV + 16*t + i for i in range(16)]
        C += [Ins(f"v_accvgpr_write_b32 a{r}, v15") for r in regs]
    C += [Raw("L_zero_done:"), Ins("s_nop 1"), Ins("s_branch L_att_noread")]
    cold.extend(C)
    return [f"s_cmp_lt_u32 {sKT}, 8", "s_cbranch_scc1 L_zero"]

def fallback(hh):
    S, P, M, T = 24, 96, 40, 41
    O = OACC[hh]; Q = vr(QF + 4*hh, 4)
    C = [Raw(f"L_fb{hh}:"), Ins("s_nop 15"), Ins(f"v_mov_b32 v{M}, 0xff800000"), Ins(f"v_mov_b32 v{T+1}, 0xff800000")]
    def scores(t):
        c = [Ins(MFMA(vr(S, 16), aK(t, hh), Q, "0")), Ins("s_nop 15")]
        if t == 8:
            c += [Ins(f"v_cndmask_b32 v{S+r}, v{T+1}, v{S+r}, s[{70+2*r}:{71+2*r}]") for r in range(16)]
        if t == 0:
            c += [Ins(f"v_cndmask_b32 v{S+r}, v{S+r}, v{T+1}, s[{70+2*r}:{71+2*r}]") for r in range(16)]
        return c
    def guard(t, lab):
        if t == 8: return []
        return [Ins(f"s_add_u32 {sT2}, {sKT}, {t}"), Ins(f"s_cmp_lt_u32 {sT2}, 8"), Ins(f"s_cbranch_scc1 {lab}")]
    for t in range(9):
        lab = f"L_fb{hh}_a{t}"
        C += guard(t, lab) + scores(t)
        C += [Ins(f"v_max3_f32 v{M}, v{M}, v{S+2*j}, v{S+2*j+1}") for j in range(8)]
        C.append(Raw(lab + ":"))
    C += [Ins(f"v_mov_b32 v{T}, v{M}"), Ins("s_nop 1"), Ins(f"v_permlane32_swap_b32 v{M}, v{T}"), Ins("s_nop 1"),
          Ins(f"v_max_f32 v{M}, v{M}, v{T}")]
    C += [Ins(f"v_mov_b32 v{O+r}, 0") for r in range(16)]
    for t in range(9):
        lab = f"L_fb{hh}_b{t}"
        C += guard(t, lab) + scores(t)
        C += [Ins(f"v_sub_f32 v{S+r}, v{S+r}, v{M}") for r in range(16)]
        C += [Ins(f"v_exp_f32 v{S+r}, v{S+r}") for r in range(16)]
        C += [Ins("s_nop 0")]
        C += [Ins(f"v_cvt_pk_bf16_f32 v{P+j}, v{S+2*j}, v{S+2*j+1}") for j in range(8)]
        C += [Ins("s_nop 1")]
        for s in range(2):
            C.append(Ins(MFMA(vr(O, 16), aV(t, s, hh), vr(P + 4*s, 4), vr(O, 16))))
        C += [Ins("s_nop 7"), Raw(lab + ":")]
    C += [Ins("s_nop 15"), Ins(f"s_branch L_fb{hh}_back")]
    cold.extend(C)

def att_final(hh):
    O = OACC[hh]
    ol, ll = (O, O + 8) if hh == 0 else (O + 8, O)
    pk = OPK[hh]
    fallback(hh)
    I = [Group([f"v_subrev_u32 {vTmp}, 0x2b800000, v{ll}", f"v_cmp_lt_u32 vcc, 0x28000000, {vTmp}", "s_nop 0",
                f"s_cbranch_vccnz L_fb{hh}", Raw(f"L_fb{hh}_back:")]),
         f"v_rcp_f32 {vTmp}, v{ll}"]
    I += [f"v_mul_f32 v{ol+r}, v{ol+r}, {vTmp}" for r in range(8)]
    I += [f"v_cvt_pk_bf16_f32 v{pk+j}, v{ol+2*j}, v{ol+2*j+1}" for j in range(4)]
    I.append(Group([f"s_lshl_b32 {sT1}, {sKT}, 5", f"s_lshl_b32 {sT2}, {sNB}, 1", f"s_add_u32 {sT1}, {sT1}, {sT2}",
                    f"s_lshl_b32 {sT1}, {sT1}, 10", f"s_add_u32 {sT1}, {sT1}, {WS_O}",
                    Ins(f"buffer_store_dwordx4 {vr(pk, 4)}, {vL16}, {srd(SWS)}, {sT1} offen offset:{hh*1024}{OPT.sc}", vm="o")]))
    return I

def flag_store(idx_setup, tag, wait):
    return Group([WaitVM(wait)] + idx_setup + ["s_mov_b64 exec, 1",
                  Ins(f"buffer_store_dword {vTag}, off, {srd(SWS)}, {sT1} sc0 sc1", vm=tag),
                  "s_mov_b64 exec, -1"])

def flag_kt_nb(base):
    return [f"s_lshl_b32 {sT1}, {sKT}, 6", f"s_lshl_b32 {sT2}, {sNB}, 2", f"s_add_u32 {sT1}, {sT1}, {sT2}",
            f"s_add_u32 {sT1}, {sT1}, {base}"]

def attention(extra, reads):
    W = WaitLG if reads else (lambda *a: None)
    def s_mfma(G):
        hh, g = divmod(G, 8)
        Q = vr(QF + 4*hh, 4)
        b = vr(SBUF[G & 1], 16)
        if g == 0:
            return [[W(("k", 0, hh)), MFMA(b, aK(0, hh), Q, "0")],
                    [W(("k", 8, hh)), MFMA(vr(SDIAG, 16), aK(8, hh), Q, "0")]]
        return [[W(("k", g, hh)), MFMA(b, aK(g, hh), Q, "0")]]
    def pv(G):
        hh, g = divmod(G, 8)
        O = vr(OACC[hh], 16)
        P = PBUF[G & 1]
        if g == 0:
            return [[W(("v", 0, hh)), MFMA(O, aV(0, 0, hh), vr(PFAR, 4), "0")],
                    [MFMA(O, aV(0, 1, hh), vr(PFAR + 4, 4), O)],
                    [W(("v", 8, hh)), MFMA(O, aV(8, 0, hh), vr(P, 4), O)],
                    [MFMA(O, aV(8, 1, hh), vr(P + 4, 4), O)]]
        return [[W(("v", g, hh)), MFMA(O, aV(g, 0, hh), vr(P, 4), O)],
                [MFMA(O, aV(g, 1, hh), vr(P + 4, 4), O)]]
    I = []
    for m in s_mfma(0): I += m
    for G in range(16):
        hh, g = divmod(G, 8)
        S, P = SBUF[G & 1], PBUF[G & 1]
        mf = (s_mfma(G + 1) if G < 15 else []) + (pv(G - 1) if G > 0 else [])
        chunks = []
        if g == 0:
            cn = [f"v_cndmask_b32 v{S+r}, v{S+r}, v{SDIAG+r}, s[{70+2*r}:{71+2*r}]" for r in range(16)]
            chunks += [cn[0:4], cn[4:8], cn[8:12], cn[12:16]]
        for q in range(4):
            c = [f"v_exp_f32 v{S+4*q+i}, v{S+4*q+i}" for i in range(4)]
            if q > 0:
                c += [f"v_cvt_pk_bf16_f32 v{P+2*q-2}, v{S+4*q-4}, v{S+4*q-3}", f"v_cvt_pk_bf16_f32 v{P+2*q-1}, v{S+4*q-2}, v{S+4*q-1}"]
            chunks.append(c)
        chunks.append([f"v_cvt_pk_bf16_f32 v{P+6}, v{S+12}, v{S+13}", f"v_cvt_pk_bf16_f32 v{P+7}, v{S+14}, v{S+15}"])
        if g == 0:
            chunks.append([f"v_bfi_b32 v{PFAR+j}, v{MM+j}, 0, v{P+j}" for j in range(8)])
            chunks.append([f"v_and_b32 v{P+j}, v{MM+j}, v{P+j}" for j in range(8)])
        ex = list(extra.get(G, []))
        k = 0
        for ci, c in enumerate(chunks):
            if k < len(mf):
                I += mf[k]; k += 1
            I += c
            if ex and ci < len(chunks) - 1:
                n = -(-len(ex) // (len(chunks) - 1 - ci))
                I += ex[:n]; ex = ex[n:]
        while k < len(mf):
            I += mf[k]; k += 1
        I += ex
        if OPT.gst and G in (0, 1, 2, 3, 5, 7, 8, 9, 11, 13): I += stamp(f"g{G}", True)
    for m in pv(15): I += m
    return I

SIG = [0, 3, 4, 1, 2, 0, 3, 4, 1]
EXS = 2
vW2 = "v2"
ACB = (16, 32); ACS = (64, 128)
W3 = ((48, 52), (56, 60), (96, 100), (104, 108), (112, 116), (80, 84))
T3L = ("v8", "v9")
T3 = (("v5", "v6"), ("v11", "v7"))
vXo = "v3"
XR = 168
RX = 176
CQ = 88

def w2_prep():
    return [f"v_lshrrev_b32 {vTmp}, 3, {vL}", f"v_lshlrev_b32 {vTmp}, 10, {vTmp}",
            f"v_bfe_u32 {vW2}, {vL}, 4, 1", f"v_lshlrev_b32 {vW2}, 2, {vW2}",
            f"v_xor_b32 {vW2}, {vW2}, {vL}", f"v_and_b32 {vW2}, 7, {vW2}",
            f"v_lshl_add_u32 {vW2}, {vW2}, 4, {vTmp}"]

def rot_prep():
    rot = [f"s_and_b32 {sT2}, {sNB}, 7", f"s_and_b32 {sT3}, {sMB}, 3", f"s_lshl_b32 {sT3}, {sT3}, 1", f"s_add_u32 {sPaW}, {sT2}, {sT3}",
           f"s_cmp_ge_u32 {sPaW}, 7", f"s_cselect_b32 {sT2}, 7, 0", f"s_sub_u32 {sPaW}, {sPaW}, {sT2}"]
    if not OPT.rot:
        rot = [f"s_mov_b32 {sPaW}, 0"]
    return rot + [f"s_mov_b32 {sPaH}, {sPaW}",
                  f"s_lshr_b32 {sT2}, {sW}, 1", f"s_mul_i32 {sW2B}, {sT2}, 917504", f"s_lshl_b32 {sWOB}, {sT2}, 18",
                  f"s_and_b32 {sT2}, {sW}, 1", f"s_lshl_b32 {sT2}, {sT2}, 16",
                  f"s_add_u32 {sW2B}, {sW2B}, {sT2}", f"s_add_u32 {sWOB}, {sWOB}, {sT2}",
                  f"s_and_b32 {sT2}, {sNB}, 7", f"s_lshl_b32 {sT2}, {sT2}, 7",
                  f"s_add_u32 {sW2B}, {sW2B}, {sT2}", f"s_add_u32 {sWOB}, {sWOB}, {sT2}"]

def advance(pa):
    return [f"s_add_u32 {pa}, {pa}, 1", f"s_cmp_eq_u32 {pa}, 7", f"s_cselect_b32 {pa}, 0, {pa}"]

def stage_base(p):
    return [f"s_add_u32 {sWr}, {sPaW}, {p}", f"s_cmp_ge_u32 {sWr}, 7", f"s_cselect_b32 {sT3}, 7, 0", f"s_sub_u32 {sWr}, {sWr}, {sT3}",
            f"s_lshl_b32 {sWr}, {sWr}, 17", f"s_add_u32 {sWr}, {sWr}, {sW2B}"]

SG = 128
def sg_reg(p, n): return SG + 32 * (p - 5) + 4 * n

def dma_stage(p):
    I = []
    if OPT.nostage: return I
    for jj in range(4):
        for half in range(2):
            n = 2 * jj + half
            pre = []
            if p <= 6:
                base, s, c = sWr, SW2, (16 * jj + 8 * half) * 1024
                if n == 0: pre = stage_base(p)
            else:
                base, s, c = sWOB, SWO, (16 * (8 * (p - 7) + jj) + 8 * half) * 1024
            if p <= 4 or not OPT.v2:
                I.append(Group(pre + [f"s_add_u32 m0, {sLD}, {SIG[p]*SLOT + jj*2048 + half*1024}",
                                      f"s_add_u32 {sT0}, {base}, {c}",
                                      Ins(f"buffer_load_dwordx4 {vW2}, {srd(s)}, {sT0} offen lds", vm=("st", p))]))
            else:
                I.append(Group(pre + [f"s_add_u32 {sT0}, {base}, {c}",
                                      Ins(f"buffer_load_dwordx4 {vr(sg_reg(p, n), 4)}, {vW2}, {srd(s)}, {sT0} offen", vm=("sg", p))]))
    return I

def write_stage(p):
    I = [Group([WaitVM(("sg", p)), f"s_add_u32 {sT2}, {sLD}, {SIG[p]*SLOT}", f"v_add_u32 v4, {sT2}, {vL16}"])]
    for n in range(8):
        I.append(Ins(f"ds_write_b128 v4, {vr(sg_reg(p, n), 4)} offset:{n*1024}", lg=("sw", p)))
    return I

def p3_prep():
    I = [Group([f"s_lshr_b32 {sT2}, {sNB}, 3", f"s_lshl_b32 {sT2}, {sT2}, 1", f"s_and_b32 {sT3}, {sW}, 1",
                f"s_add_u32 {sT2}, {sT2}, {sT3}", f"s_lshl_b32 {sT3}, {sMB}, 2", f"s_add_u32 {sT2}, {sT2}, {sT3}",
                f"s_lshr_b32 {sT3}, {sW}, 1",
                f"s_mul_i32 {sH3}, {sT2}, 112", f"s_mul_i32 {sO3}, {sT3}, 56", f"s_add_u32 {sH3}, {sH3}, {sO3}",
                f"s_lshl_b32 {sH3}, {sH3}, 10", f"s_add_u32 {sH3}, {sH3}, {WS_H}",
                f"s_lshl_b32 {sO3}, {sT2}, 5", f"s_lshl_b32 {sF3}, {sT3}, 4", f"s_add_u32 {sO3}, {sO3}, {sF3}",
                f"s_lshl_b32 {sO3}, {sO3}, 10", f"s_add_u32 {sO3}, {sO3}, {WS_O}",
                f"s_lshl_b32 {sF3}, {sT2}, 6", f"s_lshl_b32 {sX3}, {sT3}, 5", f"s_add_u32 {sF3}, {sF3}, {sX3}",
                f"s_lshl_b32 {sX3}, {sT2}, 15", f"s_and_b32 {sT2}, {sNB}, 7", f"s_lshl_b32 {sT2}, {sT2}, 7",
                f"s_add_u32 {sX3}, {sX3}, {sT2}", f"s_lshl_b32 {sT3}, {sT3}, 6", f"s_add_u32 {sX3}, {sX3}, {sT3}"])]
    a = I.append
    a(f"v_lshrrev_b32 {T3L[0]}, 5, {vL}")
    a(f"v_lshlrev_b32 {T3L[0]}, 2, {T3L[0]}")
    a(f"v_bfe_u32 {vTmp}, {vL}, 2, 2")
    a(f"v_add_u32 {T3L[0]}, {T3L[0]}, {vTmp}")
    a(f"v_lshlrev_b32 {T3L[0]}, 7, {T3L[0]}")
    a(f"v_bfe_u32 {vTmp}, {vL}, 4, 1")
    a(f"v_lshlrev_b32 {vTmp}, 1, {vTmp}")
    a(f"v_bfe_u32 {T3L[1]}, {vL}, 1, 1")
    a(f"v_add_u32 {vTmp}, {vTmp}, {T3L[1]}")
    a(f"v_bfe_u32 {T3L[1]}, {vL}, 3, 1")
    a(f"v_lshl_add_u32 {vTmp}, {T3L[1]}, 2, {vTmp}")
    a(f"v_lshl_add_u32 {T3L[0]}, {vTmp}, 4, {T3L[0]}")
    a(f"v_and_b32 {vTmp}, 1, {vL}")
    a(f"v_lshl_add_u32 {T3L[0]}, {vTmp}, 3, {T3L[0]}")
    a(Group([f"s_lshr_b32 {sT3}, {sW}, 1", f"s_lshl_b32 {sT2}, {sT3}, 6", f"s_lshl_b32 {sT3}, {sT3}, 14",
             f"v_xor_b32 {T3L[0]}, {sT2}, {T3L[0]}", f"v_add_u32 {T3L[0]}, {sT3}, {T3L[0]}"]))
    a(f"v_xor_b32 {T3L[1]}, 64, {T3L[0]}")
    a(f"v_and_b32 {vPoll}, 7, {vL}")
    a(f"v_lshlrev_b32 {vPoll}, 2, {vPoll}")
    a(Group([f"v_and_b32 {vTmp}, 31, {vL}", f"v_lshlrev_b32 {vTmp}, 1, {vTmp}",
             f"s_and_b32 {sT2}, {sNB}, 7", f"s_lshl_b32 {sT2}, {sT2}, 7", f"s_lshr_b32 {sT3}, {sW}, 1",
             f"s_lshl_b32 {sT3}, {sT3}, 6", f"s_add_u32 {sT2}, {sT2}, {sT3}",
             Ins(f"buffer_load_ushort v10, {vTmp}, {srd(SB2)}, {sT2} offen", vm="b2")]))
    return I

def x_resid():
    I = [Group([f"v_and_b32 {vXo}, 31, {vL}", f"v_lshlrev_b32 {vXo}, 10, {vXo}", f"v_lshrrev_b32 {vTmp}, 5, {vL}",
                f"v_lshl_add_u32 {vXo}, {vTmp}, 3, {vXo}"])]
    for q in range(4):
        I.append(Ins(f"buffer_load_dwordx2 {vr(XR + 2*q, 2)}, {vXo}, {srd(SX)}, {sX3} offen offset:{16*q}", vm="xr"))
    return I

FH_SOFF = [f"s_add_u32 {sT2}, {sF3}, {WS_FH}"]
FO_SOFF = [f"s_add_u32 {sT2}, {sF3}, {WS_FO}"]

def frag_reg(k):
    if k < 56: return 4*k
    j = k - 56
    return 224 + 4*j if j < 8 else 4*(j - 8)

def frag_load(k):
    pre = []
    if k < 56:
        j8 = k & 7
        if j8 == 0:
            pre = [f"s_lshl_b32 {sHr}, {sPaH}, 13", f"s_add_u32 {sHr}, {sHr}, {sH3}"] + advance(sPaH) + [f"s_mov_b32 {sT1}, {sHr}"]
        elif j8 == 4:
            pre = [f"s_add_u32 {sT1}, {sHr}, 4096"]
        else:
            pre = [f"s_add_u32 {sT1}, {sHr}, {4096 * (j8 >> 2)}"]
    else:
        j = k - 56
        pre = [f"s_add_u32 {sT1}, {sO3}, {(j >> 2)*4096}"]
    if OPT.nohl: return Group(pre)
    return Group(pre + [Ins(f"buffer_load_dwordx4 {ar(frag_reg(k), 4)}, {vL16}, {srd(SWS)}, {sT1} offen offset:{(k & 3)*1024}{OPT.hsc}", vm=("f", k))])

def p3_reads(k):
    p, j8 = divmod(k, 8)
    I = []
    for j in range(2):
        b = W3[k % 6][j]; ad = T3[p & 1][j]
        I += [Ins(f"ds_read_b64_tr_b16 {vr(b, 2)}, {ad} offset:{j8*2048}", lg=("w3", k)),
              Ins(f"ds_read_b64_tr_b16 {vr(b+2, 2)}, {ad} offset:{j8*2048 + 1024}", lg=("w3", k))]
    return I

def t3_set(p):
    return [f"v_add_u32 {T3[p & 1][j]}, {SIG[p]*SLOT}, {T3L[j]}" for j in range(2)]

def phase3():
    LA = OPT.la
    I = []
    for k in range(LA):
        I.append(frag_load(k))
    I.append(flag_store(flag_kt_nb(WS_FO), "fo", "o"))
    I += [f"v_mov_b32 v{CQ}, 0x3e803e80"] + [f"v_mov_b32 v{CQ+r}, 0" for r in range(1, 4)]
    I += [WaitVM("b2"), f"v_lshl_or_b32 v{ABIAS}, v10, 16, v10"]
    I += t3_set(0)
    I += [WaitVM(*[("st", p) for p in range(5)]), "s_barrier"]
    I += stamp("p3start", 2)
    I += [MFMA(vr(ACB[0], 16), vr(ABIAS, 4), vr(CQ, 4), "0")]
    for k in range(OPT.lk3):
        I += p3_reads(k)
    steps = []
    LK = OPT.lk3
    fills = {k: [] for k in range(72)}
    I += [WaitVM(("f", 0)), WaitLG(("w3", 0))]
    for k in range(72):
        p, j8 = divmod(k, 8)
        acc = ACB if p <= 6 else ACS
        st = []
        for j in range(2):
            first = (k == 0 and j == 1) or k == 56
            st.append(MFMA(vr(acc[j], 16), vr(W3[k % 6][j], 4), ar(frag_reg(k), 4), "0" if first else vr(acc[j], 16)))
            if j == 0:
                if k + 1 < 72:
                    st.append(WaitLG(("w3", k + 1)))
                if k + LK < 72:
                    k2 = k + LK
                    if k2 % 8 == 0:
                        p2 = k2 // 8
                        if p2 >= 2:
                            st += ([WaitLG(("sw", p2)) if OPT.v2 else WaitVM(("st", p2))] if p2 >= 5 else []) + ([] if OPT.nobar else ["s_barrier"])
                    st += p3_reads(k2)[:2]
            else:
                if k + 1 < 72 and not OPT.nowait:
                    st.append(WaitVM(("f", k + 1)))
                if k + LK < 72:
                    st += p3_reads(k + LK)[2:]
        if j8 == 1 and p + 1 <= 8:
            st += t3_set(p + 1)
        steps.append(st)
    for k in range(LA, 72):
        kk = k - LA
        if k >= 56:
            kk = max(kk, OPT.kco)
        fills[kk].append(frag_load(k))
    for p2 in range(2, 6):
        d = write_stage(p2 + 3) if OPT.v2 else dma_stage(p2 + 3)
        for n, g in enumerate(d):
            fills[8 * p2 - LK + min(n, 8) - (1 if n == 8 else 0)].append(g)
    fills[OPT.kpo].insert(0, Group(FO_SOFF + [poll("po", vPoll, sT2)]))
    fills[OPT.kco].insert(0, poll_check("po", vPoll, FO_SOFF, sT2, "o"))
    for n, g in enumerate(x_resid()):
        fills[58 + n].append(g)
    for k in range(72):
        I += steps[k] + fills[k]
        if k in (0, 7, 27, 41, 55, 56, 71) and not OPT.gst: I += stamp(f"k{k}", 2)
    ex = EXS * SLOT
    I += [f"v_add_u32 v5, {sLD}, {vL16}", f"s_xor_b32 {sT2}, {sLD}, 16384", f"v_add_u32 v6, {sT2}, {vL16}",
          f"v_add_u32 v5, {ex}, v5", f"v_add_u32 v6, {ex}, v6"]
    for q in range(4):
        I.append(Ins(f"ds_write_b128 v5, {vr(ACB[1] + 4*q, 4)} offset:{q*1024}", lg="exw"))
    for q in range(4):
        I.append(Ins(f"ds_write_b128 v5, {vr(ACS[1] + 4*q, 4)} offset:{4096 + q*1024}", lg="exw"))
    I += [WaitLG("exw"), "s_barrier"]
    for q in range(8):
        I.append(Ins(f"ds_read_b128 {vr(RX + 4*q, 4)}, v6 offset:{q*1024}", lg=("exr", q)))
    I += stamp("exch", 2)
    B0, S0 = ACB[0], ACS[0]
    I += [WaitVM("xr"), f"s_mov_b32 {sT3}, 0xffff0000", f"v_mov_b32 v10, {hex(f2u(-math.log2(math.e)))}"]
    T = 208
    for q in range(4):
        r = [4*q + i for i in range(4)]
        I.append(WaitLG(("exr", q)))
        for i in r: I.append(f"v_add_f32 v{B0+i}, v{B0+i}, v{RX+i}")
        for i in range(4): I.append(f"v_mul_f32 v{T+i}, v10, v{B0+r[i]}")
        for i in range(4): I.append(f"v_exp_f32 v{T+i}, v{T+i}")
        I.append(WaitLG(("exr", 4 + q)))
        for i in r: I.append(f"v_add_f32 v{S0+i}, v{S0+i}, v{RX+16+i}")
        for i in range(4): I.append(f"v_add_f32 v{T+i}, 1.0, v{T+i}")
        for i in range(4): I.append(f"v_rcp_f32 v{T+i}, v{T+i}")
        for i in r: I.append(f"v_mul_f32 v{S0+i}, v{S0+i}, v{B0+i}")
        x0, x1 = XR + 2*q, XR + 2*q + 1
        I += [f"v_lshlrev_b32 v{T+4}, 16, v{x0}", f"v_and_b32 v{T+5}, {sT3}, v{x0}",
              f"v_lshlrev_b32 v{T+6}, 16, v{x1}", f"v_and_b32 v{T+7}, {sT3}, v{x1}"]
        for i in range(4): I.append(f"v_fma_f32 v{T+i}, v{S0+r[i]}, v{T+i}, v{T+4+i}")
        I += [f"v_cvt_pk_bf16_f32 v{x0}, v{T}, v{T+1}", f"v_cvt_pk_bf16_f32 v{x1}, v{T+2}, v{T+3}"]
        I.append(Ins(f"buffer_store_dwordx2 {vr(x0, 2)}, {vXo}, {srd(SOUT)}, {sX3} offen offset:{16*q}{OPT.outsc}", vm="out"))
    return I

def epoch_update():
    C = [Raw("L_epoch:"), Ins(f"s_mov_b32 {sT3}, 0x4000"), Raw("L_epoch2:"), Ins(f"s_mov_b32 {sT2}, {WS_FO}")]
    for q in range(4):
        C.append(Ins(f"buffer_load_dwordx4 {vr(16 + 4*q, 4)}, {vL16}, {srd(SWS)}, {sT2} offen offset:{q*1024} sc1"))
    C.append(Ins("s_waitcnt vmcnt(0)"))
    for r in range(16):
        C.append(Ins(f"v_xor_b32 v{16+r}, {sTAG}, v{16+r}"))
    for r in range(1, 16):
        C.append(Ins(f"v_or_b32 v16, v16, v{16+r}"))
    C += [Ins("v_cmp_ne_u32 vcc, 0, v16"), Ins("s_nop 0"), Ins("s_cbranch_vccz L_epoch3"),
          Ins(f"s_sub_u32 {sT3}, {sT3}, 1"), Ins(f"s_cmp_lg_u32 {sT3}, 0"), Ins("s_cbranch_scc1 L_epoch2"),
          Raw("L_epoch3:"), Ins("s_mov_b64 exec, 1"),
          Ins(f"buffer_store_dword {vTag}, off, {srd(SWS)}, 0 offset:{WS_E} sc0 sc1"),
          Ins("s_endpgm")]
    cold.extend(C)
    return [f"s_or_b32 {sT2}, s2, {sW}", f"s_cmp_eq_u32 {sT2}, 0", "s_cbranch_scc1 L_epoch"]

def dump_q():
    I = [f"s_lshl_b32 {sT1}, {sNB}, 6", f"s_add_u32 {sT1}, {sT1}, {sKT}", f"s_lshl_b32 {sT1}, {sT1}, 11",
         f"s_add_u32 {sT1}, {sT1}, {WS_DBG}"]
    I += [st_frag(QF, sT1, 0, "dq"), st_frag(QF + 4, sT1, 1024, "dq")]
    return I

def common_prefix(a, b):
    n = 0
    while n < len(a) and n < len(b) and type(a[n]) is type(b[n]) and a[n].text == b[n].text:
        n += 1
    return n

def spread(items, groups):
    d = {}
    n = len(items)
    for i, it in enumerate(items if n else []):
        d.setdefault(groups[i * len(groups) // n], []).append(it)
    return d

def finish(items, st, errors, history=()):
    r = resolve(items, st, errors)
    if OPT.opt:
        r = shadow_fill(r)
    return auto_nop(r, history)

def build():
    errors = []
    sa, sb = State(), State()
    A = finish(phase1(0), sa, errors)
    B = finish(phase1(1), sb, errors)
    hazards(A, errors, "p1/var0"); fresh_store_check(A, errors, "var0")
    hazards(B, errors, "p1/var1"); fresh_store_check(B, errors, "var1")
    n = common_prefix(A, B)
    out = A[:n] + [Ins(f"s_cmp_eq_u32 {sVAR}, 1"), Ins("s_cbranch_scc1 L_var1")] + A[n:] + \
        [Ins("s_branch L_join1"), Raw("L_var1:")] + B[n:] + [Raw("L_join1:")]
    from asmlib import _rw
    for L in (A, B):
        for it in L[n:]:
            if not isinstance(it, Ins): continue
            r, w = _rw(Dec(it.text))
            if ("s", "scc") in r:
                errors.append("SCC live across the variant split: " + it.text)
            if ("s", "scc") in w: break
    st = State.merge(sa, sb)
    f0, f1 = att_final(0), att_final(1)
    pp = p3_prep()
    def att_extra(reads):
        R = att_reads() if reads else []
        ex = [spread(R, [0, 1, 2, 3, 4, 5, 6])] if R else []
        ex.append({0: w2_prep() + rot_prep()})
        order = dma_stage(0) + dma_stage(1) + dma_stage(2)
        if OPT.v2:
            order += dma_stage(5) + dma_stage(6)
            ex.append(spread(order, [1, 2, 3, 4, 5, 6, 7, 8, 9]))
            ex.append(spread(dma_stage(7) + dma_stage(8) + dma_stage(3) + dma_stage(4), [10, 11, 12, 13, 14, 15]))
        else:
            ex.append(spread(order, [1, 2, 3, 4, 5, 6, 7, 8]))
            ex.append(spread(dma_stage(3) + dma_stage(4), [9, 10, 11, 12, 13, 14]))
        ex.append(spread(pp, [3, 4, 5]))
        ex.append({OPT.gh: [flag_store(flag_kt_nb(WS_FH), "fh", "h")]})
        ex.append({8: [Group(["s_waitcnt lgkmcnt(0)", "s_barrier"])]})
        ex.append({OPT.gph: [Group(FH_SOFF + [poll("ph", vPoll, sT2)])]})
        return merge_at(*ex)
    tail0 = stamps_move() + stamp("att0", True) + zero_invalid()
    hist = A[-30:] + B[-30:]
    T0 = finish(tail0, st, errors, hist)
    s1 = st.copy(); s2 = st.copy()
    AT1 = finish(attention(att_extra(True), True), s1, errors, B[-30:] + T0)
    AT1 = auto_nop(AT1, A[-30:] + T0)
    s2.lg = {}; s2.lg_regs = {}
    AT2 = finish(attention(att_extra(False), False), s2, errors)
    st = State.merge(s1, s2)
    tail = f0 + f1 + stamp("att1", True)
    if OPT.stop == "att":
        tail += [flag_store(flag_kt_nb(WS_FO), "fo", "o")] + dump_q()
    else:
        early_o = [Ins("s_waitcnt vmcnt(0)")] + [Ins(x) for x in flag_kt_nb(WS_FO)] + \
                  [Ins("s_mov_b64 exec, 1"), Ins(f"buffer_store_dword {vTag}, off, {srd(SWS)}, {sT1} sc0 sc1"), Ins("s_mov_b64 exec, -1")]
        tail += [poll_check("ph", vPoll, FH_SOFF, sT2, "h", pre=early_o)] + stamp("pollH", 2)
        tail += phase3() + stamp("end", 2) + stamps_out() + epoch_update()
    tail += ["s_waitcnt vmcnt(0)"]
    T = finish(tail, st, errors, AT1[-30:])
    T = auto_nop(T, AT2[-30:])
    hazards(A[-40:] + T0 + AT1 + T, errors, "att/var0")
    hazards(B[-40:] + T0 + AT1 + T, errors, "att/var1")
    hazards(AT2 + T, errors, "att/copy2")
    fresh_store_check(AT1 + T, errors, "tail")
    out += T0 + AT1 + [Raw("L_att_join:")] + T
    out += [Raw("L_hot_end:"), Raw("L_end:"), Ins("s_endpgm")]
    C = flatten(cold)
    hazards(C, errors, "cold")
    out += C + [Raw("L_att_noread:")] + AT2 + [Ins("s_branch L_att_join")]
    info = dict(est_a=est_cycles(A), est_b=est_cycles(B), est_att=est_cycles(AT1), est_t=est_cycles(T), prefix=n, na=len(A), nb=len(B))
    return out, errors, info

HEADER = """; Fused LayerNorm -> QKV -> sliding-window attention -> Wo, gated by SiLU(channel MLP), one persistent launch.
; @launch grid=(256,1,1) block=(256,1,1) lds=163840
.amdgcn_target "amdgcn-amd-amdhsa--gfx950"
.text
.globl {name}
.p2align 8
.type {name},@function
{name}:
"""
FOOTER = """.section .rodata,"a"
.p2align 6
.amdhsa_kernel {name}
  .amdhsa_next_free_vgpr 512
  .amdhsa_next_free_sgpr 102
  .amdhsa_accum_offset 256
  .amdhsa_group_segment_fixed_size 0
  .amdhsa_kernarg_size 88
  .amdhsa_user_sgpr_count 2
  .amdhsa_user_sgpr_kernarg_segment_ptr 1
  .amdhsa_system_sgpr_workgroup_id_x 1
  .amdhsa_float_denorm_mode_32 3
.end_amdhsa_kernel
"""

def main():
    args = sys.argv[1:]
    outp = args[0]
    for kv in args[1:]:
        k, v = kv.split("=")
        cur = getattr(OPT, k)
        setattr(OPT, k, (v not in ("0", "False")) if isinstance(cur, bool) else (int(v) if isinstance(cur, int) else (" " + v if v else "")))
    items, errors, info = build()
    if OPT.nocheck: errors = []
    for e in errors:
        print("ERROR:", e)
    print(info)
    if OPT.stamps: print("STAMPS", len(STAMP_NAMES), ",".join(STAMP_NAMES))
    txt = HEADER.format(name=NAME) + text_of(items) + FOOTER.format(name=NAME)
    open(outp, "w").write(txt)
    if errors:
        sys.exit(1)

if __name__ == "__main__":
    main()
```

```python
import sys, os, math, struct
from asmlib import *

NAME = "recurrent_scan__sliding_block__mixer_channel_mlp__prompt_kernel"

def f2u(x):
    return struct.unpack("<I", struct.pack("<f", x))[0]

WS_E = 0x0
WS_FKV = 0x1000
WS_FH = 0x2000
WS_FO = 0x3000
WS_KV = 0x10000
REC = 4096
WS_O = 0x500000
WS_H = 0x700000
WS_DBG = 0xE00000
WS_SIZE = 0x2000000

SX, SWQ, SWO, SW1, SW2, SOUT, SWS, SB1, SB2 = 4, 8, 12, 16, 20, 24, 28, 32, 36
def srd(b): return f"s[{b}:{b+3}]"
sMB, sNB, sW, sTAG, sKT, sHB0 = "s40", "s41", "s42", "s43", "s44", "s45"
sI, sVAR = "s46", "s47"
sT0, sT1, sT2, sT3 = "s48", "s49", "s50", "s51"
sXO, sLW, sQB, sH1, sLD = "s52", "s53", "s54", "s55", "s56"
sKV, sHo, sW2B = "s57", "s58", "s59"
sBIT0, sBIT1, sBIT2, sBIT3, sBIT4 = "s[60:61]", "s[62:63]", "s[64:65]", "s[66:67]", "s[68:69]"
sWOB, sH3, sO3, sF3, sX3 = "s52", "s53", "s54", "s55", "s45"
sPaH, sHr, sPaW, sWr = "s8", "s9", "s10", "s11"
sKVL = "s16"

vL = "v0"
vL16, vWq, vW1, vTr = "v1", "v2", "v3", "v4"
vTrA, vTrB = "v5", "v11"
vK1, vK2, vKinv, vR1, vQs = "v6", "v7", "v8", "v9", "v10"
vPoll, vTag, vPollR, vTmp = "v12", "v13", "v14", "v15"
ACC = (16, 32)
WF = 48
DMEAN = 64
D2 = 80
TT = 80
BINV, RFRAG, CHALF = 84, 88, 92
PB = (96, 104)
CONSTA, SEL0, SEL1 = 112, 116, 120
QF = 112
ABIAS = 120
XS = 124
XF = 128

def vr(b, n=1):
    return f"v{b}" if n == 1 else f"v[{b}:{b+n-1}]"
def ar(b, n=1):
    return f"a{b}" if n == 1 else f"a[{b}:{b+n-1}]"
def X(s): return vr(XF + 4 * s, 4)
def MFMA(d, a, b, c):
    return f"v_mfma_f32_32x32x16_bf16 {d}, {a}, {b}, {c}"

AK, AV = 0, 72
def aK(t, hh): return ar(AK + 8 * t + 4 * hh, 4)
def aV(t, s, hh): return ar(AV + 16 * t + 8 * s + 4 * hh, 4)

SLOT = 32768
KVL = SLOT
KVR = 4160

class Opt:
    stop = None
    stamps = False
    sc = " sc1"
    la = 10
    touch = True
    rot = True
    gh = 6
    gph = 13
    kpo = 30
    kco = 42
    st1 = 24
    st2 = 30
    dstart = 1
    dstride10 = 27
    mall = True
    outsc = " sc1"
    opt = True
    gst = False
    lk = 4
    fend = 29
    tlb = False
    h0s = 4
    gV = -8
    gVs = 10
    wst = 27
    gH0 = 2
    gH1 = 33
    gH2 = 65
    gTq = 90
    gH3 = 104
    gQ0 = 136
    gFkv = 128
    gPkv = 156
    gKv = 167
    kst = 13
    early = False
    v2 = True
    gTwo = 188
    nohl = False
    hsc = " sc1"
    lk3 = 4
    nowait = False
    nobar = False
    nocheck = False
    only = ""
    calib = 0
    nost = False
    nodma = False
    nostage = False
    nokv = False
OPT = Opt()

STAMP_NAMES = ["start"]
def sreg(i):
    return 180 + i
LATE = {}
LATE_REGS = [33, 34, 35, 19, 46] + list(range(70, 102))
def stamp(name, late=False):
    if not OPT.stamps:
        return []
    if OPT.only and name not in OPT.only.replace(" ", "").split("+"):
        return []
    if name not in STAMP_NAMES:
        STAMP_NAMES.append(name)
    i = STAMP_NAMES.index(name)
    if late:
        if name not in LATE:
            pool = LATE_REGS[:5] if late is True else LATE_REGS[5:]
            LATE[name] = [r for r in pool if r not in LATE.values()][0]
        mv = f"s_mov_b32 s{LATE[name]}, s0"
    else:
        mv = f"v_accvgpr_write_b32 a{sreg(i)}, s0"
    return [Group(["s_memtime s[0:1]", "s_waitcnt lgkmcnt(0)", mv])]

def stamps_move():
    if not OPT.stamps: return []
    I = ["s_lshl_b32 s3, s2, 2", f"s_add_u32 s3, s3, {sW}", "s_lshl_b32 s3, s3, 7", f"s_add_u32 s3, s3, {WS_DBG + (4 << 20)}"]
    n = len(STAMP_NAMES)
    for i in range(n):
        I.append(f"v_accvgpr_read_b32 v{128+i}, a{sreg(i)}")
    I.append("v_accvgpr_read_b32 v160, a179")
    for i in range(n):
        I.append(Ins(f"buffer_store_dword v{128+i}, off, {srd(SWS)}, s3 offset:{4*i}"))
    I.append(Ins(f"buffer_store_dword v160, off, {srd(SWS)}, s3 offset:120"))
    return I

def stamps_out():
    if not OPT.stamps: return []
    I = ["s_memrealtime s[0:1]", "s_waitcnt lgkmcnt(0)", "v_mov_b32 v16, s0",
         Ins(f"buffer_store_dword v16, off, {srd(SWS)}, s3 offset:124")]
    for n, (name, r) in enumerate(LATE.items()):
        I += [f"v_mov_b32 v{17+n}, s{r}", Ins(f"buffer_store_dword v{17+n}, off, {srd(SWS)}, s3 offset:{4*STAMP_NAMES.index(name)}")]
    return I

def prologue():
    I = []
    a = I.append
    a("s_cmp_ge_u32 s2, 256")
    a("s_cbranch_scc1 L_end")
    for (b, off) in ((SX, 0), (SWQ, 8), (SWS, 80), (SB1, 40), (SW1, 32), (SWO, 16), (SW2, 48), (SB2, 56), (SOUT, 64)):
        a(f"s_load_dwordx2 s[{b}:{b+1}], s[0:1], {off}")
    if OPT.stamps:
        a("s_memtime s[98:99]")
        a("s_memrealtime s[96:97]")
    a("s_getpc_b64 s[60:61]")
    a(Raw("L_pc:"))
    a("v_lshrrev_b32 v2, 6, v0")
    a("v_and_b32 v1, 3, v0")
    a("v_lshl_add_u32 v1, v2, 2, v1")
    a(f"s_lshr_b32 {sI}, s2, 3")
    a(f"s_lshl_b32 s49, {sI}, 11")
    a("v_lshlrev_b32 v1, 7, v1")
    a("v_add_u32 v1, s49, v1")
    a("s_mov_b32 s50, L_hot_end-L_pc-4")
    a("v_min_u32 v1, s50, v1")
    a("v_readfirstlane_b32 s42, v2")
    a(Ins("global_load_dword a255, v1, s[60:61]", vm="pf"))
    a("s_and_b32 s49, s2, 7")
    a("s_lshr_b32 s50, s49, 1")
    a("s_lshl_b32 s50, s50, 2")
    a(f"s_and_b32 s51, {sI}, 3")
    a(f"s_add_u32 {sMB}, s50, s51")
    a("s_and_b32 s50, s49, 1")
    a("s_lshl_b32 s50, s50, 3")
    a(f"s_lshr_b32 s51, {sI}, 2")
    a(f"s_add_u32 {sNB}, s50, s51")
    a("v_and_b32 v0, 63, v0")
    for (b, size) in ((SX, 2048*512*2), (SWQ, 512*1536*2), (SWS, WS_SIZE), (SB1, 1792*2)):
        a(f"s_mov_b32 s{b+2}, {size}")
        a(f"s_mov_b32 s{b+3}, 0x20000")
    a(f"s_lshr_b32 s50, {sNB}, 1")
    a("s_mul_i32 s50, s50, 7")
    a(f"s_and_b32 {sVAR}, {sNB}, 1")
    a(f"s_lshl_b32 s51, {sVAR}, 2")
    a(f"s_add_u32 {sHB0}, s50, s51")
    if OPT.touch:
        a(f"s_cmp_lt_u32 {sW}, 2")
        a("s_cbranch_scc0 L_tw")
        a(f"s_lshr_b32 s50, {sMB}, 2")
        a("s_lshl_b32 s50, s50, 9")
        a(f"s_lshl_b32 s51, {sI}, 4")
        a("s_add_u32 s50, s50, s51")
        a(f"s_lshl_b32 s51, {sW}, 3")
        a("s_add_u32 s50, s50, s51")
        a("s_lshl_b32 s50, s50, 10")
        a(f"v_lshrrev_b32 v1, 3, {vL}")
        a(f"v_and_b32 v2, 7, {vL}")
        a("v_lshlrev_b32 v2, 7, v2")
        a("v_lshl_add_u32 v1, v1, 10, v2")
        a("s_waitcnt lgkmcnt(0)")
        a(Ins(f"buffer_load_dword a254, v1, {srd(SX)}, s50 offen", vm="t1"))
        a("s_branch L_td")
        a(Raw("L_tw:"))
        a(f"s_mul_i32 s50, {sI}, {16*3072}")
        a(f"s_lshr_b32 s51, {sNB}, 3")
        a("s_lshl_b32 s51, s51, 9")
        a("s_add_u32 s50, s50, s51")
        a(f"s_sub_u32 s51, {sW}, 1")
        a("s_lshl_b32 s51, s51, 10")
        a("s_add_u32 s50, s50, s51")
        a(f"v_lshrrev_b32 v1, 2, {vL}")
        a(f"v_and_b32 v2, 3, {vL}")
        a("v_lshlrev_b32 v2, 7, v2")
        a("s_movk_i32 s51, 3072")
        a("v_mad_u32_u24 v1, v1, s51, v2")
        a("s_waitcnt lgkmcnt(0)")
        a(Ins(f"buffer_load_dword a254, v1, {srd(SWQ)}, s50 offen", nocount=True))
        a(Raw("L_td:"))
    a("s_waitcnt lgkmcnt(0)")
    I += stamp("karg")
    a(Ins(f"buffer_load_dword {vTag}, off, {srd(SWS)}, 0 offset:{WS_E}{OPT.sc}", vm="E"))
    a(f"v_and_b32 v14, 31, {vL}")
    a("v_lshlrev_b32 v14, 1, v14")
    a(f"s_lshl_b32 {sT1}, {sHB0}, 6")
    for j in range(4):
        a(Ins(f"buffer_load_ushort v{104+j}, v14, {srd(SB1)}, {sT1} offen offset:{64*j}", vm="bias"))
    if OPT.tlb:
        for (b, size) in ((SW1, 512*1792*2), (SWO, 512*512*2), (SW2, 1792*512*2), (SB2, 512*2), (SOUT, 2048*512*2)):
            a(f"s_mov_b32 s{b+2}, {size}")
            a(f"s_mov_b32 s{b+3}, 0x20000")
        for n, b in enumerate((SW1, SW2, SWO, SB2, SOUT)):
            a(Ins(f"buffer_load_dword a{240+n}, off, {srd(b)}, 0", vm=("tlb", n)))
        a(f"v_and_b32 v12, 7, {vL}")
        a("v_lshlrev_b32 v12, 21, v12")
        a(Ins(f"buffer_load_dword a245, v12, {srd(SWS)}, 0 offen offset:2048 sc1", vm=("tlb", 5)))
    a(f"s_lshl_b32 {sKT}, {sMB}, 2")
    a(f"s_add_u32 {sKT}, {sKT}, {sW}")
    a(f"s_lshl_b32 {sXO}, {sKT}, 15")
    a(f"s_lshl_b32 {sLW}, {sW}, 15")
    a(f"v_lshrrev_b32 v14, 4, {vL}")
    a(f"v_and_b32 v12, 15, {vL}")
    a("v_xor_b32 v12, v12, v14")
    a("v_lshlrev_b32 v12, 4, v12")
    a(f"v_lshl_add_u32 v{XS}, v14, 10, v12")
    for j in range(1, 4):
        a(f"v_xor_b32 v{XS+j}, {64*j}, v{XS}")
    a(f"s_lshl_b32 {sLD}, {sW}, 13")
    a(f"s_mul_i32 {sQB}, {sW}, {8*16*3072}")
    a(f"s_lshl_b32 s50, {sNB}, 6")
    a(f"s_add_u32 {sQB}, {sQB}, s50")
    a(f"v_lshlrev_b32 {vL16}, 4, {vL}")
    a(f"v_lshrrev_b32 v14, 2, {vL}")
    a(f"v_and_b32 v12, 3, {vL}")
    a("v_lshlrev_b32 v12, 4, v12")
    a("s_movk_i32 s50, 3072")
    a("s_movk_i32 s51, 3584")
    a(f"v_mad_u32_u24 {vWq}, v14, s50, v12")
    a(f"v_mad_u32_u24 {vW1}, v14, s51, v12")
    a(f"s_mul_i32 {sH1}, {sW}, {8*16*3584}")
    a(f"s_lshl_b32 s50, {sHB0}, 6")
    a(f"s_add_u32 {sH1}, {sH1}, s50")
    a(f"s_lshl_b32 s50, {sNB}, 6")
    a(f"s_add_u32 s50, s50, {sKT}")
    a(f"s_lshl_b32 {sKV}, s50, 12")
    a(f"s_add_u32 {sKV}, {sKV}, {WS_KV}")
    a(f"s_mul_i32 s50, {sKT}, 112")
    a(f"s_lshl_b32 s51, {sHB0}, 1")
    a("s_add_u32 s50, s50, s51")
    a("s_lshl_b32 s50, s50, 10")
    a(f"s_add_u32 {sHo}, s50, {WS_H}")
    for (b, size) in ((SW1, 512*1792*2), (SWO, 512*512*2), (SW2, 1792*512*2), (SB2, 512*2), (SOUT, 2048*512*2)):
        a(f"s_mov_b32 s{b+2}, {size}")
        a(f"s_mov_b32 s{b+3}, 0x20000")
    if OPT.stamps:
        a("v_accvgpr_write_b32 a180, s98"); a("v_accvgpr_write_b32 a179, s96")
    return I

def dma_x(kq):
    I = []
    for g in range(8):
        I.append(Group([f"s_add_u32 m0, {sLW}, {kq*8192 + g*1024}",
                        f"s_add_u32 {sT0}, {sXO}, {g*4096 + kq*256}",
                        Ins(f"buffer_load_dwordx4 v{XS + (g & 3)}, {srd(SX)}, {sT0} offen lds", vm=("x", kq))]))
    return I

def dma_w(tag, slot, kind, j=0):
    I = []
    if OPT.nodma and tag not in ("wK", "wV"): return I
    for i8 in range(8):
        if kind == "H":
            base, voff, s, c = sH1, vW1, SW1, j * 64 + i8 * 16 * 3584
        else:
            base, voff, s, c = sQB, vWq, SWQ, {"Q": 0, "K": 1024, "V": 2048}[kind] + i8 * 16 * 3072
        I.append(Group([f"s_add_u32 m0, {sLD}, {slot*SLOT + i8*1024}",
                        f"s_add_u32 {sT0}, {base}, {c}",
                        Ins(f"buffer_load_dwordx4 {voff}, {srd(s)}, {sT0} offen lds", vm=tag)]))
    return I

def touch_h():
    return Group([f"v_and_b32 {vTmp}, 3, {vL}", f"s_lshl_b32 {sT2}, {sW}, 2", f"v_add_u32 {vTmp}, {sT2}, {vTmp}",
                  f"v_min_u32 {vTmp}, 13, {vTmp}", f"v_lshlrev_b32 {vTmp}, 7, {vTmp}",
                  f"v_lshrrev_b32 {vPoll}, 2, {vL}", f"s_movk_i32 {sT2}, 3584", f"v_mad_u32_u24 {vTmp}, {vPoll}, {sT2}, {vTmp}",
                  f"s_mul_i32 {sT2}, {sI}, {16*3584}", f"s_lshr_b32 {sT3}, {sNB}, 3", f"s_mul_i32 {sT3}, {sT3}, 1792",
                  f"s_add_u32 {sT2}, {sT2}, {sT3}",
                  Ins(f"buffer_load_dword a253, {vTmp}, {srd(SW1)}, {sT2} offen", vm="t2")])

def touch_q():
    return Group([f"v_bfe_u32 {vPoll}, {vL}, 2, 2", f"v_and_b32 {vTmp}, 3, {vL}", f"v_lshlrev_b32 {vTmp}, 7, {vTmp}",
                  f"s_movk_i32 {sT2}, 3072", f"v_mad_u32_u24 {vTmp}, {vPoll}, {sT2}, {vTmp}",
                  f"s_lshl_b32 {sT2}, {sI}, 2", f"s_add_u32 {sT2}, {sT2}, {sW}", f"s_mul_i32 {sT2}, {sT2}, {4*3072}",
                  f"s_lshr_b32 {sT3}, {sNB}, 3", f"s_lshl_b32 {sT3}, {sT3}, 9", f"s_add_u32 {sT2}, {sT2}, {sT3}",
                  Ins(f"buffer_load_dword a252, {vTmp}, {srd(SWQ)}, {sT2} offen", vm="t3")])

def touch_wo():
    return Group([f"v_bfe_u32 {vPollR}, {vL}, 3, 2", f"v_and_b32 {vTmp}, 7, {vL}", f"v_lshlrev_b32 {vTmp}, 7, {vTmp}",
                  f"v_lshl_add_u32 {vTmp}, {vPollR}, 10, {vTmp}",
                  f"s_lshl_b32 {sT2}, {sI}, 2", f"s_add_u32 {sT2}, {sT2}, {sW}", f"s_lshl_b32 {sT2}, {sT2}, 12",
                  Ins(f"buffer_load_dword a249, {vTmp}, {srd(SWO)}, {sT2} offen", vm="t4")])

def setup_idle():
    I = []
    a = I.append
    a(f"v_lshrrev_b32 v14, 5, {vL}")
    a("v_lshlrev_b32 v14, 2, v14")
    a(f"v_bfe_u32 v15, {vL}, 2, 2")
    a("v_add_u32 v14, v14, v15")
    a("v_lshlrev_b32 v14, 6, v14")
    a(f"v_bfe_u32 v15, {vL}, 4, 1")
    a("v_lshl_add_u32 v14, v15, 5, v14")
    a(f"v_and_b32 v15, 3, {vL}")
    a(f"v_lshl_add_u32 {vTr}, v15, 3, v14")
    a(f"v_and_b32 v14, 31, {vL}")
    a(f"v_lshrrev_b32 v15, 5, {vL}")
    a(f"v_and_b32 v96, 15, {vL}")
    a("v_xor_b32 v15, v15, v96")
    a("v_lshlrev_b32 v15, 4, v15")
    a("v_lshl_add_u32 v14, v14, 8, v15")
    a(f"v_add_u32 v96, {sLW}, v14")
    for sp in range(1, 8):
        a(f"v_xor_b32 v{96+sp}, {32*sp}, v96")
    for r in range(4):
        a(f"v_mov_b32 v{CONSTA+r}, 0xbb00bb00")
    a(f"v_and_b32 v14, 31, {vL}")
    a(f"v_lshrrev_b32 v15, 5, {vL}")
    a("v_lshlrev_b32 v15, 3, v15")
    a("v_sub_u32 v14, v14, v15")
    a("v_and_b32 v15, 1, v14")
    a("v_lshlrev_b32 v15, 4, v15")
    a("v_mov_b32 v16, 0x3f80")
    a("v_lshlrev_b32 v15, v15, v16")
    a("v_lshrrev_b32 v16, 1, v14")
    a("v_subrev_u32 v17, 8, v16")
    for (sel, src) in ((SEL0, "v16"), (SEL1, "v17")):
        for j in range(4):
            p = 60 + 2 * (j & 1)
            a(f"v_cmp_eq_u32 s[{p}:{p+1}], {j}, {src}")
            a(f"v_cndmask_b32 v{sel+j}, 0, v15, s[{p}:{p+1}]")
    for (p, val) in ((60, 0xAAAAAAAA), (62, 0xCCCCCCCC), (64, 0xF0F0F0F0), (66, 0xFF00FF00), (68, 0xFFFF0000)):
        a(f"s_mov_b32 s{p}, {hex(val)}")
        a(f"s_mov_b32 s{p+1}, {hex(val)}")
    a(f"v_and_b32 v14, 31, {vL}")
    a(f"v_lshrrev_b32 v15, 5, {vL}")
    a("v_lshlrev_b32 v15, 2, v15")
    a("v_sub_u32 v14, v14, v15")
    for r in range(16):
        a(f"v_cmp_le_i32 s[{70+2*r}:{71+2*r}], {8*(r>>2) + (r&3)}, v14")
    return I

def pass1():
    I = dma_x(0) + dma_x(1) + stamp("xissued")
    t2 = [touch_h()] if OPT.touch else []
    if OPT.early: t2 += ([touch_q()] if OPT.touch else []) + (touch_mall() if OPT.mall else [])
    later = [dma_x(2), dma_x(3), dma_w("wK", 4, "K"), t2]
    for kq in range(4):
        I.append(WaitVM(("x", kq)))
        if kq in (0, 3): I += stamp(f"x{kq}")
        for sp in range(8):
            s = 8 * kq + sp
            I.append(Ins(f"ds_read_b128 {X(s)}, v{96+sp} offset:{kq*8192}", lg=("xr", s)))
        if kq == 2:
            I.append(WaitVM("bias"))
            I += [f"v_mov_b32 v{XS+j}, v{104+j}" for j in range(4)]
        steps = []
        for sp in range(8):
            s = 8 * kq + sp
            steps.append([WaitLG(("xr", s)),
                          MFMA(vr(DMEAN, 16), vr(CONSTA, 4), X(s), vr(DMEAN, 16) if s else "0"),
                          MFMA(vr(D2, 16), X(s), X(s), vr(D2, 16) if s else "0")])
        I += place(steps, steps_for(later[kq], 0, 1), [])
    I += stamp("pass1")
    I.append("s_barrier")
    return I

def stats():
    I = []
    a = I.append
    d = lambda i: f"v{D2+i}"
    for p in range(8): a(f"v_cndmask_b32 {d(2*p)}, {d(2*p)}, {d(2*p+1)}, {sBIT0}")
    for p in range(4): a(f"v_cndmask_b32 {d(4*p)}, {d(4*p)}, {d(4*p+2)}, {sBIT1}")
    for p in range(2): a(f"v_cndmask_b32 {d(8*p)}, {d(8*p)}, {d(8*p+4)}, {sBIT3}")
    a(f"v_cndmask_b32 {d(0)}, {d(0)}, {d(8)}, {sBIT4}")
    a(f"v_mul_f32 {d(2)}, v{DMEAN}, v{DMEAN}")
    a(f"v_mov_b32 {d(1)}, {d(0)}")
    a(f"v_mov_b32 {d(3)}, 0x3b000000")
    a(f"v_permlane32_swap_b32 {d(0)}, {d(1)}")
    a(f"v_mov_b32 {d(4)}, 0x3727c5ac")
    a(f"v_cndmask_b32 {d(0)}, {d(0)}, {d(1)}, {sBIT2}")
    a(f"v_fma_f32 {d(0)}, {d(0)}, {d(3)}, -{d(2)}")
    a(f"v_max_f32 {d(0)}, 0, {d(0)}")
    a(f"v_add_f32 {d(1)}, {d(0)}, {d(4)}")
    a(f"v_rsq_f32 {vR1}, {d(1)}")
    a(f"v_mul_f32 {d(1)}, {vR1}, {vR1}")
    a(f"v_fma_f32 {d(1)}, {d(0)}, {d(1)}, {d(4)}")
    a(f"v_rsq_f32 {d(1)}, {d(1)}")
    a(f"v_mul_f32 {d(1)}, {d(1)}, {vR1}")
    a(f"v_mul_f32 {vQs}, {hex(f2u(math.log2(math.e) / 4))}, {vR1}")
    a(f"v_rcp_f32 {vKinv}, {d(1)}")
    c1 = -2 * math.log2(math.e) * math.sqrt(2 / math.pi)
    a(f"v_mul_f32 {vK1}, {hex(f2u(c1))}, {d(1)}")
    a(f"v_mul_f32 {d(2)}, {d(1)}, {d(1)}")
    a(f"v_mul_f32 {d(2)}, {d(2)}, {d(1)}")
    a(f"v_mul_f32 {vK2}, {hex(f2u(c1 * 0.044715))}, {d(2)}")
    a(f"v_mul_f32 {d(0)}, 0.5, {vKinv}")
    a(f"v_cvt_pk_bf16_f32 {d(1)}, {d(0)}, {d(0)}")
    a(f"v_cvt_pk_bf16_f32 {d(2)}, {vR1}, {vR1}")
    a(f"v_and_b32 {d(1)}, 0xffff0000, {d(1)}")
    a(f"v_and_b32 {d(2)}, 0xffff0000, {d(2)}")
    a(f"v_sub_f32 {d(1)}, {d(0)}, {d(1)}")
    a(f"v_sub_f32 {d(2)}, {vR1}, {d(2)}")
    a(f"v_cvt_pk_bf16_f32 v{BINV}, {d(0)}, {d(1)}")
    a(f"v_cvt_pk_bf16_f32 v{RFRAG}, {vR1}, {d(2)}")
    a(f"v_mov_b32 v{CHALF}, 0x3f003f00")
    for b in (BINV, RFRAG, CHALF):
        for r in range(1, 4):
            a(f"v_mov_b32 v{b+r}, 0")
    return I

def centering(at, fillers, mid):
    steps = []
    bufs = (ACC[0], ACC[1], WF)
    def cvts(j):
        buf = bufs[j % 3]
        return [f"v_cvt_pk_bf16_f32 v{XF + 8*j + q}, v{buf + 2*q}, v{buf + 2*q + 1}" for q in range(8)]
    for j in range(16):
        st = []
        buf = vr(bufs[j % 3], 16)
        st.append(MFMA(buf, vr(SEL0, 4), X(2 * j), vr(DMEAN, 16)))
        if j >= 2:
            st += cvts(j - 2)[:4]
        st.append(MFMA(buf, vr(SEL1, 4), X(2 * j + 1), buf))
        if j >= 2:
            st += cvts(j - 2)[4:]
        steps.append(st)
    I = place(steps, at, fillers, start=3, end=16)
    I += cvts(14) + mid + cvts(15)
    I += stamp("center")
    return I

AWF = 216
def wf(n): return ar(AWF + 4 * (n % 8), 4)

def tr_reads(gstep, s, addr):
    b = AWF + 4 * (gstep % 8)
    return [Ins(f"ds_read_b64_tr_b16 {ar(b, 2)}, {addr} offset:{s*1024}", lg=("w", gstep)),
            Ins(f"ds_read_b64_tr_b16 {ar(b+2, 2)}, {addr} offset:{s*1024 + 512}", lg=("w", gstep))]

def epi_scale(acc, scale, pbuf):
    I = []
    for g in range(4):
        for r in range(4 * g, 4 * g + 4):
            sc = scale(r) if callable(scale) else scale
            I.append(f"v_mul_f32 v{acc+r}, v{acc+r}, {sc}")
        I.append(f"v_cvt_pk_bf16_f32 v{pbuf+2*g}, v{acc+4*g}, v{acc+4*g+1}")
        I.append(f"v_cvt_pk_bf16_f32 v{pbuf+2*g+1}, v{acc+4*g+2}, v{acc+4*g+3}")
    return I

def st_frag(reg, soff, off, tag):
    if OPT.nost and tag in ("kv", "h"): return "s_nop 0"
    return Ins(f"buffer_store_dwordx4 {vr(reg, 4)}, {vL16}, {srd(SWS)}, {soff} offen offset:{off}{OPT.sc}", vm=tag)

def epi_k(acc):
    return epi_scale(acc, vR1, PB[0])
def st_k():
    return [st_frag(PB[0], sKV, 0, "kv"), st_frag(PB[0] + 4, sKV, 1024, "kv")]

def epi_v(acc):
    return epi_scale(acc, lambda r: f"v{DMEAN+r}", PB[1])
def st_v():
    return [st_frag(PB[1], sKV, 2048, "kv"), st_frag(PB[1] + 4, sKV, 3072, "kv")]

def epi_q(acc):
    return epi_scale(acc, vQs, QF)

def epi_h(acc, j):
    p = PB[j & 1]
    I = []
    for g in range(4):
        u = [f"v{acc + 4*g + i}" for i in range(4)]
        t = [f"v{TT + i}" for i in range(4)]
        for i in range(4): I.append(f"v_mul_f32 {t[i]}, {u[i]}, {u[i]}")
        for i in range(4): I.append(f"v_fma_f32 {t[i]}, {t[i]}, {vK2}, {vK1}")
        for i in range(4): I.append(f"v_mul_f32 {t[i]}, {u[i]}, {t[i]}")
        for i in range(4): I.append(f"v_exp_f32 {t[i]}, {t[i]}")
        for i in range(4): I.append(f"v_fma_f32 {t[i]}, {t[i]}, {vKinv}, {vKinv}")
        for i in range(4): I.append(f"v_rcp_f32 {t[i]}, {t[i]}")
        for i in range(4): I.append(f"v_mul_f32 {t[i]}, {u[i]}, {t[i]}")
        I.append(f"v_cvt_pk_bf16_f32 v{p+2*g}, {t[0]}, {t[1]}")
        I.append(f"v_cvt_pk_bf16_f32 v{p+2*g+1}, {t[2]}, {t[3]}")
    return I

def st_h(j):
    p = PB[j & 1]
    return [Group([f"s_add_u32 {sT1}, {sHo}, {j*2048}", st_frag(p + 4 * s, sT1, s * 1024, "h")]) for s in range(2)]

def stores_at(st):
    return {OPT.st1: [st[0]], OPT.st2: [st[1]]}

def bias_prep(j):
    return [f"v_lshl_or_b32 v{ABIAS}, v{XS+j}, 16, v{XS+j}"]

def run_blocks(blocks):
    I = []
    trs = (vTrA, vTrB)
    nb = len(blocks)
    I.append(WaitLG(("w", 0)))
    for bi, B in enumerate(blocks):
        addr = trs[bi & 1]
        naddr = trs[(bi + 1) & 1]
        steps = []
        accr = vr(B["acc"], 16)
        for s in range(32):
            g = 32 * bi + s
            st = []
            if s == 0 and B.get("bias") is not None:
                st.append(MFMA(accr, vr(ABIAS, 4), vr(BINV, 4), "0"))
            c = accr if (s or B.get("bias") is not None) else "0"
            if B.get("swap"):
                st.append(MFMA(accr, X(s), wf(g), c))
            else:
                st.append(MFMA(accr, wf(g), X(s), c))
            if s + 1 < 32 or bi + 1 < nb:
                st.append(WaitLG(("w", g + 1)))
            LK = OPT.lk
            if s + LK < 32:
                st += tr_reads(g + LK, s + LK, addr)
            elif bi + 1 < nb:
                if s == 32 - LK:
                    st += [WaitVM(blocks[bi + 1]["tag"]), "s_barrier"]
                st += tr_reads(g + LK, s + LK - 32, naddr)
            steps.append(st)
        fill = list(B.get("fill", []))
        if bi + 1 < nb:
            fill = [f"v_add_u32 {naddr}, {blocks[bi+1]['slot']*SLOT}, {vTr}"] + fill
        I += place(steps, B.get("at", {}), fill, start=B.get("fstart", 2), end=OPT.fend)
        I += stamp(f"blk{bi}" if B["name"] != "Q" else "blkQ")
    return I

def touch_mall():
    return [Group([f"v_and_b32 {vTmp}, 15, {vL}", f"v_lshlrev_b32 {vTmp}, 7, {vTmp}",
                   f"s_lshl_b32 {sT2}, s2, 2", f"s_add_u32 {sT2}, {sT2}, {sW}", f"s_lshl_b32 {sT2}, {sT2}, 11",
                   Ins(f"buffer_load_dword a251, {vTmp}, {srd(SW2)}, {sT2} offen", vm="t5")]),
            Group([f"v_and_b32 {vTmp}, 3, {vL}", f"v_lshlrev_b32 {vTmp}, 7, {vTmp}",
                   f"s_lshl_b32 {sT2}, s2, 2", f"s_add_u32 {sT2}, {sT2}, {sW}", f"s_lshl_b32 {sT2}, {sT2}, 9",
                   Ins(f"buffer_load_dword a250, {vTmp}, {srd(SWO)}, {sT2} offen", vm="t6")])]

def sched(*entries):
    at = {}
    for items, g0, stride in entries:
        for n, it in enumerate(items):
            at.setdefault(g0 + int(n * stride), []).append(it)
    return at

def sub_at(at, lo, hi):
    return {g - lo: v for g, v in at.items() if lo <= g < hi}

def phase1(variant):
    O = OPT
    I = []
    I += prologue()
    I += setup_idle()
    I += pass1()
    first = [WaitVM("wK"), "s_barrier", f"v_add_u32 {vTrA}, {4*SLOT}, {vTr}"]
    for s in range(OPT.lk):
        first += tr_reads(s, s, vTrA)
    A, B_ = ACC
    flag_kv = flag_store([f"s_lshl_b32 {sT1}, {sNB}, 8", f"s_lshl_b32 {sT2}, {sKT}, 2", f"s_add_u32 {sT1}, {sT1}, {sT2}",
                          f"s_add_u32 {sT1}, {sT1}, {WS_FKV}"], "fkv", "kv")
    st = O.wst / 10
    E = [(dma_w("wV", 0, "V"), O.gV, O.gVs / 10),
         (dma_w("wH0", 1, "H", 0), O.gH0, st), (dma_w("wH1", 2, "H", 1), O.gH1, st), (dma_w("wH2", 3, "H", 2), O.gH2, st)]
    tq = ([touch_q()] if O.touch else []) + (touch_mall() if O.mall else [])
    if not O.early: E.append((tq, O.gTq, 1))
    def S(stl, b): return [([stl[0]], 32 * b + O.st1, 1), ([stl[1]], 32 * b + O.st2, 1)]
    E += S(st_k(), 1) + S(st_v(), 2) + S(st_h(0), 3) + S(st_h(1), 4) + S(st_h(2), 5)
    E.append(([flag_kv], O.gFkv, 1))
    E.append((poll_kv_issue(), O.gPkv, 1))
    if variant == 0:
        E += [(dma_w("wH3", 0, "H", 3), O.gH3, st), (dma_w("wQ", 4, "Q"), O.gQ0, st)] + S(st_h(3), 6)
    else:
        E += [(dma_w("wQ", 4, "Q"), O.gH3, st)]
    ck, ld = kv_stage(variant)
    E += [(ck, O.gKv, 1), (ld, O.gKv + 1, O.kst / 10)]
    if O.touch:
        E.append(([touch_wo()], O.gTwo, 1))
    at = sched(*E)
    I += centering(merge_at(sub_at(at, -16, 0), {1: ["s_nop 2"]}), stats(), first)
    zero_abias = [f"v_mov_b32 v{ABIAS+r}, 0" for r in range(1, 4)]
    tagcalc = [WaitVM("E"),
               Group([f"v_readfirstlane_b32 {sTAG}, {vTag}",
                      f"s_mul_i32 {sTAG}, {sTAG}, 0x41c64e6d", f"s_add_u32 {sTAG}, {sTAG}, 0x3039"]),
               f"v_mov_b32 {vTag}, {sTAG}"]
    rt = [MFMA(vr(DMEAN, 16), vr(RFRAG, 4), vr(CHALF, 4), "0")]
    blocks = [
        dict(name="K", slot=4, acc=A, tag="wK", fill=rt + zero_abias + tagcalc, fstart=0),
        dict(name="V", slot=0, acc=B_, swap=True, tag="wV", fill=epi_k(A) + bias_prep(0)),
        dict(name="H0", slot=1, acc=A, bias=0, tag="wH0", fill=epi_v(B_) + bias_prep(1) + mask_regs()),
        dict(name="H1", slot=2, acc=B_, bias=1, tag="wH1", fill=epi_h(A, 0) + bias_prep(2)),
    ]
    if variant == 0:
        blocks += [
            dict(name="H2", slot=3, acc=A, bias=2, tag="wH2", fill=epi_h(B_, 1) + bias_prep(3) + kv_prep()),
            dict(name="H3", slot=0, acc=B_, bias=3, tag="wH3", fill=epi_h(A, 2)),
            dict(name="Q", slot=4, acc=A, tag="wQ", fill=epi_h(B_, 3))]
        qacc = A
    else:
        blocks += [
            dict(name="H2", slot=3, acc=A, bias=2, tag="wH2", fill=epi_h(B_, 1) + kv_prep()),
            dict(name="Q", slot=4, acc=B_, tag="wQ", fill=epi_h(A, 2))]
        qacc = B_
    for bi, B in enumerate(blocks):
        B["at"] = sub_at(at, 32 * bi, 32 * bi + 32)
    assert max(at) < 32 * len(blocks), max(at)
    I += run_blocks(blocks)
    I += [WaitVM("kvs"), "s_barrier"]
    I += att_first_reads() + epi_q(qacc)
    return I

VA = 124
vKa = "v3"
MM = 88
SBUF = (16, 32)
SDIAG = 64
PBUF = (96, 104)
PFAR = 80
OACC = (48, 64)
OPK = (16, 20)
cold = []

def mask_regs():
    I = [f"s_mov_b32 {sT2}, 0xffff"]
    for j in range(8):
        I += [f"v_cndmask_b32 v{MM+j}, 0, -1, s[{70+4*j}:{71+4*j}]",
              f"v_cndmask_b32 {vTmp}, 0, -1, s[{72+4*j}:{73+4*j}]",
              f"v_bfi_b32 v{MM+j}, {sT2}, v{MM+j}, {vTmp}"]
    return [I[0]] + [Group(I[1+3*j:4+3*j]) for j in range(8)]

def poll(tag, voff, soff, res=vPollR):
    return Ins(f"buffer_load_dword {res}, {voff}, {srd(SWS)}, {soff} offen sc1", vm=tag)

def poll_check(tag, voff, soff_setup, soff, name, res=vPollR, pre=()):
    cold.extend([Raw(f"L_spin_{name}:")] + [Ins(x) if isinstance(x, str) else x for x in pre] +
                [Ins(f"s_mov_b32 {sT3}, 0x4000"), Raw(f"L_spin2_{name}:")] +
                [Ins(x) for x in soff_setup] +
                [Ins(f"buffer_load_dword {res}, {voff}, {srd(SWS)}, {soff} offen sc1"),
                 Ins("s_waitcnt vmcnt(0)"),
                 Ins(f"v_cmp_ne_u32 vcc, {sTAG}, {res}"),
                 Ins("s_nop 0"),
                 Ins(f"s_cbranch_vccz L_back_{name}"),
                 Ins(f"s_sub_u32 {sT3}, {sT3}, 1"),
                 Ins(f"s_cmp_lg_u32 {sT3}, 0"),
                 Ins(f"s_cbranch_scc1 L_spin2_{name}"),
                 Ins(f"s_branch L_back_{name}")])
    return Group([WaitVM(tag), f"v_cmp_ne_u32 vcc, {sTAG}, {res}", "s_nop 0",
                  f"s_cbranch_vccnz L_spin_{name}", Raw(f"L_back_{name}:")])

KV_SOFF = [f"s_lshl_b32 {sT2}, {sNB}, 8", f"s_add_u32 {sT2}, {sT2}, {WS_FKV}"]
def poll_kv_issue():
    return [Group([f"v_min_u32 {vPoll}, 11, {vL}", f"s_lshl_b32 {sT2}, {sMB}, 2", f"s_sub_u32 {sT2}, {sT2}, 8",
                   f"v_add_u32 {vPoll}, {sT2}, {vPoll}", f"v_max_i32 {vPoll}, 0, {vPoll}", f"v_lshlrev_b32 {vPoll}, 2, {vPoll}"]
                  + KV_SOFF + [poll("pkv", vPoll, sT2)])]

def kv_prep():
    I = [f"s_mul_i32 {sT2}, {sW}, {KVR}", f"s_add_u32 {sT2}, {sT2}, {KVL}", f"v_add_u32 {vKa}, {sT2}, {vL16}",
         f"v_add_u32 v{VA}, 2048, {vKa}", f"v_add_u32 v{VA+1}, 3072, {vKa}",
         f"s_add_u32 {sT2}, {sT2}, 4096", f"v_mov_b32 {vTmp}, {sT2}"]
    I = [Group(I),
         f"v_cndmask_b32 v{VA+2}, {vTmp}, v{VA}, {sBIT4}", f"v_cndmask_b32 v{VA+3}, {vTmp}, v{VA+1}, {sBIT4}",
         f"v_cndmask_b32 v{VA}, v{VA}, {vTmp}, {sBIT4}", f"v_cndmask_b32 v{VA+1}, v{VA+1}, {vTmp}, {sBIT4}",
         Group([f"s_lshl_b32 {sT2}, {sNB}, 6", f"s_lshl_b32 {sT3}, {sMB}, 2", f"s_add_u32 {sT2}, {sT2}, {sT3}",
                f"s_mul_i32 {sT3}, {sW}, 3", f"s_add_u32 {sT2}, {sT2}, {sT3}", f"s_lshl_b32 {sKVL}, {sT2}, 12",
                f"s_add_u32 {sKVL}, {sKVL}, {WS_KV - 8*REC}",
                f"s_mul_i32 s17, {sW}, {3*KVR}"])]
    return I

def kv_stage(variant):
    ones = Group([f"v_mov_b32 v{TT+r}, 0x3f803f80" for r in range(0)] +
                 [f"v_min_u32 {vTmp}, 11, {vL}", f"s_movk_i32 {sT2}, {KVR}", f"v_mul_u32_u24 {vTmp}, {sT2}, {vTmp}",
                  f"v_add_u32 {vTmp}, {KVL + 4096}, {vTmp}", f"v_mov_b32 {vPollR}, 0x3f803f80",
                  Ins(f"ds_write2_b32 {vTmp}, {vPollR}, {vPollR} offset0:0 offset1:1", lg="ones"),
                  Ins(f"ds_write2_b32 {vTmp}, {vPollR}, {vPollR} offset0:2 offset1:3", lg="ones")])
    L = []
    for q in range(3):
        for u in range(4):
            pre = [f"s_add_u32 m0, s17, {KVL + q*KVR}", f"s_add_u32 s18, {sKVL}, {q*REC}"] if u == 0 else []
            L.append(Group(pre + [Ins(f"buffer_load_dwordx4 {vL16}, {srd(SWS)}, s18 offen offset:{u*1024}{OPT.sc} lds", vm="kvs")]))
    return [Group([poll_check("pkv", vPoll, KV_SOFF, sT2, f"kv{variant}"), ones])], (L if not OPT.nokv else [])

def rdK(t, hh):
    return Ins(f"ds_read_b128 {aK(t, hh)}, {vKa} offset:{t*KVR + hh*1024}", lg=("k", t, hh))
def rdV(t, s, hh):
    return Ins(f"ds_read_b128 {aV(t, s, hh)}, v{VA + 2*hh + s} offset:{t*KVR}", lg=("v", t, hh))

def att_first_reads():
    return [rdK(0, 0), rdK(8, 0), rdK(1, 0), rdK(2, 0)]

def att_reads():
    L = []
    V = lambda t, hh: [rdV(t, 0, hh), rdV(t, 1, hh)]
    L += V(0, 0) + V(8, 0) + [rdK(3, 0)] + V(1, 0) + [rdK(4, 0)] + V(2, 0) + [rdK(5, 0)] + V(3, 0) + [rdK(6, 0)]
    L += V(4, 0) + [rdK(7, 0)] + V(5, 0) + V(6, 0) + V(7, 0)
    L += [rdK(0, 1), rdK(8, 1), rdK(1, 1)] + V(0, 1) + V(8, 1) + [rdK(2, 1)]
    for t in range(1, 8):
        L += V(t, 1) + ([rdK(t + 2, 1)] if t + 2 <= 7 else [])
    return L

def zero_invalid():
    C = [Raw("L_zero:")]
    C += [Ins(x.text) for x in att_reads()]
    C += [Ins("s_waitcnt lgkmcnt(0)"), Ins("v_mov_b32 v15, 0")]
    for t in range(8):
        C += [Ins(f"s_add_u32 {sT2}, {sKT}, {t}"), Ins(f"s_cmp_ge_u32 {sT2}, 8"), Ins("s_cbranch_scc1 L_zero_done")]
        regs = [AK + 8*t + i for i in range(8)] + [AV + 16*t + i for i in range(16)]
        C += [Ins(f"v_accvgpr_write_b32 a{r}, v15") for r in regs]
    C += [Raw("L_zero_done:"), Ins("s_nop 1"), Ins("s_branch L_att_noread")]
    cold.extend(C)
    return [f"s_cmp_lt_u32 {sKT}, 8", "s_cbranch_scc1 L_zero"]

def fallback(hh):
    S, P, M, T = 24, 96, 40, 41
    O = OACC[hh]; Q = vr(QF + 4*hh, 4)
    C = [Raw(f"L_fb{hh}:"), Ins("s_nop 15"), Ins(f"v_mov_b32 v{M}, 0xff800000"), Ins(f"v_mov_b32 v{T+1}, 0xff800000")]
    def scores(t):
        c = [Ins(MFMA(vr(S, 16), aK(t, hh), Q, "0")), Ins("s_nop 15")]
        if t == 8:
            c += [Ins(f"v_cndmask_b32 v{S+r}, v{T+1}, v{S+r}, s[{70+2*r}:{71+2*r}]") for r in range(16)]
        if t == 0:
            c += [Ins(f"v_cndmask_b32 v{S+r}, v{S+r}, v{T+1}, s[{70+2*r}:{71+2*r}]") for r in range(16)]
        return c
    def guard(t, lab):
        if t == 8: return []
        return [Ins(f"s_add_u32 {sT2}, {sKT}, {t}"), Ins(f"s_cmp_lt_u32 {sT2}, 8"), Ins(f"s_cbranch_scc1 {lab}")]
    for t in range(9):
        lab = f"L_fb{hh}_a{t}"
        C += guard(t, lab) + scores(t)
        C += [Ins(f"v_max3_f32 v{M}, v{M}, v{S+2*j}, v{S+2*j+1}") for j in range(8)]
        C.append(Raw(lab + ":"))
    C += [Ins(f"v_mov_b32 v{T}, v{M}"), Ins("s_nop 1"), Ins(f"v_permlane32_swap_b32 v{M}, v{T}"), Ins("s_nop 1"),
          Ins(f"v_max_f32 v{M}, v{M}, v{T}")]
    C += [Ins(f"v_mov_b32 v{O+r}, 0") for r in range(16)]
    for t in range(9):
        lab = f"L_fb{hh}_b{t}"
        C += guard(t, lab) + scores(t)
        C += [Ins(f"v_sub_f32 v{S+r}, v{S+r}, v{M}") for r in range(16)]
        C += [Ins(f"v_exp_f32 v{S+r}, v{S+r}") for r in range(16)]
        C += [Ins("s_nop 0")]
        C += [Ins(f"v_cvt_pk_bf16_f32 v{P+j}, v{S+2*j}, v{S+2*j+1}") for j in range(8)]
        C += [Ins("s_nop 1")]
        for s in range(2):
            C.append(Ins(MFMA(vr(O, 16), aV(t, s, hh), vr(P + 4*s, 4), vr(O, 16))))
        C += [Ins("s_nop 7"), Raw(lab + ":")]
    C += [Ins("s_nop 15"), Ins(f"s_branch L_fb{hh}_back")]
    cold.extend(C)

def att_final(hh):
    O = OACC[hh]
    ol, ll = (O, O + 8) if hh == 0 else (O + 8, O)
    pk = OPK[hh]
    fallback(hh)
    I = [Group([f"v_subrev_u32 {vTmp}, 0x2b800000, v{ll}", f"v_cmp_lt_u32 vcc, 0x28000000, {vTmp}", "s_nop 0",
                f"s_cbranch_vccnz L_fb{hh}", Raw(f"L_fb{hh}_back:")]),
         f"v_rcp_f32 {vTmp}, v{ll}"]
    I += [f"v_mul_f32 v{ol+r}, v{ol+r}, {vTmp}" for r in range(8)]
    I += [f"v_cvt_pk_bf16_f32 v{pk+j}, v{ol+2*j}, v{ol+2*j+1}" for j in range(4)]
    I.append(Group([f"s_lshl_b32 {sT1}, {sKT}, 5", f"s_lshl_b32 {sT2}, {sNB}, 1", f"s_add_u32 {sT1}, {sT1}, {sT2}",
                    f"s_lshl_b32 {sT1}, {sT1}, 10", f"s_add_u32 {sT1}, {sT1}, {WS_O}",
                    Ins(f"buffer_store_dwordx4 {vr(pk, 4)}, {vL16}, {srd(SWS)}, {sT1} offen offset:{hh*1024}{OPT.sc}", vm="o")]))
    return I

def flag_store(idx_setup, tag, wait):
    return Group([WaitVM(wait)] + idx_setup + ["s_mov_b64 exec, 1",
                  Ins(f"buffer_store_dword {vTag}, off, {srd(SWS)}, {sT1} sc0 sc1", vm=tag),
                  "s_mov_b64 exec, -1"])

def flag_kt_nb(base):
    return [f"s_lshl_b32 {sT1}, {sKT}, 6", f"s_lshl_b32 {sT2}, {sNB}, 2", f"s_add_u32 {sT1}, {sT1}, {sT2}",
            f"s_add_u32 {sT1}, {sT1}, {base}"]

def attention(extra, reads):
    W = WaitLG if reads else (lambda *a: None)
    def s_mfma(G):
        hh, g = divmod(G, 8)
        Q = vr(QF + 4*hh, 4)
        b = vr(SBUF[G & 1], 16)
        if g == 0:
            return [[W(("k", 0, hh)), MFMA(b, aK(0, hh), Q, "0")],
                    [W(("k", 8, hh)), MFMA(vr(SDIAG, 16), aK(8, hh), Q, "0")]]
        return [[W(("k", g, hh)), MFMA(b, aK(g, hh), Q, "0")]]
    def pv(G):
        hh, g = divmod(G, 8)
        O = vr(OACC[hh], 16)
        P = PBUF[G & 1]
        if g == 0:
            return [[W(("v", 0, hh)), MFMA(O, aV(0, 0, hh), vr(PFAR, 4), "0")],
                    [MFMA(O, aV(0, 1, hh), vr(PFAR + 4, 4), O)],
                    [W(("v", 8, hh)), MFMA(O, aV(8, 0, hh), vr(P, 4), O)],
                    [MFMA(O, aV(8, 1, hh), vr(P + 4, 4), O)]]
        return [[W(("v", g, hh)), MFMA(O, aV(g, 0, hh), vr(P, 4), O)],
                [MFMA(O, aV(g, 1, hh), vr(P + 4, 4), O)]]
    I = []
    for m in s_mfma(0): I += m
    for G in range(16):
        hh, g = divmod(G, 8)
        S, P = SBUF[G & 1], PBUF[G & 1]
        mf = (s_mfma(G + 1) if G < 15 else []) + (pv(G - 1) if G > 0 else [])
        chunks = []
        if g == 0:
            cn = [f"v_cndmask_b32 v{S+r}, v{S+r}, v{SDIAG+r}, s[{70+2*r}:{71+2*r}]" for r in range(16)]
            chunks += [cn[0:4], cn[4:8], cn[8:12], cn[12:16]]
        for q in range(4):
            c = [f"v_exp_f32 v{S+4*q+i}, v{S+4*q+i}" for i in range(4)]
            if q > 0:
                c += [f"v_cvt_pk_bf16_f32 v{P+2*q-2}, v{S+4*q-4}, v{S+4*q-3}", f"v_cvt_pk_bf16_f32 v{P+2*q-1}, v{S+4*q-2}, v{S+4*q-1}"]
            chunks.append(c)
        chunks.append([f"v_cvt_pk_bf16_f32 v{P+6}, v{S+12}, v{S+13}", f"v_cvt_pk_bf16_f32 v{P+7}, v{S+14}, v{S+15}"])
        if g == 0:
            chunks.append([f"v_bfi_b32 v{PFAR+j}, v{MM+j}, 0, v{P+j}" for j in range(8)])
            chunks.append([f"v_and_b32 v{P+j}, v{MM+j}, v{P+j}" for j in range(8)])
        ex = list(extra.get(G, []))
        k = 0
        for ci, c in enumerate(chunks):
            if k < len(mf):
                I += mf[k]; k += 1
            I += c
            if ex and ci < len(chunks) - 1:
                n = -(-len(ex) // (len(chunks) - 1 - ci))
                I += ex[:n]; ex = ex[n:]
        while k < len(mf):
            I += mf[k]; k += 1
        I += ex
        if OPT.gst and G in (0, 1, 2, 3, 5, 7, 8, 9, 11, 13): I += stamp(f"g{G}", True)
    for m in pv(15): I += m
    return I

SIG = [0, 3, 4, 1, 2, 0, 3, 4, 1]
EXS = 2
vW2 = "v2"
ACB = (16, 32); ACS = (64, 128)
W3 = ((48, 52), (56, 60), (96, 100), (104, 108), (112, 116), (80, 84))
T3L = ("v8", "v9")
T3 = (("v5", "v6"), ("v11", "v7"))
vXo = "v3"
XR = 168
RX = 176
CQ = 88

def w2_prep():
    return [f"v_lshrrev_b32 {vTmp}, 3, {vL}", f"v_lshlrev_b32 {vTmp}, 10, {vTmp}",
            f"v_bfe_u32 {vW2}, {vL}, 4, 1", f"v_lshlrev_b32 {vW2}, 2, {vW2}",
            f"v_xor_b32 {vW2}, {vW2}, {vL}", f"v_and_b32 {vW2}, 7, {vW2}",
            f"v_lshl_add_u32 {vW2}, {vW2}, 4, {vTmp}"]

def rot_prep():
    rot = [f"s_and_b32 {sT2}, {sNB}, 7", f"s_and_b32 {sT3}, {sMB}, 3", f"s_lshl_b32 {sT3}, {sT3}, 1", f"s_add_u32 {sPaW}, {sT2}, {sT3}",
           f"s_cmp_ge_u32 {sPaW}, 7", f"s_cselect_b32 {sT2}, 7, 0", f"s_sub_u32 {sPaW}, {sPaW}, {sT2}"]
    if not OPT.rot:
        rot = [f"s_mov_b32 {sPaW}, 0"]
    return rot + [f"s_mov_b32 {sPaH}, {sPaW}",
                  f"s_lshr_b32 {sT2}, {sW}, 1", f"s_mul_i32 {sW2B}, {sT2}, 917504", f"s_lshl_b32 {sWOB}, {sT2}, 18",
                  f"s_and_b32 {sT2}, {sW}, 1", f"s_lshl_b32 {sT2}, {sT2}, 16",
                  f"s_add_u32 {sW2B}, {sW2B}, {sT2}", f"s_add_u32 {sWOB}, {sWOB}, {sT2}",
                  f"s_and_b32 {sT2}, {sNB}, 7", f"s_lshl_b32 {sT2}, {sT2}, 7",
                  f"s_add_u32 {sW2B}, {sW2B}, {sT2}", f"s_add_u32 {sWOB}, {sWOB}, {sT2}"]

def advance(pa):
    return [f"s_add_u32 {pa}, {pa}, 1", f"s_cmp_eq_u32 {pa}, 7", f"s_cselect_b32 {pa}, 0, {pa}"]

def stage_base(p):
    return [f"s_add_u32 {sWr}, {sPaW}, {p}", f"s_cmp_ge_u32 {sWr}, 7", f"s_cselect_b32 {sT3}, 7, 0", f"s_sub_u32 {sWr}, {sWr}, {sT3}",
            f"s_lshl_b32 {sWr}, {sWr}, 17", f"s_add_u32 {sWr}, {sWr}, {sW2B}"]

SG = 128
def sg_reg(p, n): return SG + 32 * (p - 5) + 4 * n

def dma_stage(p):
    I = []
    if OPT.nostage: return I
    for jj in range(4):
        for half in range(2):
            n = 2 * jj + half
            pre = []
            if p <= 6:
                base, s, c = sWr, SW2, (16 * jj + 8 * half) * 1024
                if n == 0: pre = stage_base(p)
            else:
                base, s, c = sWOB, SWO, (16 * (8 * (p - 7) + jj) + 8 * half) * 1024
            if p <= 4 or not OPT.v2:
                I.append(Group(pre + [f"s_add_u32 m0, {sLD}, {SIG[p]*SLOT + jj*2048 + half*1024}",
                                      f"s_add_u32 {sT0}, {base}, {c}",
                                      Ins(f"buffer_load_dwordx4 {vW2}, {srd(s)}, {sT0} offen lds", vm=("st", p))]))
            else:
                I.append(Group(pre + [f"s_add_u32 {sT0}, {base}, {c}",
                                      Ins(f"buffer_load_dwordx4 {vr(sg_reg(p, n), 4)}, {vW2}, {srd(s)}, {sT0} offen", vm=("sg", p))]))
    return I

def write_stage(p):
    I = [Group([WaitVM(("sg", p)), f"s_add_u32 {sT2}, {sLD}, {SIG[p]*SLOT}", f"v_add_u32 v4, {sT2}, {vL16}"])]
    for n in range(8):
        I.append(Ins(f"ds_write_b128 v4, {vr(sg_reg(p, n), 4)} offset:{n*1024}", lg=("sw", p)))
    return I

def p3_prep():
    I = [Group([f"s_lshr_b32 {sT2}, {sNB}, 3", f"s_lshl_b32 {sT2}, {sT2}, 1", f"s_and_b32 {sT3}, {sW}, 1",
                f"s_add_u32 {sT2}, {sT2}, {sT3}", f"s_lshl_b32 {sT3}, {sMB}, 2", f"s_add_u32 {sT2}, {sT2}, {sT3}",
                f"s_lshr_b32 {sT3}, {sW}, 1",
                f"s_mul_i32 {sH3}, {sT2}, 112", f"s_mul_i32 {sO3}, {sT3}, 56", f"s_add_u32 {sH3}, {sH3}, {sO3}",
                f"s_lshl_b32 {sH3}, {sH3}, 10", f"s_add_u32 {sH3}, {sH3}, {WS_H}",
                f"s_lshl_b32 {sO3}, {sT2}, 5", f"s_lshl_b32 {sF3}, {sT3}, 4", f"s_add_u32 {sO3}, {sO3}, {sF3}",
                f"s_lshl_b32 {sO3}, {sO3}, 10", f"s_add_u32 {sO3}, {sO3}, {WS_O}",
                f"s_lshl_b32 {sF3}, {sT2}, 6", f"s_lshl_b32 {sX3}, {sT3}, 5", f"s_add_u32 {sF3}, {sF3}, {sX3}",
                f"s_lshl_b32 {sX3}, {sT2}, 15", f"s_and_b32 {sT2}, {sNB}, 7", f"s_lshl_b32 {sT2}, {sT2}, 7",
                f"s_add_u32 {sX3}, {sX3}, {sT2}", f"s_lshl_b32 {sT3}, {sT3}, 6", f"s_add_u32 {sX3}, {sX3}, {sT3}"])]
    a = I.append
    a(f"v_lshrrev_b32 {T3L[0]}, 5, {vL}")
    a(f"v_lshlrev_b32 {T3L[0]}, 2, {T3L[0]}")
    a(f"v_bfe_u32 {vTmp}, {vL}, 2, 2")
    a(f"v_add_u32 {T3L[0]}, {T3L[0]}, {vTmp}")
    a(f"v_lshlrev_b32 {T3L[0]}, 7, {T3L[0]}")
    a(f"v_bfe_u32 {vTmp}, {vL}, 4, 1")
    a(f"v_lshlrev_b32 {vTmp}, 1, {vTmp}")
    a(f"v_bfe_u32 {T3L[1]}, {vL}, 1, 1")
    a(f"v_add_u32 {vTmp}, {vTmp}, {T3L[1]}")
    a(f"v_bfe_u32 {T3L[1]}, {vL}, 3, 1")
    a(f"v_lshl_add_u32 {vTmp}, {T3L[1]}, 2, {vTmp}")
    a(f"v_lshl_add_u32 {T3L[0]}, {vTmp}, 4, {T3L[0]}")
    a(f"v_and_b32 {vTmp}, 1, {vL}")
    a(f"v_lshl_add_u32 {T3L[0]}, {vTmp}, 3, {T3L[0]}")
    a(Group([f"s_lshr_b32 {sT3}, {sW}, 1", f"s_lshl_b32 {sT2}, {sT3}, 6", f"s_lshl_b32 {sT3}, {sT3}, 14",
             f"v_xor_b32 {T3L[0]}, {sT2}, {T3L[0]}", f"v_add_u32 {T3L[0]}, {sT3}, {T3L[0]}"]))
    a(f"v_xor_b32 {T3L[1]}, 64, {T3L[0]}")
    a(f"v_and_b32 {vPoll}, 7, {vL}")
    a(f"v_lshlrev_b32 {vPoll}, 2, {vPoll}")
    a(Group([f"v_and_b32 {vTmp}, 31, {vL}", f"v_lshlrev_b32 {vTmp}, 1, {vTmp}",
             f"s_and_b32 {sT2}, {sNB}, 7", f"s_lshl_b32 {sT2}, {sT2}, 7", f"s_lshr_b32 {sT3}, {sW}, 1",
             f"s_lshl_b32 {sT3}, {sT3}, 6", f"s_add_u32 {sT2}, {sT2}, {sT3}",
             Ins(f"buffer_load_ushort v10, {vTmp}, {srd(SB2)}, {sT2} offen", vm="b2")]))
    return I

def x_resid():
    I = [Group([f"v_and_b32 {vXo}, 31, {vL}", f"v_lshlrev_b32 {vXo}, 10, {vXo}", f"v_lshrrev_b32 {vTmp}, 5, {vL}",
                f"v_lshl_add_u32 {vXo}, {vTmp}, 3, {vXo}"])]
    for q in range(4):
        I.append(Ins(f"buffer_load_dwordx2 {vr(XR + 2*q, 2)}, {vXo}, {srd(SX)}, {sX3} offen offset:{16*q}", vm="xr"))
    return I

FH_SOFF = [f"s_add_u32 {sT2}, {sF3}, {WS_FH}"]
FO_SOFF = [f"s_add_u32 {sT2}, {sF3}, {WS_FO}"]

def frag_reg(k):
    if k < 56: return 4*k
    j = k - 56
    return 224 + 4*j if j < 8 else 4*(j - 8)

def frag_load(k):
    pre = []
    if k < 56:
        j8 = k & 7
        if j8 == 0:
            pre = [f"s_lshl_b32 {sHr}, {sPaH}, 13", f"s_add_u32 {sHr}, {sHr}, {sH3}"] + advance(sPaH) + [f"s_mov_b32 {sT1}, {sHr}"]
        elif j8 == 4:
            pre = [f"s_add_u32 {sT1}, {sHr}, 4096"]
        else:
            pre = [f"s_add_u32 {sT1}, {sHr}, {4096 * (j8 >> 2)}"]
    else:
        j = k - 56
        pre = [f"s_add_u32 {sT1}, {sO3}, {(j >> 2)*4096}"]
    if OPT.nohl: return Group(pre)
    return Group(pre + [Ins(f"buffer_load_dwordx4 {ar(frag_reg(k), 4)}, {vL16}, {srd(SWS)}, {sT1} offen offset:{(k & 3)*1024}{OPT.hsc}", vm=("f", k))])

def p3_reads(k):
    p, j8 = divmod(k, 8)
    I = []
    for j in range(2):
        b = W3[k % 6][j]; ad = T3[p & 1][j]
        I += [Ins(f"ds_read_b64_tr_b16 {vr(b, 2)}, {ad} offset:{j8*2048}", lg=("w3", k)),
              Ins(f"ds_read_b64_tr_b16 {vr(b+2, 2)}, {ad} offset:{j8*2048 + 1024}", lg=("w3", k))]
    return I

def t3_set(p):
    return [f"v_add_u32 {T3[p & 1][j]}, {SIG[p]*SLOT}, {T3L[j]}" for j in range(2)]

def phase3():
    LA = OPT.la
    I = []
    for k in range(LA):
        I.append(frag_load(k))
    I.append(flag_store(flag_kt_nb(WS_FO), "fo", "o"))
    I += [f"v_mov_b32 v{CQ}, 0x3e803e80"] + [f"v_mov_b32 v{CQ+r}, 0" for r in range(1, 4)]
    I += [WaitVM("b2"), f"v_lshl_or_b32 v{ABIAS}, v10, 16, v10"]
    I += t3_set(0)
    I += [WaitVM(*[("st", p) for p in range(5)]), "s_barrier"]
    I += stamp("p3start", 2)
    I += [MFMA(vr(ACB[0], 16), vr(ABIAS, 4), vr(CQ, 4), "0")]
    for k in range(OPT.lk3):
        I += p3_reads(k)
    steps = []
    LK = OPT.lk3
    fills = {k: [] for k in range(72)}
    I += [WaitVM(("f", 0)), WaitLG(("w3", 0))]
    for k in range(72):
        p, j8 = divmod(k, 8)
        acc = ACB if p <= 6 else ACS
        st = []
        for j in range(2):
            first = (k == 0 and j == 1) or k == 56
            st.append(MFMA(vr(acc[j], 16), vr(W3[k % 6][j], 4), ar(frag_reg(k), 4), "0" if first else vr(acc[j], 16)))
            if j == 0:
                if k + 1 < 72:
                    st.append(WaitLG(("w3", k + 1)))
                if k + LK < 72:
                    k2 = k + LK
                    if k2 % 8 == 0:
                        p2 = k2 // 8
                        if p2 >= 2:
                            st += ([WaitLG(("sw", p2)) if OPT.v2 else WaitVM(("st", p2))] if p2 >= 5 else []) + ([] if OPT.nobar else ["s_barrier"])
                    st += p3_reads(k2)[:2]
            else:
                if k + 1 < 72 and not OPT.nowait:
                    st.append(WaitVM(("f", k + 1)))
                if k + LK < 72:
                    st += p3_reads(k + LK)[2:]
        if j8 == 1 and p + 1 <= 8:
            st += t3_set(p + 1)
        steps.append(st)
    for k in range(LA, 72):
        kk = k - LA
        if k >= 56:
            kk = max(kk, OPT.kco)
        fills[kk].append(frag_load(k))
    for p2 in range(2, 6):
        d = write_stage(p2 + 3) if OPT.v2 else dma_stage(p2 + 3)
        for n, g in enumerate(d):
            fills[8 * p2 - LK + min(n, 8) - (1 if n == 8 else 0)].append(g)
    fills[OPT.kpo].insert(0, Group(FO_SOFF + [poll("po", vPoll, sT2)]))
    fills[OPT.kco].insert(0, poll_check("po", vPoll, FO_SOFF, sT2, "o"))
    for n, g in enumerate(x_resid()):
        fills[58 + n].append(g)
    for k in range(72):
        I += steps[k] + fills[k]
        if k in (0, 7, 27, 41, 55, 56, 71) and not OPT.gst: I += stamp(f"k{k}", 2)
    ex = EXS * SLOT
    I += [f"v_add_u32 v5, {sLD}, {vL16}", f"s_xor_b32 {sT2}, {sLD}, 16384", f"v_add_u32 v6, {sT2}, {vL16}",
          f"v_add_u32 v5, {ex}, v5", f"v_add_u32 v6, {ex}, v6"]
    for q in range(4):
        I.append(Ins(f"ds_write_b128 v5, {vr(ACB[1] + 4*q, 4)} offset:{q*1024}", lg="exw"))
    for q in range(4):
        I.append(Ins(f"ds_write_b128 v5, {vr(ACS[1] + 4*q, 4)} offset:{4096 + q*1024}", lg="exw"))
    I += [WaitLG("exw"), "s_barrier"]
    for q in range(8):
        I.append(Ins(f"ds_read_b128 {vr(RX + 4*q, 4)}, v6 offset:{q*1024}", lg=("exr", q)))
    I += stamp("exch", 2)
    B0, S0 = ACB[0], ACS[0]
    I += [WaitVM("xr"), f"s_mov_b32 {sT3}, 0xffff0000", f"v_mov_b32 v10, {hex(f2u(-math.log2(math.e)))}"]
    T = 208
    for q in range(4):
        r = [4*q + i for i in range(4)]
        I.append(WaitLG(("exr", q)))
        for i in r: I.append(f"v_add_f32 v{B0+i}, v{B0+i}, v{RX+i}")
        for i in range(4): I.append(f"v_mul_f32 v{T+i}, v10, v{B0+r[i]}")
        for i in range(4): I.append(f"v_exp_f32 v{T+i}, v{T+i}")
        I.append(WaitLG(("exr", 4 + q)))
        for i in r: I.append(f"v_add_f32 v{S0+i}, v{S0+i}, v{RX+16+i}")
        for i in range(4): I.append(f"v_add_f32 v{T+i}, 1.0, v{T+i}")
        for i in range(4): I.append(f"v_rcp_f32 v{T+i}, v{T+i}")
        for i in r: I.append(f"v_mul_f32 v{S0+i}, v{S0+i}, v{B0+i}")
        x0, x1 = XR + 2*q, XR + 2*q + 1
        I += [f"v_lshlrev_b32 v{T+4}, 16, v{x0}", f"v_and_b32 v{T+5}, {sT3}, v{x0}",
              f"v_lshlrev_b32 v{T+6}, 16, v{x1}", f"v_and_b32 v{T+7}, {sT3}, v{x1}"]
        for i in range(4): I.append(f"v_fma_f32 v{T+i}, v{S0+r[i]}, v{T+i}, v{T+4+i}")
        I += [f"v_cvt_pk_bf16_f32 v{x0}, v{T}, v{T+1}", f"v_cvt_pk_bf16_f32 v{x1}, v{T+2}, v{T+3}"]
        I.append(Ins(f"buffer_store_dwordx2 {vr(x0, 2)}, {vXo}, {srd(SOUT)}, {sX3} offen offset:{16*q}{OPT.outsc}", vm="out"))
    return I

def epoch_update():
    C = [Raw("L_epoch:"), Ins(f"s_mov_b32 {sT3}, 0x4000"), Raw("L_epoch2:"), Ins(f"s_mov_b32 {sT2}, {WS_FO}")]
    for q in range(4):
        C.append(Ins(f"buffer_load_dwordx4 {vr(16 + 4*q, 4)}, {vL16}, {srd(SWS)}, {sT2} offen offset:{q*1024} sc1"))
    C.append(Ins("s_waitcnt vmcnt(0)"))
    for r in range(16):
        C.append(Ins(f"v_xor_b32 v{16+r}, {sTAG}, v{16+r}"))
    for r in range(1, 16):
        C.append(Ins(f"v_or_b32 v16, v16, v{16+r}"))
    C += [Ins("v_cmp_ne_u32 vcc, 0, v16"), Ins("s_nop 0"), Ins("s_cbranch_vccz L_epoch3"),
          Ins(f"s_sub_u32 {sT3}, {sT3}, 1"), Ins(f"s_cmp_lg_u32 {sT3}, 0"), Ins("s_cbranch_scc1 L_epoch2"),
          Raw("L_epoch3:"), Ins("s_mov_b64 exec, 1"),
          Ins(f"buffer_store_dword {vTag}, off, {srd(SWS)}, 0 offset:{WS_E} sc0 sc1"),
          Ins("s_endpgm")]
    cold.extend(C)
    return [f"s_or_b32 {sT2}, s2, {sW}", f"s_cmp_eq_u32 {sT2}, 0", "s_cbranch_scc1 L_epoch"]

def dump_q():
    I = [f"s_lshl_b32 {sT1}, {sNB}, 6", f"s_add_u32 {sT1}, {sT1}, {sKT}", f"s_lshl_b32 {sT1}, {sT1}, 11",
         f"s_add_u32 {sT1}, {sT1}, {WS_DBG}"]
    I += [st_frag(QF, sT1, 0, "dq"), st_frag(QF + 4, sT1, 1024, "dq")]
    return I

def common_prefix(a, b):
    n = 0
    while n < len(a) and n < len(b) and type(a[n]) is type(b[n]) and a[n].text == b[n].text:
        n += 1
    return n

def spread(items, groups):
    d = {}
    n = len(items)
    for i, it in enumerate(items if n else []):
        d.setdefault(groups[i * len(groups) // n], []).append(it)
    return d

def finish(items, st, errors, history=()):
    r = resolve(items, st, errors)
    if OPT.opt:
        r = shadow_fill(r)
    return auto_nop(r, history)

def build():
    errors = []
    sa, sb = State(), State()
    A = finish(phase1(0), sa, errors)
    B = finish(phase1(1), sb, errors)
    hazards(A, errors, "p1/var0"); fresh_store_check(A, errors, "var0")
    hazards(B, errors, "p1/var1"); fresh_store_check(B, errors, "var1")
    n = common_prefix(A, B)
    out = A[:n] + [Ins(f"s_cmp_eq_u32 {sVAR}, 1"), Ins("s_cbranch_scc1 L_var1")] + A[n:] + \
        [Ins("s_branch L_join1"), Raw("L_var1:")] + B[n:] + [Raw("L_join1:")]
    from asmlib import _rw
    for L in (A, B):
        for it in L[n:]:
            if not isinstance(it, Ins): continue
            r, w = _rw(Dec(it.text))
            if ("s", "scc") in r:
                errors.append("SCC live across the variant split: " + it.text)
            if ("s", "scc") in w: break
    st = State.merge(sa, sb)
    f0, f1 = att_final(0), att_final(1)
    pp = p3_prep()
    def att_extra(reads):
        R = att_reads() if reads else []
        ex = [spread(R, [0, 1, 2, 3, 4, 5, 6])] if R else []
        ex.append({0: w2_prep() + rot_prep()})
        order = dma_stage(0) + dma_stage(1) + dma_stage(2)
        if OPT.v2:
            order += dma_stage(5) + dma_stage(6)
            ex.append(spread(order, [1, 2, 3, 4, 5, 6, 7, 8, 9]))
            ex.append(spread(dma_stage(7) + dma_stage(8) + dma_stage(3) + dma_stage(4), [10, 11, 12, 13, 14, 15]))
        else:
            ex.append(spread(order, [1, 2, 3, 4, 5, 6, 7, 8]))
            ex.append(spread(dma_stage(3) + dma_stage(4), [9, 10, 11, 12, 13, 14]))
        ex.append(spread(pp, [3, 4, 5]))
        ex.append({OPT.gh: [flag_store(flag_kt_nb(WS_FH), "fh", "h")]})
        ex.append({8: [Group(["s_waitcnt lgkmcnt(0)", "s_barrier"])]})
        ex.append({OPT.gph: [Group(FH_SOFF + [poll("ph", vPoll, sT2)])]})
        return merge_at(*ex)
    tail0 = stamps_move() + stamp("att0", True) + zero_invalid()
    hist = A[-30:] + B[-30:]
    T0 = finish(tail0, st, errors, hist)
    s1 = st.copy(); s2 = st.copy()
    AT1 = finish(attention(att_extra(True), True), s1, errors, B[-30:] + T0)
    AT1 = auto_nop(AT1, A[-30:] + T0)
    s2.lg = {}; s2.lg_regs = {}
    AT2 = finish(attention(att_extra(False), False), s2, errors)
    st = State.merge(s1, s2)
    tail = f0 + f1 + stamp("att1", True)
    if OPT.stop == "att":
        tail += [flag_store(flag_kt_nb(WS_FO), "fo", "o")] + dump_q()
    else:
        early_o = [Ins("s_waitcnt vmcnt(0)")] + [Ins(x) for x in flag_kt_nb(WS_FO)] + \
                  [Ins("s_mov_b64 exec, 1"), Ins(f"buffer_store_dword {vTag}, off, {srd(SWS)}, {sT1} sc0 sc1"), Ins("s_mov_b64 exec, -1")]
        tail += [poll_check("ph", vPoll, FH_SOFF, sT2, "h", pre=early_o)] + stamp("pollH", 2)
        tail += phase3()
        if OPT.calib:
            tail += [f"s_mov_b32 s3, {OPT.calib}", Raw("L_cal:"), "s_sub_u32 s3, s3, 1", "s_cmp_lg_u32 s3, 0", "s_cbranch_scc1 L_cal"]
        tail += stamp("end", 2) + stamps_out() + epoch_update()
    tail += ["s_waitcnt vmcnt(0)"]
    T = finish(tail, st, errors, AT1[-30:])
    T = auto_nop(T, AT2[-30:])
    hazards(A[-40:] + T0 + AT1 + T, errors, "att/var0")
    hazards(B[-40:] + T0 + AT1 + T, errors, "att/var1")
    hazards(AT2 + T, errors, "att/copy2")
    fresh_store_check(AT1 + T, errors, "tail")
    out += T0 + AT1 + [Raw("L_att_join:")] + T
    out += [Raw("L_hot_end:"), Raw("L_end:"), Ins("s_endpgm")]
    C = flatten(cold)
    hazards(C, errors, "cold")
    out += C + [Raw("L_att_noread:")] + AT2 + [Ins("s_branch L_att_join")]
    info = dict(est_a=est_cycles(A), est_b=est_cycles(B), est_att=est_cycles(AT1), est_t=est_cycles(T), prefix=n, na=len(A), nb=len(B))
    return out, errors, info

HEADER = """; Fused LayerNorm -> QKV -> sliding-window attention -> Wo, gated by SiLU(channel MLP), one persistent launch.
; @launch grid=(256,1,1) block=(256,1,1) lds=163840
.amdgcn_target "amdgcn-amd-amdhsa--gfx950"
.text
.globl {name}
.p2align 8
.type {name},@function
{name}:
"""
FOOTER = """.section .rodata,"a"
.p2align 6
.amdhsa_kernel {name}
  .amdhsa_next_free_vgpr 512
  .amdhsa_next_free_sgpr 102
  .amdhsa_accum_offset 256
  .amdhsa_group_segment_fixed_size 0
  .amdhsa_kernarg_size 88
  .amdhsa_user_sgpr_count 2
  .amdhsa_user_sgpr_kernarg_segment_ptr 1
  .amdhsa_system_sgpr_workgroup_id_x 1
  .amdhsa_float_denorm_mode_32 3
.end_amdhsa_kernel
"""

def main():
    args = sys.argv[1:]
    outp = args[0]
    for kv in args[1:]:
        k, v = kv.split("=")
        cur = getattr(OPT, k)
        setattr(OPT, k, (v not in ("0", "False")) if isinstance(cur, bool) else (int(v) if isinstance(cur, int) else (" " + v if v else "")))
    items, errors, info = build()
    if OPT.nocheck: errors = []
    for e in errors:
        print("ERROR:", e)
    print(info)
    if OPT.stamps: print("STAMPS", len(STAMP_NAMES), ",".join(STAMP_NAMES))
    txt = HEADER.format(name=NAME) + text_of(items) + FOOTER.format(name=NAME)
    open(outp, "w").write(txt)
    if errors:
        sys.exit(1)

if __name__ == "__main__":
    main()
```

```python
import re

class Item:
    pass

class Ins(Item):
    __slots__ = ("text", "vm", "lg", "note", "nocount")
    def __init__(self, text, vm=None, lg=None, note=None, nocount=False):
        self.nocount = nocount
        self.text = text.strip()
        self.vm = vm
        self.lg = lg
        self.note = note
    def __repr__(self):
        return self.text

class WaitVM(Item):
    def __init__(self, *tags):
        self.tags = tags

class WaitLG(Item):
    def __init__(self, *tags):
        self.tags = tags

class Raw(Item):
    def __init__(self, text):
        self.text = text

class Group(Item):
    def __init__(self, items):
        self.items = list(items)

def flatten(items):
    out = []
    for it in items:
        if isinstance(it, Group):
            out += flatten(it.items)
        elif isinstance(it, (list, tuple)):
            out += flatten(it)
        elif isinstance(it, str):
            out.append(Ins(it))
        elif it is None:
            continue
        else:
            out.append(it)
    return out

_REG = re.compile(r"^(-|\|)?([vas])(\d+)\|?$")
_RNG = re.compile(r"^(-)?([vas])\[(\d+):(\d+)\]$")

def regs_of(op):
    op = op.strip()
    if op.startswith("abs(") and op.endswith(")"):
        op = op[4:-1]
    if op.startswith("-abs(") and op.endswith(")"):
        op = op[5:-1]
    m = _REG.match(op)
    if m:
        return [(m.group(2), int(m.group(3)))]
    m = _RNG.match(op)
    if m:
        return [(m.group(2), i) for i in range(int(m.group(3)), int(m.group(4)) + 1)]
    if op == "vcc":
        return [("s", "vcc")]
    if op == "exec":
        return [("s", "exec")]
    if op == "m0":
        return [("s", "m0")]
    return []

TRANS = ("v_exp_f32", "v_rcp_f32", "v_rsq_f32", "v_log_f32", "v_sqrt_f32")

class Dec:
    def __init__(self, text):
        self.text = text
        parts = text.split(None, 1)
        self.mn = mn = parts[0]
        rest = parts[1] if len(parts) > 1 else ""
        ops, cur, depth = [], "", 0
        for ch in rest:
            if ch == "[" or ch == "(":
                depth += 1
            if ch == "]" or ch == ")":
                depth -= 1
            if ch == "," and depth == 0:
                ops.append(cur.strip()); cur = ""
            else:
                cur += ch
        if cur.strip():
            ops.append(cur.strip())
        mods = ""
        if ops:
            last = ops[-1].split(None, 1)
            if len(last) > 1 and not last[0].endswith(":"):
                ops[-1] = last[0]; mods = last[1]
        self.ops, self.mods = ops, mods
        R = lambda i: regs_of(ops[i]) if i < len(ops) else []
        self.reads, self.writes = [], []
        self.kind = "other"
        self.ws = 1
        if mn == "s_nop":
            self.kind = "nop"; self.ws = int(ops[0], 0) + 1
        elif mn.startswith("v_mfma"):
            self.kind = "mfma"
            self.D, self.A, self.B, self.C = R(0), R(1), R(2), R(3)
            self.writes = self.D; self.reads = self.A + self.B + self.C
        elif mn.startswith("v_"):
            self.kind = "valu"
            self.trans = mn.replace("_e32", "").replace("_e64", "") in TRANS
            if mn.startswith("v_cmp"):
                self.writes = R(0); self.reads = sum((R(i) for i in range(1, len(ops))), [])
            elif mn.startswith("v_permlane32_swap") or mn.startswith("v_permlane16_swap"):
                self.writes = R(0) + R(1); self.reads = R(0) + R(1)
            elif mn.startswith("v_add_co") or mn.startswith("v_addc_co"):
                self.writes = R(0) + R(1); self.reads = sum((R(i) for i in range(2, len(ops))), [])
            else:
                self.writes = R(0); self.reads = sum((R(i) for i in range(1, len(ops))), [])
                if mn.startswith("v_fmac") or mn.startswith("v_writelane"):
                    self.reads += R(0)
        elif mn.startswith("ds_read"):
            self.kind = "ds"; self.writes = R(0); self.reads = R(1); self.load = True
        elif mn.startswith("ds_write"):
            self.kind = "ds"; self.reads = R(0) + R(1); self.load = False
        elif mn.startswith("buffer_load"):
            self.kind = "vmem"
            if " lds" in (" " + mods):
                self.lds = True; self.reads = R(0) + R(1) + R(2) + [("s", "m0")]
            else:
                self.lds = False; self.writes = R(0); self.reads = R(1) + R(2) + R(3)
            self.store = False
        elif mn.startswith("buffer_store"):
            self.kind = "vmem"; self.lds = False; self.store = True
            self.data = R(0); self.reads = R(0) + R(1) + R(2) + R(3)
            self.wide = mn.endswith("x4") or mn.endswith("x3")
        elif mn.startswith("global_load"):
            self.kind = "vmem"; self.lds = False; self.store = False
            self.writes = R(0); self.reads = R(1) + R(2)
        elif mn.startswith("global_store"):
            self.kind = "vmem"; self.lds = False; self.store = True
            self.data = R(1); self.reads = R(0) + R(1) + R(2)
            self.wide = mn.endswith("x4") or mn.endswith("x3")
        elif mn.startswith("global_atomic"):
            self.kind = "vmem"; self.lds = False; self.store = True; self.wide = False
            self.data = R(1); self.reads = R(0) + R(1) + R(2)
        elif mn.startswith("buffer_inv") or mn.startswith("buffer_wbl2"):
            self.kind = "vmem"; self.lds = False; self.store = False
        elif mn.startswith("s_load") or mn.startswith("s_memtime") or mn.startswith("s_memrealtime"):
            self.kind = "smem"; self.writes = R(0); self.reads = R(1)
        elif mn.startswith("s_cmp"):
            self.kind = "salu"; self.reads = R(0) + R(1)
        elif mn.startswith("s_waitcnt") or mn in ("s_barrier", "s_endpgm", "s_setprio", "s_sleep") or mn.startswith("s_cbranch") or mn == "s_branch":
            self.kind = "ctl"
        elif mn.startswith("s_"):
            self.kind = "salu"; self.writes = R(0); self.reads = sum((R(i) for i in range(1, len(ops))), [])
        else:
            raise ValueError("unknown instruction: " + text)

class State:
    def __init__(self):
        self.vm = {}
        self.lg = {}
        self.vm_regs = {}
        self.lg_regs = {}
        self.n = 0
    def copy(self):
        s = State()
        s.vm = dict(self.vm); s.lg = dict(self.lg)
        s.vm_regs = dict(self.vm_regs); s.lg_regs = dict(self.lg_regs)
        s.n = self.n
        return s
    @staticmethod
    def merge(a, b):
        s = State()
        for (da, db, ra, rb, d, r) in ((a.vm, b.vm, a.vm_regs, b.vm_regs, s.vm, s.vm_regs),
                                       (a.lg, b.lg, a.lg_regs, b.lg_regs, s.lg, s.lg_regs)):
            for t in set(da) | set(db):
                d[t] = min(da.get(t, 10 ** 9), db.get(t, 10 ** 9))
                rr = set(ra.get(t, ())) | set(rb.get(t, ()))
                if rr:
                    r[t] = rr
        s.n = max(a.n, b.n)
        return s

_auto = [0]

def resolve(items, st, errors):
    out = []
    def retire(d, r, n):
        for t in [t for t, c in d.items() if c >= n or n == 0]:
            del d[t]; r.pop(t, None)
    for it in flatten(items):
        if isinstance(it, Raw):
            out.append(it); continue
        if isinstance(it, WaitVM) or isinstance(it, WaitLG):
            isvm = isinstance(it, WaitVM)
            d, r, cap, nm = (st.vm, st.vm_regs, 63, "vmcnt") if isvm else (st.lg, st.lg_regs, 15, "lgkmcnt")
            ns = [d[t] for t in it.tags if t in d]
            if not ns:
                continue
            n = max(0, min(min(ns), cap))
            if isvm and min(ns) > 63:
                n = 63
            out.append(Ins(f"s_waitcnt {nm}({n})"))
            retire(d, r, n)
            continue
        assert isinstance(it, Ins), it
        dec = Dec(it.text)
        if dec.mn == "s_waitcnt":
            m = re.search(r"vmcnt\((\d+)\)", it.text)
            if m: retire(st.vm, st.vm_regs, int(m.group(1)))
            m = re.search(r"lgkmcnt\((\d+)\)", it.text)
            if m: retire(st.lg, st.lg_regs, int(m.group(1)))
            out.append(it); continue
        touched = (set(dec.reads) | set(dec.writes)) if not it.nocount else set()
        for nm, r in (("vm", st.vm_regs), ("lg", st.lg_regs)):
            for t, rr in r.items():
                bad = touched & set(rr)
                if bad:
                    errors.append(f"pending {nm} load '{t}' regs {sorted(bad, key=str)[:4]} touched by: {it.text}")
        if dec.kind == "vmem" and it.nocount:
            pass
        elif dec.kind == "vmem":
            for t in st.vm: st.vm[t] += 1
            tag = it.vm
            if tag is None:
                _auto[0] += 1; tag = f"_vm{_auto[0]}"
            st.vm[tag] = 0
            if dec.writes:
                st.vm_regs[tag] = set(st.vm_regs.get(tag, set())) | set(dec.writes)
        elif dec.kind == "ds":
            for t in st.lg: st.lg[t] += 1
            tag = it.lg
            if tag is None:
                _auto[0] += 1; tag = f"_lg{_auto[0]}"
            st.lg[tag] = 0
            if dec.writes:
                st.lg_regs[tag] = set(st.lg_regs.get(tag, set())) | set(dec.writes)
        elif dec.kind == "smem":
            _auto[0] += 1; tag = f"_sm{_auto[0]}"
            for t in st.lg: st.lg[t] = -10 ** 6
            st.lg[tag] = 0
            st.lg_regs[tag] = set(dec.writes)
        out.append(it)
    return out

def isvec(r):
    return r[0] in ("v", "a")

def hazards(items, errors, label=""):
    seq = [Dec(it.text) for it in items if isinstance(it, Ins)]
    W = 24
    for i, c in enumerate(seq):
        dist = 0
        for j in range(i - 1, max(-1, i - 40), -1):
            p = seq[j]
            def err(need, why):
                if dist < need:
                    errors.append(f"{label} hazard {why}: need {need} have {dist}: [{p.text}] -> [{c.text}]")
            pw, cr, cw = set(p.writes), set(c.reads), set(c.writes)
            pwv = {r for r in pw if isvec(r)}
            if p.kind == "valu":
                if c.kind == "mfma" and pwv & cr: err(2, "valu->mfma")
                if c.kind == "valu":
                    if (c.mn.startswith("v_permlane")) and pwv & cr: err(2, "valu->permlane")
                    if (c.mn.startswith("v_readfirstlane") or c.mn.startswith("v_readlane")) and pwv & cr: err(1, "valu->readlane")
                    if p.trans and not c.trans and pwv & cr: err(1, "trans->valu")
                    ps = {r for r in pw if r[0] == "s"}
                    if ps & cr: err(2, "valu sgpr->valu")
                if c.kind in ("vmem", "ds"):
                    ps = {r for r in pw if r[0] == "s"}
                    if ps & cr: err(5, "valu sgpr->vmem")
                    if p.trans and pwv & cr: err(1, "trans->mem")
                if c.kind == "salu":
                    ps = {r for r in pw if r[0] == "s"}
                    if ps & cr: err(1, "valu sgpr->salu")
            if p.kind == "mfma":
                D = set(p.D)
                if c.kind == "mfma":
                    if D & (set(c.A) | set(c.B)): err(12, "mfma D->A/B")
                    if D & set(c.C) and set(c.C) != D: err(10, "mfma D->C partial")
                elif c.kind in ("valu", "vmem", "ds"):
                    if D & (cr | cw): err(12, "mfma D->valu/mem")
                if c.kind == "valu" and set(p.C) & {r for r in cw if isvec(r)}: err(7, "mfma C WAR")
            if p.kind == "salu" and ("s", "m0") in pw and c.kind == "vmem" and c.lds: err(1, "m0->dma")
            if p.kind == "vmem" and p.store and p.wide and c.kind == "valu" and set(p.data) & cw: err(2, "store data WAR")
            dist += p.ws
            if dist > W:
                break
    return errors

def cost(it):
    if isinstance(it, (WaitVM, WaitLG)):
        return 4
    if isinstance(it, Raw):
        return 0
    if isinstance(it, Group):
        return sum(cost(x) for x in flatten(it.items))
    if isinstance(it, str):
        it = Ins(it)
    mn = it.text.split()[0]
    if mn.startswith("v_mfma"):
        return 8
    if mn.replace("_e32", "") in TRANS:
        return 8
    if mn == "s_nop":
        return 4 * (int(it.text.split()[1], 0) + 1)
    return 4

def interleave(steps, fillers, start=0, end=None):
    n = len(steps)
    end = n if end is None else end
    fillers = list(fillers)
    total = sum(cost(f) for f in fillers)
    out = []
    k = 0
    acc = 0
    for i, stp in enumerate(steps):
        out += stp
        if start <= i < end:
            target = total * (i - start + 1) / (end - start)
            while k < len(fillers) and (acc + cost(fillers[k]) / 2 <= target or i == end - 1):
                out.append(fillers[k]); acc += cost(fillers[k]); k += 1
    assert k == len(fillers)
    return out

def text_of(items):
    lines = []
    for it in items:
        if isinstance(it, Raw):
            lines.append(it.text)
        else:
            lines.append("  " + it.text + (f"   ; {it.note}" if it.note else ""))
    return "\n".join(lines) + "\n"

def est_cycles(items):
    t = 0; vec_free = 0; mfma_free = 0
    for it in items:
        if not isinstance(it, Ins):
            continue
        mn = it.text.split()[0]
        if mn.startswith("v_mfma"):
            t = max(t, vec_free, mfma_free); mfma_free = t + 32; vec_free = t + 8; t += 4
        elif mn.startswith("v_") or mn.startswith("ds_") or mn.startswith("buffer") or mn.startswith("global"):
            t = max(t, vec_free); c = 8 if mn.replace("_e32", "") in TRANS else 4; vec_free = t + c; t += 4
        elif mn == "s_nop":
            t += 4 * (int(it.text.split()[1], 0) + 1)
        else:
            t += 4
    return max(t, mfma_free)


def place(steps, at, fillers, start=0, end=None):
    n = len(steps)
    end = n if end is None else end
    fillers = list(fillers)
    base = [sum(cost(x) for x in at.get(i, [])) for i in range(n)]
    total = sum(cost(f) for f in fillers) + sum(base[start:end])
    out = []
    k = 0
    acc = 0
    for i, stp in enumerate(steps):
        out += stp
        out += at.get(i, [])
        if start <= i < end:
            acc += base[i]
            target = total * (i - start + 1) / (end - start)
            while k < len(fillers) and (acc + cost(fillers[k]) / 2 <= target or i == end - 1):
                out.append(fillers[k]); acc += cost(fillers[k]); k += 1
    assert k == len(fillers)
    return out

def steps_for(items, first, stride):
    d = {}
    for n, it in enumerate(items):
        d.setdefault(first + int(n * stride), []).append(it)
    return d

def merge_at(*ds):
    out = {}
    for d in ds:
        for k, v in d.items():
            out.setdefault(k, []).extend(v)
    return out

_SCC_W = ("s_add_u32", "s_sub_u32", "s_addc_u32", "s_lshl_b32", "s_lshr_b32", "s_and_b32", "s_or_b32", "s_xor_b32",
          "s_min_u32", "s_max_u32", "s_ashr_i32", "s_add_i32", "s_sub_i32", "s_and_b64", "s_or_b64")
_MOVABLE = ("s_add_u32", "s_sub_u32", "s_mov_b32", "s_movk_i32", "s_lshl_b32", "s_lshr_b32", "s_and_b32", "s_or_b32",
            "s_xor_b32", "s_mul_i32", "s_cselect_b32", "s_cmp_eq_u32", "s_cmp_ge_u32", "s_cmp_lt_u32")

def _rw(d):
    r, w = set(d.reads), set(d.writes)
    mn = d.mn
    if mn in _SCC_W or mn.startswith("s_cmp"): w = w | {("s", "scc")}
    if mn.startswith("s_cselect") or mn.startswith("s_cbranch_scc") or mn == "s_addc_u32": r = r | {("s", "scc")}
    return r, w

def shadow_fill(items, window=48):
    items = list(items)
    dec = [Dec(it.text) if isinstance(it, Ins) else None for it in items]
    def is_long(d): return d is not None and (d.kind == "mfma" or (d.kind == "valu" and d.trans))
    def is_vec(d): return d is not None and d.kind in ("mfma", "valu", "ds", "vmem")
    p = 0
    moved = 0
    while p < len(items):
        d = dec[p]
        if d is not None and d.kind == "salu" and d.mn in _MOVABLE and not (p > 0 and is_long(dec[p - 1])):
            r, w = _rw(d)
            best = None
            q = p - 1
            while q >= 0 and p - q <= window:
                e = dec[q]
                if e is None or (e.kind == "ctl" and not e.mn.startswith("s_waitcnt") and e.mn != "s_barrier"):
                    break
                er, ew = _rw(e)
                if (ew & (r | w)) or (er & w):
                    break
                if q >= 1 and is_long(dec[q - 1]) and is_vec(e):
                    best = q
                q -= 1
            if best is not None:
                it = items.pop(p); dd = dec.pop(p)
                items.insert(best, it); dec.insert(best, dd)
                moved += 1
        p += 1
    return items

def _need(p, c):
    n = 0
    pw, cr, cw = set(p.writes), set(c.reads), set(c.writes)
    pwv = {r for r in pw if isvec(r)}
    if p.kind == "valu":
        ps = {r for r in pw if r[0] == "s"}
        if c.kind == "mfma" and pwv & cr: n = max(n, 2)
        if c.kind == "valu":
            if c.mn.startswith("v_permlane") and pwv & cr: n = max(n, 2)
            if (c.mn.startswith("v_readfirstlane") or c.mn.startswith("v_readlane")) and pwv & cr: n = max(n, 1)
            if p.trans and not c.trans and pwv & cr: n = max(n, 1)
            if ps & cr: n = max(n, 2)
        if c.kind in ("vmem", "ds"):
            if ps & cr: n = max(n, 5)
            if p.trans and pwv & cr: n = max(n, 1)
        if c.kind == "salu" and ps & cr: n = max(n, 1)
    if p.kind == "mfma":
        D = set(p.D)
        if c.kind == "mfma":
            if D & (set(c.A) | set(c.B)): n = max(n, 12)
            if D & set(c.C) and set(c.C) != D: n = max(n, 10)
        elif c.kind in ("valu", "vmem", "ds"):
            if D & (cr | cw): n = max(n, 12)
        if c.kind == "valu" and set(p.C) & {r for r in cw if isvec(r)}: n = max(n, 7)
    if p.kind == "salu" and ("s", "m0") in pw and c.kind == "vmem" and c.lds: n = max(n, 1)
    if p.kind == "vmem" and p.store and p.wide and c.kind == "valu" and set(p.data) & cw: n = max(n, 2)
    return n

def auto_nop(items, history=()):
    out = list(history); h = len(out)
    dec = [Dec(it.text) if isinstance(it, Ins) else None for it in out]
    added = 0
    for it in items:
        if isinstance(it, Ins):
            c = Dec(it.text)
            dist = 0; deficit = 0
            for j in range(len(out) - 1, max(-1, len(out) - 60), -1):
                p = dec[j]
                if p is None: continue
                deficit = max(deficit, _need(p, c) - dist)
                dist += p.ws
                if dist > 24: break
            while deficit > 0:
                n = min(deficit, 16)
                nop = Ins(f"s_nop {n-1}")
                out.append(nop); dec.append(Dec(nop.text)); deficit -= n; added += n
            out.append(it); dec.append(c)
        else:
            out.append(it); dec.append(None)
    return out[h:]

def fresh_store_check(items, errors, label=""):
    fresh = {}
    for it in items:
        if not isinstance(it, Ins): continue
        d = Dec(it.text)
        if d.kind == "vmem" and getattr(d, "store", False) and it.vm in ("kv", "h", "o", "out"):
            for r in d.data:
                if not fresh.get(r, False):
                    errors.append(f"{label} store of stale register {r}: {it.text}")
                fresh[r] = False
        for r in d.writes:
            fresh[r] = True

def shadow_sink(items, window=48):
    items = list(items)
    dec = [Dec(it.text) if isinstance(it, Ins) else None for it in items]
    def is_long(d): return d is not None and (d.kind == "mfma" or (d.kind == "valu" and d.trans))
    def is_vec(d): return d is not None and d.kind in ("mfma", "valu", "ds", "vmem")
    p = len(items) - 1
    while p >= 0:
        d = dec[p]
        if d is not None and d.kind == "salu" and d.mn in _MOVABLE and not (p > 0 and is_long(dec[p - 1])):
            r, w = _rw(d)
            best = None
            q = p + 1
            while q < len(items) and q - p <= window:
                e = dec[q]
                if e is None or (e.kind == "ctl" and not e.mn.startswith("s_waitcnt") and e.mn != "s_barrier"):
                    break
                er, ew = _rw(e)
                if (ew & (r | w)) or (er & w):
                    break
                if is_long(e) and q + 1 < len(items) and is_vec(dec[q + 1]):
                    best = q
                q += 1
            if best is not None:
                it = items.pop(p); dd = dec.pop(p)
                items.insert(best, it); dec.insert(best, dd)
        p -= 1
    return items
```

```python
import sys, os, math, struct
from asmlib import *

NAME = "recurrent_scan__sliding_block__mixer_channel_mlp__prompt_kernel"

def f2u(x):
    return struct.unpack("<I", struct.pack("<f", x))[0]

WS_E = 0x0
WS_FKV = 0x1000
WS_FH = 0x2000
WS_FO = 0x3000
WS_KV = 0x10000
REC = 4096
WS_O = 0x500000
WS_H = 0x700000
WS_DBG = 0xE00000
WS_SIZE = 0x2000000

SX, SWQ, SWO, SW1, SW2, SOUT, SWS, SB1, SB2 = 4, 8, 12, 16, 20, 24, 28, 32, 36
def srd(b): return f"s[{b}:{b+3}]"
sMB, sNB, sW, sTAG, sKT, sHB0 = "s40", "s41", "s42", "s43", "s44", "s45"
sI, sVAR = "s46", "s47"
sT0, sT1, sT2, sT3 = "s48", "s49", "s50", "s51"
sXO, sLW, sQB, sH1, sLD = "s52", "s53", "s54", "s55", "s56"
sKV, sHo, sW2B = "s57", "s58", "s59"
sBIT0, sBIT1, sBIT2, sBIT3, sBIT4 = "s[60:61]", "s[62:63]", "s[64:65]", "s[66:67]", "s[68:69]"
sWOB, sH3, sO3, sF3, sX3 = "s52", "s53", "s54", "s55", "s45"
sPaH, sHr, sPaW, sWr = "s8", "s9", "s10", "s11"
sKVL = "s16"

vL = "v0"
vL16, vWq, vW1, vTr = "v1", "v2", "v3", "v4"
vTrA, vTrB = "v5", "v11"
vK1, vK2, vKinv, vR1, vQs = "v6", "v7", "v8", "v9", "v10"
vPoll, vTag, vPollR, vTmp = "v12", "v13", "v14", "v15"
ACC = (16, 32)
WF = 48
DMEAN = 64
D2 = 80
TT = 80
BINV, RFRAG, CHALF = 84, 88, 92
PB = (96, 104)
CONSTA, SEL0, SEL1 = 112, 116, 120
QF = 112
ABIAS = 120
XS = 124
XF = 128

def vr(b, n=1):
    return f"v{b}" if n == 1 else f"v[{b}:{b+n-1}]"
def ar(b, n=1):
    return f"a{b}" if n == 1 else f"a[{b}:{b+n-1}]"
def X(s): return vr(XF + 4 * s, 4)
def MFMA(d, a, b, c):
    return f"v_mfma_f32_32x32x16_bf16 {d}, {a}, {b}, {c}"

AK, AV = 0, 72
def aK(t, hh): return ar(AK + 8 * t + 4 * hh, 4)
def aV(t, s, hh): return ar(AV + 16 * t + 8 * s + 4 * hh, 4)

SLOT = 32768
KVL = SLOT
KVR = 4160

class Opt:
    stop = None
    stamps = False
    sc = " sc1"
    la = 10
    touch = True
    rot = True
    gh = 4
    gph = 13
    kpo = 30
    kco = 40
    st1 = 24
    st2 = 30
    dstart = 1
    dstride10 = 27
    mall = True
    outsc = " sc1"
    opt = True
    gst = False
    lk = 5
    fend = 30
    tlb = False
    h0s = 4
    gV = -8
    gVs = 10
    wst = 27
    gH0 = 2
    gH1 = 33
    gH2 = 65
    gTq = 118
    gH3 = 96
    gTq1 = 90
    gQ1 = 112
    gQ0 = 144
    gFkv = 128
    gPkv = 156
    gKv = 167
    kst = 13
    early = False
    v2 = False
    gTwo = 188
    nohl = False
    hsc = " sc1"
    lk3 = 4
    nowait = False
    nobar = False
    nocheck = False
    only = ""
    calib = 0
    quit = ""
    noep = False
    w2 = True
    ea = 0
    gch = 13
    kfo = 4
    ost = 10
    ks5 = 0
    ks6 = 0
    ks7 = 0
    ks8 = 0
    kss = 10
    probe = ""
    elate = False
    tx = True
    sa0 = 1
    sa1 = 8
    sb0 = 9
    sb1 = 15
    nost = False
    nodma = False
    nostage = False
    nokv = False
OPT = Opt()

STAMP_NAMES = ["start"]
def sreg(i):
    return 180 + i
LATE = {}
LATE_REGS = [33, 34, 35, 19, 46] + list(range(70, 102))
def stamp(name, late=False):
    if not OPT.stamps:
        return []
    if OPT.only and name not in OPT.only.replace(" ", "").split("+"):
        return []
    if name not in STAMP_NAMES:
        STAMP_NAMES.append(name)
    i = STAMP_NAMES.index(name)
    if late:
        if name not in LATE:
            pool = LATE_REGS[:5] if late is True else LATE_REGS[5:]
            LATE[name] = [r for r in pool if r not in LATE.values()][0]
        mv = f"s_mov_b32 s{LATE[name]}, s0"
    else:
        mv = f"v_accvgpr_write_b32 a{sreg(i)}, s0"
    return [Group(["s_memtime s[0:1]", "s_waitcnt lgkmcnt(0)", mv])]

def stamps_move():
    if not OPT.stamps: return []
    I = ["s_lshl_b32 s3, s2, 2", f"s_add_u32 s3, s3, {sW}", "s_lshl_b32 s3, s3, 7", f"s_add_u32 s3, s3, {WS_DBG + (4 << 20)}"]
    n = len(STAMP_NAMES)
    for i in range(n):
        I.append(f"v_accvgpr_read_b32 v{128+i}, a{sreg(i)}")
    I.append("v_accvgpr_read_b32 v160, a179")
    for i in range(n):
        I.append(Ins(f"buffer_store_dword v{128+i}, off, {srd(SWS)}, s3 offset:{4*i}"))
    I.append(Ins(f"buffer_store_dword v160, off, {srd(SWS)}, s3 offset:120"))
    return I

def stamps_out():
    if not OPT.stamps: return []
    I = ["s_memrealtime s[0:1]", "s_waitcnt lgkmcnt(0)", "v_mov_b32 v16, s0",
         Ins(f"buffer_store_dword v16, off, {srd(SWS)}, s3 offset:124")]
    if OPT.probe:
        I += ["v_mov_b32 v40, s33", "v_mov_b32 v41, s34", Ins(f"buffer_store_dword v40, off, {srd(SWS)}, s3 offset:112"), Ins(f"buffer_store_dword v41, off, {srd(SWS)}, s3 offset:116")]
    for n, (name, r) in enumerate(LATE.items()):
        I += [f"v_mov_b32 v{17+n}, s{r}", Ins(f"buffer_store_dword v{17+n}, off, {srd(SWS)}, s3 offset:{4*STAMP_NAMES.index(name)}")]
    return I

def prologue():
    I = []
    a = I.append
    a("s_cmp_ge_u32 s2, 256" if OPT.quit.strip() != "start" else "s_cmp_ge_u32 s2, 0")
    a("s_cbranch_scc1 L_end")
    for (b, off) in ((SX, 0), (SWQ, 8), (SWS, 80), (SB1, 40), (SW1, 32), (SWO, 16), (SW2, 48), (SB2, 56), (SOUT, 64)):
        a(f"s_load_dwordx2 s[{b}:{b+1}], s[0:1], {off}")
    if OPT.stamps:
        a("s_memtime s[98:99]")
        a("s_memrealtime s[96:97]")
    a("s_getpc_b64 s[60:61]")
    a(Raw("L_pc:"))
    a("v_lshrrev_b32 v2, 6, v0")
    a("v_and_b32 v1, 3, v0")
    a("v_lshl_add_u32 v1, v2, 2, v1")
    a(f"s_lshr_b32 {sI}, s2, 3")
    a(f"s_lshl_b32 s49, {sI}, 11")
    a("v_lshlrev_b32 v1, 7, v1")
    a("v_add_u32 v1, s49, v1")
    a("s_mov_b32 s50, L_hot_end-L_pc-4")
    a("v_min_u32 v1, s50, v1")
    a("v_readfirstlane_b32 s42, v2")
    a(Ins("global_load_dword a255, v1, s[60:61]", vm="pf"))
    a("s_and_b32 s49, s2, 7")
    a("s_lshr_b32 s50, s49, 1")
    a("s_lshl_b32 s50, s50, 2")
    a(f"s_and_b32 s51, {sI}, 3")
    a(f"s_add_u32 {sMB}, s50, s51")
    a("s_and_b32 s50, s49, 1")
    a("s_lshl_b32 s50, s50, 3")
    a(f"s_lshr_b32 s51, {sI}, 2")
    a(f"s_add_u32 {sNB}, s50, s51")
    a("v_and_b32 v0, 63, v0")
    for (b, size) in ((SX, 2048*512*2), (SWQ, 512*1536*2), (SWS, WS_SIZE), (SB1, 1792*2)):
        a(f"s_mov_b32 s{b+2}, {size}")
        a(f"s_mov_b32 s{b+3}, 0x20000")
    a(f"s_lshr_b32 s50, {sNB}, 1")
    a("s_mul_i32 s50, s50, 7")
    a(f"s_and_b32 {sVAR}, {sNB}, 1")
    a(f"s_lshl_b32 s51, {sVAR}, 2")
    a(f"s_add_u32 {sHB0}, s50, s51")
    if OPT.touch:
        a(f"s_cmp_lt_u32 {sW}, 2")
        a("s_cbranch_scc0 L_tw")
        a(f"s_lshr_b32 s50, {sMB}, 2")
        a("s_lshl_b32 s50, s50, 9")
        a(f"s_lshl_b32 s51, {sI}, 4")
        a("s_add_u32 s50, s50, s51")
        a(f"s_lshl_b32 s51, {sW}, 3")
        a("s_add_u32 s50, s50, s51")
        a("s_lshl_b32 s50, s50, 10")
        a(f"v_lshrrev_b32 v1, 3, {vL}")
        a(f"v_and_b32 v2, 7, {vL}")
        a("v_lshlrev_b32 v2, 7, v2")
        a("v_lshl_add_u32 v1, v1, 10, v2")
        a("s_waitcnt lgkmcnt(0)")
        a(Ins(f"buffer_load_dword a254, v1, {srd(SX)}, s50 offen", vm="t1") if OPT.tx else Ins(f"buffer_load_dword a254, off, {srd(SX)}, s50", vm="t1"))
        a("s_branch L_td")
        a(Raw("L_tw:"))
        a(f"s_mul_i32 s50, {sI}, {16*3072}")
        a(f"s_lshr_b32 s51, {sNB}, 3")
        a("s_lshl_b32 s51, s51, 9")
        a("s_add_u32 s50, s50, s51")
        a(f"s_sub_u32 s51, {sW}, 1")
        a("s_lshl_b32 s51, s51, 10")
        a("s_add_u32 s50, s50, s51")
        a(f"v_lshrrev_b32 v1, 2, {vL}")
        a(f"v_and_b32 v2, 3, {vL}")
        a("v_lshlrev_b32 v2, 7, v2")
        a("s_movk_i32 s51, 3072")
        a("v_mad_u32_u24 v1, v1, s51, v2")
        a("s_waitcnt lgkmcnt(0)")
        a(Ins(f"buffer_load_dword a254, v1, {srd(SWQ)}, s50 offen", nocount=True))
        a(Raw("L_td:"))
    a("s_waitcnt lgkmcnt(0)")
    I += stamp("karg")
    if not OPT.elate:
        I += e_bias_loads()
    if OPT.tlb:
        for (b, size) in ((SW1, 512*1792*2), (SWO, 512*512*2), (SW2, 1792*512*2), (SB2, 512*2), (SOUT, 2048*512*2)):
            a(f"s_mov_b32 s{b+2}, {size}")
            a(f"s_mov_b32 s{b+3}, 0x20000")
        for n, b in enumerate((SW1, SW2, SWO, SB2, SOUT)):
            a(Ins(f"buffer_load_dword a{240+n}, off, {srd(b)}, 0", vm=("tlb", n)))
        a(f"v_and_b32 v12, 7, {vL}")
        a("v_lshlrev_b32 v12, 21, v12")
        a(Ins(f"buffer_load_dword a245, v12, {srd(SWS)}, 0 offen offset:2048 sc1", vm=("tlb", 5)))
    a(f"s_lshl_b32 {sKT}, {sMB}, 2")
    a(f"s_add_u32 {sKT}, {sKT}, {sW}")
    a(f"s_lshl_b32 {sXO}, {sKT}, 15")
    a(f"s_lshl_b32 {sLW}, {sW}, 15")
    a(f"v_lshrrev_b32 v14, 4, {vL}")
    a(f"v_and_b32 v12, 15, {vL}")
    a("v_xor_b32 v12, v12, v14")
    a("v_lshlrev_b32 v12, 4, v12")
    a(f"v_lshl_add_u32 v{XS}, v14, 10, v12")
    for j in range(1, 4):
        a(f"v_xor_b32 v{XS+j}, {64*j}, v{XS}")
    a(f"s_lshl_b32 {sLD}, {sW}, 13")
    a(f"s_mul_i32 {sQB}, {sW}, {8*16*3072}")
    a(f"s_lshl_b32 s50, {sNB}, 6")
    a(f"s_add_u32 {sQB}, {sQB}, s50")
    a(f"v_lshlrev_b32 {vL16}, 4, {vL}")
    a(f"v_lshrrev_b32 v14, 2, {vL}")
    a(f"v_and_b32 v12, 3, {vL}")
    a("v_lshlrev_b32 v12, 4, v12")
    a("s_movk_i32 s50, 3072")
    a("s_movk_i32 s51, 3584")
    a(f"v_mad_u32_u24 {vWq}, v14, s50, v12")
    a(f"v_mad_u32_u24 {vW1}, v14, s51, v12")
    a(f"s_mul_i32 {sH1}, {sW}, {8*16*3584}")
    a(f"s_lshl_b32 s50, {sHB0}, 6")
    a(f"s_add_u32 {sH1}, {sH1}, s50")
    a(f"s_lshl_b32 s50, {sNB}, 6")
    a(f"s_add_u32 s50, s50, {sKT}")
    a(f"s_lshl_b32 {sKV}, s50, 12")
    a(f"s_add_u32 {sKV}, {sKV}, {WS_KV}")
    a(f"s_mul_i32 s50, {sKT}, 112")
    a(f"s_lshl_b32 s51, {sHB0}, 1")
    a("s_add_u32 s50, s50, s51")
    a("s_lshl_b32 s50, s50, 10")
    a(f"s_add_u32 {sHo}, s50, {WS_H}")
    for (b, size) in ((SW1, 512*1792*2), (SWO, 512*512*2), (SW2, 1792*512*2), (SB2, 512*2), (SOUT, 2048*512*2)):
        a(f"s_mov_b32 s{b+2}, {size}")
        a(f"s_mov_b32 s{b+3}, 0x20000")
    if OPT.stamps:
        a("v_accvgpr_write_b32 a180, s98"); a("v_accvgpr_write_b32 a179, s96")
    return I

def e_bias_loads():
    I = [Ins(f"buffer_load_dword {vTag}, off, {srd(SWS)}, 0 offset:{WS_E}{OPT.sc}", vm="E"),
         Group([f"v_and_b32 v14, 31, {vL}", "v_lshlrev_b32 v14, 1, v14", f"s_lshl_b32 {sT1}, {sHB0}, 6"] +
               [Ins(f"buffer_load_ushort v{104+j}, v14, {srd(SB1)}, {sT1} offen offset:{64*j}", vm="bias") for j in range(4)])]
    return I

def dma_x(kq):
    I = []
    for g in range(8):
        I.append(Group([f"s_add_u32 m0, {sLW}, {kq*8192 + g*1024}",
                        f"s_add_u32 {sT0}, {sXO}, {g*4096 + kq*256}",
                        Ins(f"buffer_load_dwordx4 v{XS + (g & 3)}, {srd(SX)}, {sT0} offen lds", vm=("x", kq))]))
    return I

def dma_w(tag, slot, kind, j=0):
    I = []
    if OPT.nodma and tag not in ("wK", "wV"): return I
    for i8 in range(8):
        if kind == "H":
            base, voff, s, c = sH1, vW1, SW1, j * 64 + i8 * 16 * 3584
        else:
            base, voff, s, c = sQB, vWq, SWQ, {"Q": 0, "K": 1024, "V": 2048}[kind] + i8 * 16 * 3072
        I.append(Group([f"s_add_u32 m0, {sLD}, {slot*SLOT + i8*1024}",
                        f"s_add_u32 {sT0}, {base}, {c}",
                        Ins(f"buffer_load_dwordx4 {voff}, {srd(s)}, {sT0} offen lds", vm=tag)]))
    return I

def touch_h():
    return Group([f"v_and_b32 {vTmp}, 3, {vL}", f"s_lshl_b32 {sT2}, {sW}, 2", f"v_add_u32 {vTmp}, {sT2}, {vTmp}",
                  f"v_min_u32 {vTmp}, 13, {vTmp}", f"v_lshlrev_b32 {vTmp}, 7, {vTmp}",
                  f"v_lshrrev_b32 {vPoll}, 2, {vL}", f"s_movk_i32 {sT2}, 3584", f"v_mad_u32_u24 {vTmp}, {vPoll}, {sT2}, {vTmp}",
                  f"s_mul_i32 {sT2}, {sI}, {16*3584}", f"s_lshr_b32 {sT3}, {sNB}, 3", f"s_mul_i32 {sT3}, {sT3}, 1792",
                  f"s_add_u32 {sT2}, {sT2}, {sT3}",
                  Ins(f"buffer_load_dword a253, {vTmp}, {srd(SW1)}, {sT2} offen", vm="t2")])

def touch_q():
    return Group([f"v_bfe_u32 {vPoll}, {vL}, 2, 2", f"v_and_b32 {vTmp}, 3, {vL}", f"v_lshlrev_b32 {vTmp}, 7, {vTmp}",
                  f"s_movk_i32 {sT2}, 3072", f"v_mad_u32_u24 {vTmp}, {vPoll}, {sT2}, {vTmp}",
                  f"s_lshl_b32 {sT2}, {sI}, 2", f"s_add_u32 {sT2}, {sT2}, {sW}", f"s_mul_i32 {sT2}, {sT2}, {4*3072}",
                  f"s_lshr_b32 {sT3}, {sNB}, 3", f"s_lshl_b32 {sT3}, {sT3}, 9", f"s_add_u32 {sT2}, {sT2}, {sT3}",
                  Ins(f"buffer_load_dword a252, {vTmp}, {srd(SWQ)}, {sT2} offen", vm="t3")])

def touch_wo():
    return Group([f"v_bfe_u32 {vPollR}, {vL}, 3, 2", f"v_and_b32 {vTmp}, 7, {vL}", f"v_lshlrev_b32 {vTmp}, 7, {vTmp}",
                  f"v_lshl_add_u32 {vTmp}, {vPollR}, 10, {vTmp}",
                  f"s_lshl_b32 {sT2}, {sI}, 2", f"s_add_u32 {sT2}, {sT2}, {sW}", f"s_lshl_b32 {sT2}, {sT2}, 12",
                  Ins(f"buffer_load_dword a249, {vTmp}, {srd(SWO)}, {sT2} offen", vm="t4")])

def setup_idle():
    I = []
    a = I.append
    a(f"v_lshrrev_b32 v14, 5, {vL}")
    a("v_lshlrev_b32 v14, 2, v14")
    a(f"v_bfe_u32 v15, {vL}, 2, 2")
    a("v_add_u32 v14, v14, v15")
    a("v_lshlrev_b32 v14, 6, v14")
    a(f"v_bfe_u32 v15, {vL}, 4, 1")
    a("v_lshl_add_u32 v14, v15, 5, v14")
    a(f"v_and_b32 v15, 3, {vL}")
    a(f"v_lshl_add_u32 {vTr}, v15, 3, v14")
    a(f"v_and_b32 v14, 31, {vL}")
    a(f"v_lshrrev_b32 v15, 5, {vL}")
    a(f"v_and_b32 v96, 15, {vL}")
    a("v_xor_b32 v15, v15, v96")
    a("v_lshlrev_b32 v15, 4, v15")
    a("v_lshl_add_u32 v14, v14, 8, v15")
    a(f"v_add_u32 v96, {sLW}, v14")
    for sp in range(1, 8):
        a(f"v_xor_b32 v{96+sp}, {32*sp}, v96")
    for r in range(4):
        a(f"v_mov_b32 v{CONSTA+r}, 0xbb00bb00")
    a(f"v_and_b32 v14, 31, {vL}")
    a(f"v_lshrrev_b32 v15, 5, {vL}")
    a("v_lshlrev_b32 v15, 3, v15")
    a("v_sub_u32 v14, v14, v15")
    a("v_and_b32 v15, 1, v14")
    a("v_lshlrev_b32 v15, 4, v15")
    a("v_mov_b32 v16, 0x3f80")
    a("v_lshlrev_b32 v15, v15, v16")
    a("v_lshrrev_b32 v16, 1, v14")
    a("v_subrev_u32 v17, 8, v16")
    for (sel, src) in ((SEL0, "v16"), (SEL1, "v17")):
        for j in range(4):
            p = 60 + 2 * (j & 1)
            a(f"v_cmp_eq_u32 s[{p}:{p+1}], {j}, {src}")
            a(f"v_cndmask_b32 v{sel+j}, 0, v15, s[{p}:{p+1}]")
    for (p, val) in ((60, 0xAAAAAAAA), (62, 0xCCCCCCCC), (64, 0xF0F0F0F0), (66, 0xFF00FF00), (68, 0xFFFF0000)):
        a(f"s_mov_b32 s{p}, {hex(val)}")
        a(f"s_mov_b32 s{p+1}, {hex(val)}")
    a(f"v_and_b32 v14, 31, {vL}")
    a(f"v_lshrrev_b32 v15, 5, {vL}")
    a("v_lshlrev_b32 v15, 2, v15")
    a("v_sub_u32 v14, v14, v15")
    for r in range(16):
        a(f"v_cmp_le_i32 s[{70+2*r}:{71+2*r}], {8*(r>>2) + (r&3)}, v14")
    return I

def pass1():
    I = dma_x(0) + dma_x(1) + stamp("xissued")
    t2 = [touch_h()] if OPT.touch else []
    if OPT.early: t2 += ([touch_q()] if OPT.touch else []) + (touch_mall() if OPT.mall else [])
    later = [dma_x(2), dma_x(3), dma_w("wK", 4, "K"), t2 + (e_bias_loads() if OPT.elate else [])]
    for kq in range(4):
        I.append(WaitVM(("x", kq)))
        if kq in (0, 3): I += stamp(f"x{kq}")
        for sp in range(8):
            s = 8 * kq + sp
            I.append(Ins(f"ds_read_b128 {X(s)}, v{96+sp} offset:{kq*8192}", lg=("xr", s)))
        if kq == 2 and not OPT.elate:
            I.append(WaitVM("bias"))
            I += [f"v_mov_b32 v{XS+j}, v{104+j}" for j in range(4)]
        steps = []
        for sp in range(8):
            s = 8 * kq + sp
            steps.append([WaitLG(("xr", s)),
                          MFMA(vr(DMEAN, 16), vr(CONSTA, 4), X(s), vr(DMEAN, 16) if s else "0"),
                          MFMA(vr(D2, 16), X(s), X(s), vr(D2, 16) if s else "0")])
        I += place(steps, steps_for(later[kq], 0, 1), [])
    I += stamp("pass1")
    if OPT.quit.strip() == "pass1": I += ["s_waitcnt vmcnt(0)", "s_endpgm"]
    I.append("s_barrier")
    return I

def stats():
    I = []
    a = I.append
    d = lambda i: f"v{D2+i}"
    for p in range(8): a(f"v_cndmask_b32 {d(2*p)}, {d(2*p)}, {d(2*p+1)}, {sBIT0}")
    for p in range(4): a(f"v_cndmask_b32 {d(4*p)}, {d(4*p)}, {d(4*p+2)}, {sBIT1}")
    for p in range(2): a(f"v_cndmask_b32 {d(8*p)}, {d(8*p)}, {d(8*p+4)}, {sBIT3}")
    a(f"v_cndmask_b32 {d(0)}, {d(0)}, {d(8)}, {sBIT4}")
    a(f"v_mul_f32 {d(2)}, v{DMEAN}, v{DMEAN}")
    a(f"v_mov_b32 {d(1)}, {d(0)}")
    a(f"v_mov_b32 {d(3)}, 0x3b000000")
    a(f"v_permlane32_swap_b32 {d(0)}, {d(1)}")
    a(f"v_mov_b32 {d(4)}, 0x3727c5ac")
    a(f"v_cndmask_b32 {d(0)}, {d(0)}, {d(1)}, {sBIT2}")
    a(f"v_fma_f32 {d(0)}, {d(0)}, {d(3)}, -{d(2)}")
    a(f"v_max_f32 {d(0)}, 0, {d(0)}")
    a(f"v_add_f32 {d(1)}, {d(0)}, {d(4)}")
    a(f"v_rsq_f32 {vR1}, {d(1)}")
    a(f"v_mul_f32 {d(1)}, {vR1}, {vR1}")
    a(f"v_fma_f32 {d(1)}, {d(0)}, {d(1)}, {d(4)}")
    a(f"v_rsq_f32 {d(1)}, {d(1)}")
    a(f"v_mul_f32 {d(1)}, {d(1)}, {vR1}")
    a(f"v_mul_f32 {vQs}, {hex(f2u(math.log2(math.e) / 4))}, {vR1}")
    a(f"v_rcp_f32 {vKinv}, {d(1)}")
    c1 = -2 * math.log2(math.e) * math.sqrt(2 / math.pi)
    a(f"v_mul_f32 {vK1}, {hex(f2u(c1))}, {d(1)}")
    a(f"v_mul_f32 {d(2)}, {d(1)}, {d(1)}")
    a(f"v_mul_f32 {d(2)}, {d(2)}, {d(1)}")
    a(f"v_mul_f32 {vK2}, {hex(f2u(c1 * 0.044715))}, {d(2)}")
    a(f"v_mul_f32 {d(0)}, 0.5, {vKinv}")
    a(f"v_cvt_pk_bf16_f32 {d(1)}, {d(0)}, {d(0)}")
    a(f"v_cvt_pk_bf16_f32 {d(2)}, {vR1}, {vR1}")
    a(f"v_and_b32 {d(1)}, 0xffff0000, {d(1)}")
    a(f"v_and_b32 {d(2)}, 0xffff0000, {d(2)}")
    a(f"v_sub_f32 {d(1)}, {d(0)}, {d(1)}")
    a(f"v_sub_f32 {d(2)}, {vR1}, {d(2)}")
    a(f"v_cvt_pk_bf16_f32 v{BINV}, {d(0)}, {d(1)}")
    a(f"v_cvt_pk_bf16_f32 v{RFRAG}, {vR1}, {d(2)}")
    a(f"v_mov_b32 v{CHALF}, 0x3f003f00")
    for b in (BINV, RFRAG, CHALF):
        for r in range(1, 4):
            a(f"v_mov_b32 v{b+r}, 0")
    return I

def center_cvts(j):
    buf = (ACC[1], ACC[0], WF)[j % 3]
    return [f"v_cvt_pk_bf16_f32 v{XF + 8*j + q}, v{buf + 2*q}, v{buf + 2*q + 1}" for q in range(8)]

def centering(at, fillers, mid):
    steps = []
    bufs = (ACC[1], ACC[0], WF)
    for j in range(16):
        st = []
        buf = vr(bufs[j % 3], 16)
        st.append(MFMA(buf, vr(SEL0, 4), X(2 * j), vr(DMEAN, 16)))
        if j >= 2:
            st += center_cvts(j - 2)[:4]
        st.append(MFMA(buf, vr(SEL1, 4), X(2 * j + 1), buf))
        if j >= 2:
            st += center_cvts(j - 2)[4:]
        steps.append(st)
    I = place(steps, at, fillers, start=3, end=15)
    I += mid
    I += stamp("center")
    return I

AWF = 216
def wf(n): return ar(AWF + 4 * (n % 8), 4)

def tr_reads(gstep, s, addr):
    b = AWF + 4 * (gstep % 8)
    return [Ins(f"ds_read_b64_tr_b16 {ar(b, 2)}, {addr} offset:{s*1024}", lg=("w", gstep)),
            Ins(f"ds_read_b64_tr_b16 {ar(b+2, 2)}, {addr} offset:{s*1024 + 512}", lg=("w", gstep))]

def epi_scale(acc, scale, pbuf):
    I = []
    for g in range(4):
        for r in range(4 * g, 4 * g + 4):
            sc = scale(r) if callable(scale) else scale
            I.append(f"v_mul_f32 v{acc+r}, v{acc+r}, {sc}")
        I.append(f"v_cvt_pk_bf16_f32 v{pbuf+2*g}, v{acc+4*g}, v{acc+4*g+1}")
        I.append(f"v_cvt_pk_bf16_f32 v{pbuf+2*g+1}, v{acc+4*g+2}, v{acc+4*g+3}")
    return I

def st_frag(reg, soff, off, tag):
    if OPT.nost and tag in ("kv", "h"): return "s_nop 0"
    return Ins(f"buffer_store_dwordx4 {vr(reg, 4)}, {vL16}, {srd(SWS)}, {soff} offen offset:{off}{OPT.sc}", vm=tag)

def epi_k(acc):
    return epi_scale(acc, vR1, PB[0])
def st_k():
    return [st_frag(PB[0], sKV, 0, "kv"), st_frag(PB[0] + 4, sKV, 1024, "kv")]

def epi_v(acc):
    return epi_scale(acc, lambda r: f"v{DMEAN+r}", PB[1])
def st_v():
    return [st_frag(PB[1], sKV, 2048, "kv"), st_frag(PB[1] + 4, sKV, 3072, "kv")]

def epi_q(acc):
    return epi_scale(acc, vQs, QF)

def epi_h(acc, j):
    p = PB[j & 1]
    I = []
    for g in range(4):
        u = [f"v{acc + 4*g + i}" for i in range(4)]
        t = [f"v{TT + i}" for i in range(4)]
        for i in range(4): I.append(f"v_mul_f32 {t[i]}, {u[i]}, {u[i]}")
        for i in range(4): I.append(f"v_fma_f32 {t[i]}, {t[i]}, {vK2}, {vK1}")
        for i in range(4): I.append(f"v_mul_f32 {t[i]}, {u[i]}, {t[i]}")
        for i in range(4): I.append(f"v_exp_f32 {t[i]}, {t[i]}")
        for i in range(4): I.append(f"v_fma_f32 {t[i]}, {t[i]}, {vKinv}, {vKinv}")
        for i in range(4): I.append(f"v_rcp_f32 {t[i]}, {t[i]}")
        for i in range(4): I.append(f"v_mul_f32 {t[i]}, {u[i]}, {t[i]}")
        I.append(f"v_cvt_pk_bf16_f32 v{p+2*g}, {t[0]}, {t[1]}")
        I.append(f"v_cvt_pk_bf16_f32 v{p+2*g+1}, {t[2]}, {t[3]}")
    return I

def st_h(j):
    p = PB[j & 1]
    return [Group([f"s_add_u32 {sT1}, {sHo}, {j*2048}", st_frag(p + 4 * s, sT1, s * 1024, "h")]) for s in range(2)]

def stores_at(st):
    return {OPT.st1: [st[0]], OPT.st2: [st[1]]}

def bias_prep(j):
    return [f"v_lshl_or_b32 v{ABIAS}, v{XS+j}, 16, v{XS+j}"]

def run_blocks(blocks):
    I = []
    trs = (vTrA, vTrB)
    nb = len(blocks)
    I.append(WaitLG(("w", 1 if OPT.w2 else 0)))
    for bi, B in enumerate(blocks):
        addr = trs[bi & 1]
        naddr = trs[(bi + 1) & 1]
        steps = []
        accr = vr(B["acc"], 16)
        for s in range(32):
            g = 32 * bi + s
            st = []
            if s == 0 and B.get("bias") is not None:
                st.append(MFMA(accr, vr(ABIAS, 4), vr(BINV, 4), "0"))
            c = accr if (s or B.get("bias") is not None) else "0"
            if B.get("swap"):
                st.append(MFMA(accr, X(s), wf(g), c))
            else:
                st.append(MFMA(accr, wf(g), X(s), c))
            last = 32 * nb - 1
            if OPT.w2:
                if g % 2 == 1 and g + 1 <= last:
                    st.append(WaitLG(("w", min(g + 2, last))))
            elif g + 1 <= last:
                st.append(WaitLG(("w", g + 1)))
            LK = OPT.lk
            if s + LK < 32:
                st += tr_reads(g + LK, s + LK, addr)
            elif bi + 1 < nb:
                if s == 32 - LK:
                    st += stamp(f"xa{bi}") + [WaitVM(blocks[bi + 1]["tag"])] + stamp(f"xw{bi}") + ["s_barrier"] + stamp(f"xb{bi}")
                st += tr_reads(g + LK, s + LK - 32, naddr)
            steps.append(st)
        fill = list(B.get("fill", []))
        if bi + 1 < nb:
            fill = [f"v_add_u32 {naddr}, {blocks[bi+1]['slot']*SLOT}, {vTr}"] + fill
        I += place(steps, B.get("at", {}), fill, start=B.get("fstart", 2), end=OPT.fend)
        I += stamp(f"blk{bi}" if B["name"] != "Q" else "blkQ")
    return I

def touch_mall():
    return [Group([f"v_and_b32 {vTmp}, 15, {vL}", f"v_lshlrev_b32 {vTmp}, 7, {vTmp}",
                   f"s_lshl_b32 {sT2}, s2, 2", f"s_add_u32 {sT2}, {sT2}, {sW}", f"s_lshl_b32 {sT2}, {sT2}, 11",
                   Ins(f"buffer_load_dword a251, {vTmp}, {srd(SW2)}, {sT2} offen", vm="t5")]),
            Group([f"v_and_b32 {vTmp}, 3, {vL}", f"v_lshlrev_b32 {vTmp}, 7, {vTmp}",
                   f"s_lshl_b32 {sT2}, s2, 2", f"s_add_u32 {sT2}, {sT2}, {sW}", f"s_lshl_b32 {sT2}, {sT2}, 9",
                   Ins(f"buffer_load_dword a250, {vTmp}, {srd(SWO)}, {sT2} offen", vm="t6")])]

def probe(item):
    fl = flatten([item])
    out = []
    for x in fl:
        if isinstance(x, Ins) and x.text.startswith("buffer_"):
            reg = "s34" if "store" in x.text else "s33"
            out += ["s_memtime s[0:1]", "s_waitcnt lgkmcnt(0)", "s_mov_b32 s35, s0", x,
                    "s_memtime s[0:1]", "s_waitcnt lgkmcnt(0)", "s_sub_u32 s0, s0, s35", f"s_add_u32 {reg}, {reg}, s0"]
        else:
            out.append(x)
    return Group(out)

def sched(*entries):
    at = {}
    for items, g0, stride in entries:
        for n, it in enumerate(items):
            at.setdefault(g0 + int(n * stride), []).append(it)
    return at

def sub_at(at, lo, hi):
    return {g - lo: v for g, v in at.items() if lo <= g < hi}

def phase1(variant):
    O = OPT
    I = []
    I += prologue()
    I += setup_idle()
    if OPT.probe: I += ["s_mov_b32 s33, 0", "s_mov_b32 s34, 0"]
    I += pass1()
    first = stamp("ka") + [WaitVM("wK")] + stamp("kw") + ["s_barrier", f"v_add_u32 {vTrA}, {4*SLOT}, {vTr}"]
    for s in range(OPT.lk):
        first += tr_reads(s, s, vTrA)
    A, B_ = ACC
    flag_kv = flag_store([f"s_lshl_b32 {sT1}, {sNB}, 8", f"s_lshl_b32 {sT2}, {sKT}, 2", f"s_add_u32 {sT1}, {sT1}, {sT2}",
                          f"s_add_u32 {sT1}, {sT1}, {WS_FKV}"], "fkv", "kv")
    st = O.wst / 10
    E = [(dma_w("wV", 0, "V"), O.gV, O.gVs / 10),
         (dma_w("wH0", 1, "H", 0), O.gH0, st), (dma_w("wH1", 2, "H", 1), O.gH1, st), (dma_w("wH2", 3, "H", 2), O.gH2, st)]
    tq = ([touch_q()] if O.touch else []) + (touch_mall() if O.mall else [])
    if not O.early: E.append((tq, O.gTq if variant == 0 else O.gTq1, 1))
    def S(stl, b): return [([stl[0]], 32 * b + O.st1, 1), ([stl[1]], 32 * b + O.st2, 1)]
    E += S(st_k(), 1) + S(st_v(), 2) + S(st_h(0), 3) + S(st_h(1), 4) + S(st_h(2), 5)
    E.append(([flag_kv], O.gFkv, 1))
    E.append((poll_kv_issue(), O.gPkv, 1))
    if variant == 0:
        E += [(dma_w("wH3", 0, "H", 3), O.gH3, st), (dma_w("wQ", 4, "Q"), O.gQ0, st)] + S(st_h(3), 6)
    else:
        E += [(dma_w("wQ", 4, "Q"), O.gQ1, st)]
    ck, ld = kv_stage(variant)
    E += [(ck, O.gKv, 1), (ld, O.gKv + 1, O.kst / 10)]
    if O.touch:
        E.append(([touch_wo()], O.gTwo, 1))
    at = sched(*E)
    I += centering(merge_at(sub_at(at, -16, 0), {1: ["s_nop 2"]}), stats(), first)
    zero_abias = [f"v_mov_b32 v{ABIAS+r}, 0" for r in range(1, 4)]
    tagcalc = [WaitVM("E"),
               Group([f"v_readfirstlane_b32 {sTAG}, {vTag}",
                      f"s_mul_i32 {sTAG}, {sTAG}, 0x41c64e6d", f"s_add_u32 {sTAG}, {sTAG}, 0x3039"]),
               f"v_mov_b32 {vTag}, {sTAG}"]
    rt = [MFMA(vr(DMEAN, 16), vr(RFRAG, 4), vr(CHALF, 4), "0")]
    blocks = [
        dict(name="K", slot=4, acc=A, tag="wK", fill=center_cvts(14) + center_cvts(15) + rt + zero_abias + tagcalc +
             ([WaitVM("bias")] + [f"v_mov_b32 v{XS+j}, v{104+j}" for j in range(4)] if OPT.elate else []), fstart=1),
        dict(name="V", slot=0, acc=B_, swap=True, tag="wV", fill=epi_k(A) + bias_prep(0)),
        dict(name="H0", slot=1, acc=A, bias=0, tag="wH0", fill=epi_v(B_) + bias_prep(1) + mask_regs()),
        dict(name="H1", slot=2, acc=B_, bias=1, tag="wH1", fill=epi_h(A, 0) + bias_prep(2)),
    ]
    if variant == 0:
        blocks += [
            dict(name="H2", slot=3, acc=A, bias=2, tag="wH2", fill=epi_h(B_, 1) + bias_prep(3) + kv_prep()),
            dict(name="H3", slot=0, acc=B_, bias=3, tag="wH3", fill=epi_h(A, 2)),
            dict(name="Q", slot=4, acc=A, tag="wQ", fill=epi_h(B_, 3))]
        qacc = A
    else:
        blocks += [
            dict(name="H2", slot=3, acc=A, bias=2, tag="wH2", fill=epi_h(B_, 1) + kv_prep()),
            dict(name="Q", slot=4, acc=B_, tag="wQ", fill=epi_h(A, 2))]
        qacc = B_
    for bi, B in enumerate(blocks):
        B["at"] = sub_at(at, 32 * bi, 32 * bi + 32)
        if OPT.probe and str(bi) in OPT.probe:
            for stp, lst in B["at"].items():
                B["at"][stp] = [probe(x) for x in lst]
    assert max(at) < 32 * len(blocks), max(at)
    I += run_blocks(blocks)
    I += stamp("ea") + [WaitVM("kvs")] + stamp("ew") + ["s_barrier"] + stamp("eb")
    I += att_first_reads() + epi_q(qacc)
    return I

VA = 124
vKa = "v3"
MM = 88
SBUF = (16, 32)
SDIAG = 64
PBUF = (96, 104)
PFAR = 80
OACC = (48, 64)
OPK = (16, 20)
cold = []

def mask_regs():
    I = [f"s_mov_b32 {sT2}, 0xffff"]
    for j in range(8):
        I += [f"v_cndmask_b32 v{MM+j}, 0, -1, s[{70+4*j}:{71+4*j}]",
              f"v_cndmask_b32 {vTmp}, 0, -1, s[{72+4*j}:{73+4*j}]",
              f"v_bfi_b32 v{MM+j}, {sT2}, v{MM+j}, {vTmp}"]
    return [I[0]] + [Group(I[1+3*j:4+3*j]) for j in range(8)]

def poll(tag, voff, soff, res=vPollR):
    return Ins(f"buffer_load_dword {res}, {voff}, {srd(SWS)}, {soff} offen sc1", vm=tag)

def poll_check(tag, voff, soff_setup, soff, name, res=vPollR, pre=()):
    cold.extend([Raw(f"L_spin_{name}:")] + [Ins(x) if isinstance(x, str) else x for x in pre] +
                [Ins(f"s_mov_b32 {sT3}, 0x4000"), Raw(f"L_spin2_{name}:")] +
                [Ins(x) for x in soff_setup] +
                [Ins(f"buffer_load_dword {res}, {voff}, {srd(SWS)}, {soff} offen sc1"),
                 Ins("s_waitcnt vmcnt(0)"),
                 Ins(f"v_cmp_ne_u32 vcc, {sTAG}, {res}"),
                 Ins("s_nop 0"),
                 Ins(f"s_cbranch_vccz L_back_{name}"),
                 Ins(f"s_sub_u32 {sT3}, {sT3}, 1"),
                 Ins(f"s_cmp_lg_u32 {sT3}, 0"),
                 Ins(f"s_cbranch_scc1 L_spin2_{name}"),
                 Ins(f"s_branch L_back_{name}")])
    return Group([WaitVM(tag), f"v_cmp_ne_u32 vcc, {sTAG}, {res}", "s_nop 0",
                  f"s_cbranch_vccnz L_spin_{name}", Raw(f"L_back_{name}:")])

KV_SOFF = [f"s_lshl_b32 {sT2}, {sNB}, 8", f"s_add_u32 {sT2}, {sT2}, {WS_FKV}"]
def poll_kv_issue():
    return [Group([f"v_min_u32 {vPoll}, 11, {vL}", f"s_lshl_b32 {sT2}, {sMB}, 2", f"s_sub_u32 {sT2}, {sT2}, 8",
                   f"v_add_u32 {vPoll}, {sT2}, {vPoll}", f"v_max_i32 {vPoll}, 0, {vPoll}", f"v_lshlrev_b32 {vPoll}, 2, {vPoll}"]
                  + KV_SOFF + [poll("pkv", vPoll, sT2)])]

def kv_prep():
    I = [f"s_mul_i32 {sT2}, {sW}, {KVR}", f"s_add_u32 {sT2}, {sT2}, {KVL}", f"v_add_u32 {vKa}, {sT2}, {vL16}",
         f"v_add_u32 v{VA}, 2048, {vKa}", f"v_add_u32 v{VA+1}, 3072, {vKa}",
         f"s_add_u32 {sT2}, {sT2}, 4096", f"v_mov_b32 {vTmp}, {sT2}"]
    I = [Group(I),
         f"v_cndmask_b32 v{VA+2}, {vTmp}, v{VA}, {sBIT4}", f"v_cndmask_b32 v{VA+3}, {vTmp}, v{VA+1}, {sBIT4}",
         f"v_cndmask_b32 v{VA}, v{VA}, {vTmp}, {sBIT4}", f"v_cndmask_b32 v{VA+1}, v{VA+1}, {vTmp}, {sBIT4}",
         Group([f"s_lshl_b32 {sT2}, {sNB}, 6", f"s_lshl_b32 {sT3}, {sMB}, 2", f"s_add_u32 {sT2}, {sT2}, {sT3}",
                f"s_mul_i32 {sT3}, {sW}, 3", f"s_add_u32 {sT2}, {sT2}, {sT3}", f"s_lshl_b32 {sKVL}, {sT2}, 12",
                f"s_add_u32 {sKVL}, {sKVL}, {WS_KV - 8*REC}",
                f"s_mul_i32 s17, {sW}, {3*KVR}"])]
    return I

def kv_stage(variant):
    ones = Group([f"v_mov_b32 v{TT+r}, 0x3f803f80" for r in range(0)] +
                 [f"v_min_u32 {vTmp}, 11, {vL}", f"s_movk_i32 {sT2}, {KVR}", f"v_mul_u32_u24 {vTmp}, {sT2}, {vTmp}",
                  f"v_add_u32 {vTmp}, {KVL + 4096}, {vTmp}", f"v_mov_b32 {vPollR}, 0x3f803f80",
                  Ins(f"ds_write2_b32 {vTmp}, {vPollR}, {vPollR} offset0:0 offset1:1", lg="ones"),
                  Ins(f"ds_write2_b32 {vTmp}, {vPollR}, {vPollR} offset0:2 offset1:3", lg="ones")])
    L = []
    for q in range(3):
        for u in range(4):
            pre = [f"s_add_u32 m0, s17, {KVL + q*KVR}", f"s_add_u32 s18, {sKVL}, {q*REC}"] if u == 0 else []
            L.append(Group(pre + [Ins(f"buffer_load_dwordx4 {vL16}, {srd(SWS)}, s18 offen offset:{u*1024}{OPT.sc} lds", vm="kvs")]))
    return [Group([poll_check("pkv", vPoll, KV_SOFF, sT2, f"kv{variant}"), ones])], (L if not OPT.nokv else [])

def rdK(t, hh):
    return Ins(f"ds_read_b128 {aK(t, hh)}, {vKa} offset:{t*KVR + hh*1024}", lg=("k", t, hh))
def rdV(t, s, hh):
    return Ins(f"ds_read_b128 {aV(t, s, hh)}, v{VA + 2*hh + s} offset:{t*KVR}", lg=("v", t, hh))

def att_first_reads():
    return [rdK(0, 0), rdK(8, 0), rdK(1, 0), rdK(2, 0)]

def att_reads():
    L = []
    V = lambda t, hh: [rdV(t, 0, hh), rdV(t, 1, hh)]
    L += V(0, 0) + V(8, 0) + [rdK(3, 0)] + V(1, 0) + [rdK(4, 0)] + V(2, 0) + [rdK(5, 0)] + V(3, 0) + [rdK(6, 0)]
    L += V(4, 0) + [rdK(7, 0)] + V(5, 0) + V(6, 0) + V(7, 0)
    L += [rdK(0, 1), rdK(8, 1), rdK(1, 1)] + V(0, 1) + V(8, 1) + [rdK(2, 1)]
    for t in range(1, 8):
        L += V(t, 1) + ([rdK(t + 2, 1)] if t + 2 <= 7 else [])
    return L

def zero_invalid():
    C = [Raw("L_zero:")]
    C += [Ins(x.text) for x in att_reads()]
    C += [Ins("s_waitcnt lgkmcnt(0)"), Ins("v_mov_b32 v15, 0")]
    for t in range(8):
        C += [Ins(f"s_add_u32 {sT2}, {sKT}, {t}"), Ins(f"s_cmp_ge_u32 {sT2}, 8"), Ins("s_cbranch_scc1 L_zero_done")]
        regs = [AK + 8*t + i for i in range(8)] + [AV + 16*t + i for i in range(16)]
        C += [Ins(f"v_accvgpr_write_b32 a{r}, v15") for r in regs]
    C += [Raw("L_zero_done:"), Ins("s_nop 1"), Ins("s_branch L_att_noread")]
    cold.extend(C)
    return [f"s_cmp_lt_u32 {sKT}, 8", "s_cbranch_scc1 L_zero"]

def fallback(hh):
    S, P, M, T = 24, 96, 40, 41
    O = OACC[hh]; Q = vr(QF + 4*hh, 4)
    C = [Raw(f"L_fb{hh}:"), Ins("s_nop 15"), Ins(f"v_mov_b32 v{M}, 0xff800000"), Ins(f"v_mov_b32 v{T+1}, 0xff800000")]
    def scores(t):
        c = [Ins(MFMA(vr(S, 16), aK(t, hh), Q, "0")), Ins("s_nop 15")]
        if t == 8:
            c += [Ins(f"v_cndmask_b32 v{S+r}, v{T+1}, v{S+r}, s[{70+2*r}:{71+2*r}]") for r in range(16)]
        if t == 0:
            c += [Ins(f"v_cndmask_b32 v{S+r}, v{S+r}, v{T+1}, s[{70+2*r}:{71+2*r}]") for r in range(16)]
        return c
    def guard(t, lab):
        if t == 8: return []
        return [Ins(f"s_add_u32 {sT2}, {sKT}, {t}"), Ins(f"s_cmp_lt_u32 {sT2}, 8"), Ins(f"s_cbranch_scc1 {lab}")]
    for t in range(9):
        lab = f"L_fb{hh}_a{t}"
        C += guard(t, lab) + scores(t)
        C += [Ins(f"v_max3_f32 v{M}, v{M}, v{S+2*j}, v{S+2*j+1}") for j in range(8)]
        C.append(Raw(lab + ":"))
    C += [Ins(f"v_mov_b32 v{T}, v{M}"), Ins("s_nop 1"), Ins(f"v_permlane32_swap_b32 v{M}, v{T}"), Ins("s_nop 1"),
          Ins(f"v_max_f32 v{M}, v{M}, v{T}")]
    C += [Ins(f"v_mov_b32 v{O+r}, 0") for r in range(16)]
    for t in range(9):
        lab = f"L_fb{hh}_b{t}"
        C += guard(t, lab) + scores(t)
        C += [Ins(f"v_sub_f32 v{S+r}, v{S+r}, v{M}") for r in range(16)]
        C += [Ins(f"v_exp_f32 v{S+r}, v{S+r}") for r in range(16)]
        C += [Ins("s_nop 0")]
        C += [Ins(f"v_cvt_pk_bf16_f32 v{P+j}, v{S+2*j}, v{S+2*j+1}") for j in range(8)]
        C += [Ins("s_nop 1")]
        for s in range(2):
            C.append(Ins(MFMA(vr(O, 16), aV(t, s, hh), vr(P + 4*s, 4), vr(O, 16))))
        C += [Ins("s_nop 7"), Raw(lab + ":")]
    C += [Ins("s_nop 15"), Ins(f"s_branch L_fb{hh}_back")]
    cold.extend(C)

def att_final(hh):
    O = OACC[hh]
    ol, ll = (O, O + 8) if hh == 0 else (O + 8, O)
    pk = OPK[hh]
    fallback(hh)
    I = [Group([f"v_subrev_u32 {vTmp}, 0x2b800000, v{ll}", f"v_cmp_lt_u32 vcc, 0x28000000, {vTmp}", "s_nop 0",
                f"s_cbranch_vccnz L_fb{hh}", Raw(f"L_fb{hh}_back:")]),
         f"v_rcp_f32 {vTmp}, v{ll}"]
    I += [f"v_mul_f32 v{ol+r}, v{ol+r}, {vTmp}" for r in range(8)]
    I += [f"v_cvt_pk_bf16_f32 v{pk+j}, v{ol+2*j}, v{ol+2*j+1}" for j in range(4)]
    I.append(Group([f"s_lshl_b32 {sT1}, {sKT}, 5", f"s_lshl_b32 {sT2}, {sNB}, 1", f"s_add_u32 {sT1}, {sT1}, {sT2}",
                    f"s_lshl_b32 {sT1}, {sT1}, 10", f"s_add_u32 {sT1}, {sT1}, {WS_O}",
                    Ins(f"buffer_store_dwordx4 {vr(pk, 4)}, {vL16}, {srd(SWS)}, {sT1} offen offset:{hh*1024}{OPT.sc}", vm="o")]))
    return I

def flag_store(idx_setup, tag, wait):
    return Group([WaitVM(wait)] + idx_setup + ["s_mov_b64 exec, 1",
                  Ins(f"buffer_store_dword {vTag}, off, {srd(SWS)}, {sT1} sc0 sc1", vm=tag),
                  "s_mov_b64 exec, -1"])

def flag_kt_nb(base):
    return [f"s_lshl_b32 {sT1}, {sKT}, 6", f"s_lshl_b32 {sT2}, {sNB}, 2", f"s_add_u32 {sT1}, {sT1}, {sT2}",
            f"s_add_u32 {sT1}, {sT1}, {base}"]

def attention(extra, reads):
    W = WaitLG if reads else (lambda *a: None)
    def s_mfma(G):
        hh, g = divmod(G, 8)
        Q = vr(QF + 4*hh, 4)
        b = vr(SBUF[G & 1], 16)
        if g == 0:
            return [[W(("k", 0, hh)), MFMA(b, aK(0, hh), Q, "0")],
                    [W(("k", 8, hh)), MFMA(vr(SDIAG, 16), aK(8, hh), Q, "0")]]
        return [[W(("k", g, hh)), MFMA(b, aK(g, hh), Q, "0")]]
    def pv(G):
        hh, g = divmod(G, 8)
        O = vr(OACC[hh], 16)
        P = PBUF[G & 1]
        if g == 0:
            return [[W(("v", 0, hh)), MFMA(O, aV(0, 0, hh), vr(PFAR, 4), "0")],
                    [MFMA(O, aV(0, 1, hh), vr(PFAR + 4, 4), O)],
                    [W(("v", 8, hh)), MFMA(O, aV(8, 0, hh), vr(P, 4), O)],
                    [MFMA(O, aV(8, 1, hh), vr(P + 4, 4), O)]]
        return [[W(("v", g, hh)), MFMA(O, aV(g, 0, hh), vr(P, 4), O)],
                [MFMA(O, aV(g, 1, hh), vr(P + 4, 4), O)]]
    I = []
    for m in s_mfma(0): I += m
    for G in range(16):
        hh, g = divmod(G, 8)
        S, P = SBUF[G & 1], PBUF[G & 1]
        mf = (s_mfma(G + 1) if G < 15 else []) + (pv(G - 1) if G > 0 else [])
        chunks = []
        if g == 0:
            cn = [f"v_cndmask_b32 v{S+r}, v{S+r}, v{SDIAG+r}, s[{70+2*r}:{71+2*r}]" for r in range(16)]
            chunks += [cn[0:4], cn[4:8], cn[8:12], cn[12:16]]
        for q in range(4):
            c = [f"v_exp_f32 v{S+4*q+i}, v{S+4*q+i}" for i in range(4)]
            if q > 0:
                c += [f"v_cvt_pk_bf16_f32 v{P+2*q-2}, v{S+4*q-4}, v{S+4*q-3}", f"v_cvt_pk_bf16_f32 v{P+2*q-1}, v{S+4*q-2}, v{S+4*q-1}"]
            chunks.append(c)
        chunks.append([f"v_cvt_pk_bf16_f32 v{P+6}, v{S+12}, v{S+13}", f"v_cvt_pk_bf16_f32 v{P+7}, v{S+14}, v{S+15}"])
        if g == 0:
            chunks.append([f"v_bfi_b32 v{PFAR+j}, v{MM+j}, 0, v{P+j}" for j in range(8)])
            chunks.append([f"v_and_b32 v{P+j}, v{MM+j}, v{P+j}" for j in range(8)])
        ex = list(extra.get(G, []))
        def is_vm(it):
            return any(isinstance(x, Ins) and x.text.startswith("buffer_") for x in flatten([it]))
        vm = [x for x in ex if is_vm(x)]
        ot = [x for x in ex if not is_vm(x)]
        seq = []
        k = 0
        ngap = len(chunks) - 1
        first_gap = 4 if g == 0 else 0
        slots = [[] for _ in range(ngap)]
        pos = 0
        nv = 0
        order = []
        for x in ex:
            order.append(x)
        per = max(1, -(-len(ot) // max(1, ngap)))
        gi = 0; cnt = 0
        for x in order:
            if is_vm(x):
                if any(is_vm(y) for y in slots[min(gi, ngap - 1)]) and gi < ngap - 1: gi += 1; cnt = 0
                slots[min(gi, ngap - 1)].append(x)
            else:
                if cnt >= per and gi < ngap - 1: gi += 1; cnt = 0
                slots[min(gi, ngap - 1)].append(x); cnt += 1
        ex = []
        for ci, c in enumerate(chunks):
            if k < len(mf):
                I += mf[k]; k += 1
            I += c
            if ci < ngap:
                I += slots[ci]
        while k < len(mf):
            I += mf[k]; k += 1
        I += ex
        if OPT.gst and G in (0, 1, 2, 3, 5, 7, 8, 9, 11, 13): I += stamp(f"g{G}", True)
    for m in pv(15): I += m
    return I

SIG = [0, 3, 4, 1, 2, 0, 3, 4, 1]
EXS = 2
vW2 = "v2"
ACB = (16, 32); ACS = (64, 128)
W3 = ((48, 52), (56, 60), (96, 100), (104, 108), (112, 116), (80, 84))
T3L = ("v8", "v9")
T3 = (("v5", "v6"), ("v11", "v7"))
vXo = "v3"
XR = 168
RX = 176
CQ = 88

def w2_prep():
    return [f"v_lshrrev_b32 {vTmp}, 3, {vL}", f"v_lshlrev_b32 {vTmp}, 10, {vTmp}",
            f"v_bfe_u32 {vW2}, {vL}, 4, 1", f"v_lshlrev_b32 {vW2}, 2, {vW2}",
            f"v_xor_b32 {vW2}, {vW2}, {vL}", f"v_and_b32 {vW2}, 7, {vW2}",
            f"v_lshl_add_u32 {vW2}, {vW2}, 4, {vTmp}"]

def rot_prep():
    rot = [f"s_and_b32 {sT2}, {sNB}, 7", f"s_and_b32 {sT3}, {sMB}, 3", f"s_lshl_b32 {sT3}, {sT3}, 1", f"s_add_u32 {sPaW}, {sT2}, {sT3}",
           f"s_cmp_ge_u32 {sPaW}, 7", f"s_cselect_b32 {sT2}, 7, 0", f"s_sub_u32 {sPaW}, {sPaW}, {sT2}"]
    if not OPT.rot:
        rot = [f"s_mov_b32 {sPaW}, 0"]
    return rot + [f"s_mov_b32 {sPaH}, {sPaW}",
                  f"s_lshr_b32 {sT2}, {sW}, 1", f"s_mul_i32 {sW2B}, {sT2}, 917504", f"s_lshl_b32 {sWOB}, {sT2}, 18",
                  f"s_and_b32 {sT2}, {sW}, 1", f"s_lshl_b32 {sT2}, {sT2}, 16",
                  f"s_add_u32 {sW2B}, {sW2B}, {sT2}", f"s_add_u32 {sWOB}, {sWOB}, {sT2}",
                  f"s_and_b32 {sT2}, {sNB}, 7", f"s_lshl_b32 {sT2}, {sT2}, 7",
                  f"s_add_u32 {sW2B}, {sW2B}, {sT2}", f"s_add_u32 {sWOB}, {sWOB}, {sT2}"]

def advance(pa):
    return [f"s_add_u32 {pa}, {pa}, 1", f"s_cmp_eq_u32 {pa}, 7", f"s_cselect_b32 {pa}, 0, {pa}"]

def stage_base(p):
    return [f"s_add_u32 {sWr}, {sPaW}, {p}", f"s_cmp_ge_u32 {sWr}, 7", f"s_cselect_b32 {sT3}, 7, 0", f"s_sub_u32 {sWr}, {sWr}, {sT3}",
            f"s_lshl_b32 {sWr}, {sWr}, 17", f"s_add_u32 {sWr}, {sWr}, {sW2B}"]

SG = 128
def sg_reg(p, n): return SG + 32 * (p - 5) + 4 * n

def dma_stage(p):
    I = []
    if OPT.nostage: return I
    for jj in range(4):
        for half in range(2):
            n = 2 * jj + half
            pre = []
            if p <= 6:
                base, s, c = sWr, SW2, (16 * jj + 8 * half) * 1024
                if n == 0: pre = stage_base(p)
            else:
                base, s, c = sWOB, SWO, (16 * (8 * (p - 7) + jj) + 8 * half) * 1024
            if p <= 4 or not OPT.v2:
                I.append(Group(pre + [f"s_add_u32 m0, {sLD}, {SIG[p]*SLOT + jj*2048 + half*1024}",
                                      f"s_add_u32 {sT0}, {base}, {c}",
                                      Ins(f"buffer_load_dwordx4 {vW2}, {srd(s)}, {sT0} offen lds", vm=("st", p))]))
            else:
                I.append(Group(pre + [f"s_add_u32 {sT0}, {base}, {c}",
                                      Ins(f"buffer_load_dwordx4 {vr(sg_reg(p, n), 4)}, {vW2}, {srd(s)}, {sT0} offen", vm=("sg", p))]))
    return I

def write_stage(p):
    I = [Group([WaitVM(("sg", p)), f"s_add_u32 {sT2}, {sLD}, {SIG[p]*SLOT}", f"v_add_u32 v4, {sT2}, {vL16}"])]
    for n in range(8):
        I.append(Ins(f"ds_write_b128 v4, {vr(sg_reg(p, n), 4)} offset:{n*1024}", lg=("sw", p)))
    return I

def p3_prep():
    I = [Group([f"s_lshr_b32 {sT2}, {sNB}, 3", f"s_lshl_b32 {sT2}, {sT2}, 1", f"s_and_b32 {sT3}, {sW}, 1",
                f"s_add_u32 {sT2}, {sT2}, {sT3}", f"s_lshl_b32 {sT3}, {sMB}, 2", f"s_add_u32 {sT2}, {sT2}, {sT3}",
                f"s_lshr_b32 {sT3}, {sW}, 1",
                f"s_mul_i32 {sH3}, {sT2}, 112", f"s_mul_i32 {sO3}, {sT3}, 56", f"s_add_u32 {sH3}, {sH3}, {sO3}",
                f"s_lshl_b32 {sH3}, {sH3}, 10", f"s_add_u32 {sH3}, {sH3}, {WS_H}",
                f"s_lshl_b32 {sO3}, {sT2}, 5", f"s_lshl_b32 {sF3}, {sT3}, 4", f"s_add_u32 {sO3}, {sO3}, {sF3}",
                f"s_lshl_b32 {sO3}, {sO3}, 10", f"s_add_u32 {sO3}, {sO3}, {WS_O}",
                f"s_lshl_b32 {sF3}, {sT2}, 6", f"s_lshl_b32 {sX3}, {sT3}, 5", f"s_add_u32 {sF3}, {sF3}, {sX3}",
                f"s_lshl_b32 {sX3}, {sT2}, 15", f"s_and_b32 {sT2}, {sNB}, 7", f"s_lshl_b32 {sT2}, {sT2}, 7",
                f"s_add_u32 {sX3}, {sX3}, {sT2}", f"s_lshl_b32 {sT3}, {sT3}, 6", f"s_add_u32 {sX3}, {sX3}, {sT3}"])]
    a = I.append
    a(f"v_lshrrev_b32 {T3L[0]}, 5, {vL}")
    a(f"v_lshlrev_b32 {T3L[0]}, 2, {T3L[0]}")
    a(f"v_bfe_u32 {vTmp}, {vL}, 2, 2")
    a(f"v_add_u32 {T3L[0]}, {T3L[0]}, {vTmp}")
    a(f"v_lshlrev_b32 {T3L[0]}, 7, {T3L[0]}")
    a(f"v_bfe_u32 {vTmp}, {vL}, 4, 1")
    a(f"v_lshlrev_b32 {vTmp}, 1, {vTmp}")
    a(f"v_bfe_u32 {T3L[1]}, {vL}, 1, 1")
    a(f"v_add_u32 {vTmp}, {vTmp}, {T3L[1]}")
    a(f"v_bfe_u32 {T3L[1]}, {vL}, 3, 1")
    a(f"v_lshl_add_u32 {vTmp}, {T3L[1]}, 2, {vTmp}")
    a(f"v_lshl_add_u32 {T3L[0]}, {vTmp}, 4, {T3L[0]}")
    a(f"v_and_b32 {vTmp}, 1, {vL}")
    a(f"v_lshl_add_u32 {T3L[0]}, {vTmp}, 3, {T3L[0]}")
    a(Group([f"s_lshr_b32 {sT3}, {sW}, 1", f"s_lshl_b32 {sT2}, {sT3}, 6", f"s_lshl_b32 {sT3}, {sT3}, 14",
             f"v_xor_b32 {T3L[0]}, {sT2}, {T3L[0]}", f"v_add_u32 {T3L[0]}, {sT3}, {T3L[0]}"]))
    a(f"v_xor_b32 {T3L[1]}, 64, {T3L[0]}")
    a(f"v_and_b32 {vPoll}, 7, {vL}")
    a(f"v_lshlrev_b32 {vPoll}, 2, {vPoll}")
    a(Group([f"v_and_b32 {vTmp}, 31, {vL}", f"v_lshlrev_b32 {vTmp}, 1, {vTmp}",
             f"s_and_b32 {sT2}, {sNB}, 7", f"s_lshl_b32 {sT2}, {sT2}, 7", f"s_lshr_b32 {sT3}, {sW}, 1",
             f"s_lshl_b32 {sT3}, {sT3}, 6", f"s_add_u32 {sT2}, {sT2}, {sT3}",
             Ins(f"buffer_load_ushort v10, {vTmp}, {srd(SB2)}, {sT2} offen", vm="b2")]))
    return I

def x_resid():
    I = [Group([f"v_and_b32 {vXo}, 31, {vL}", f"v_lshlrev_b32 {vXo}, 10, {vXo}", f"v_lshrrev_b32 {vTmp}, 5, {vL}",
                f"v_lshl_add_u32 {vXo}, {vTmp}, 3, {vXo}"])]
    for q in range(4):
        I.append(Ins(f"buffer_load_dwordx2 {vr(XR + 2*q, 2)}, {vXo}, {srd(SX)}, {sX3} offen offset:{16*q}", vm="xr"))
    return I

FH_SOFF = [f"s_add_u32 {sT2}, {sF3}, {WS_FH}"]
FO_SOFF = [f"s_add_u32 {sT2}, {sF3}, {WS_FO}"]

def frag_reg(k):
    if k < 10: return 216 + 4*k
    if k < 56: return 4*(k - 10)
    return 184 + 4*(k - 56)

sHq = "s17"
def frag_load(k):
    pre = []
    if k < 56:
        j8 = k & 7
        if j8 == 0:
            pre = [f"s_lshl_b32 {sHr}, {sPaH}, 13", f"s_add_u32 {sHr}, {sHr}, {sH3}"] + advance(sPaH)
        elif j8 == 4:
            pre = [f"s_add_u32 {sHr}, {sHr}, 4096"]
        so = sHr
    else:
        j = k - 56
        if (j & 3) == 0:
            pre = [f"s_add_u32 {sHq}, {sO3}, {(j >> 2)*4096}"]
        so = sHq
    if OPT.nohl: return Group(pre)
    return Group(pre + [Ins(f"buffer_load_dwordx4 {ar(frag_reg(k), 4)}, {vL16}, {srd(SWS)}, {so} offen offset:{(k & 3)*1024}{OPT.hsc}", vm=("f", k))])

def p3_reads(k):
    p, j8 = divmod(k, 8)
    I = []
    for j in range(2):
        b = W3[k % 6][j]; ad = T3[p & 1][j]
        I += [Ins(f"ds_read_b64_tr_b16 {vr(b, 2)}, {ad} offset:{j8*2048}", lg=("w3", k)),
              Ins(f"ds_read_b64_tr_b16 {vr(b+2, 2)}, {ad} offset:{j8*2048 + 1024}", lg=("w3", k))]
    return I

def t3_set(p):
    return [f"v_add_u32 {T3[p & 1][j]}, {SIG[p]*SLOT}, {T3L[j]}" for j in range(2)]

def phase3():
    LA = OPT.la
    I = []
    for k in range(OPT.ea, LA):
        I.append(frag_load(k))
    I += [f"v_mov_b32 v{CQ}, 0x3e803e80"] + [f"v_mov_b32 v{CQ+r}, 0" for r in range(1, 4)]
    I += [WaitVM("b2"), f"v_lshl_or_b32 v{ABIAS}, v10, 16, v10"]
    I += t3_set(0)
    I += [WaitVM(("st", 0), ("st", 1)), "s_barrier"]
    I += stamp("p3start", 2)
    I += [MFMA(vr(ACB[0], 16), vr(ABIAS, 4), vr(CQ, 4), "0")]
    for k in range(OPT.lk3):
        I += p3_reads(k)
    steps = []
    LK = OPT.lk3
    fills = {k: [] for k in range(72)}
    I += [WaitVM(("f", 1 if OPT.w2 else 0)), WaitLG(("w3", 1 if OPT.w2 else 0))]
    for k in range(72):
        p, j8 = divmod(k, 8)
        acc = ACB if p <= 6 else ACS
        st = []
        for j in range(2):
            first = (k == 0 and j == 1) or k == 56
            st.append(MFMA(vr(acc[j], 16), vr(W3[k % 6][j], 4), ar(frag_reg(k), 4), "0" if first else vr(acc[j], 16)))
            if j == 0:
                if OPT.w2:
                    if k % 2 == 1 and k + 1 < 72:
                        st.append(WaitLG(("w3", min(k + 2, 71))))
                elif k + 1 < 72:
                    st.append(WaitLG(("w3", k + 1)))
                if k + LK < 72:
                    k2 = k + LK
                    if k2 % 8 == 0:
                        p2 = k2 // 8
                        if p2 >= 2:
                            st += [WaitLG(("sw", p2)) if (OPT.v2 and p2 >= 5) else WaitVM(("st", p2))] + ([] if OPT.nobar else ["s_barrier"])
                    st += p3_reads(k2)[:2]
            else:
                if OPT.w2:
                    if k % 2 == 1 and k + 1 < 72 and not OPT.nowait:
                        st.append(WaitVM(("f", min(k + 2, 71))))
                elif k + 1 < 72 and not OPT.nowait:
                    st.append(WaitVM(("f", k + 1)))
                if k + LK < 72:
                    st += p3_reads(k + LK)[2:]
        if j8 == 1 and p + 1 <= 8:
            st += t3_set(p + 1)
        steps.append(st)
    for k in range(LA, 72):
        kk = k - LA
        if k >= 56:
            kk = OPT.kco + int((k - 56) * OPT.ost / 10)
        fills[kk].append(frag_load(k))
    for p2 in range(2, 6):
        d = write_stage(p2 + 3) if OPT.v2 else dma_stage(p2 + 3)
        for n, g in enumerate(d):
            k0 = max(8 * p2 - LK, (OPT.ks5, OPT.ks6, OPT.ks7, OPT.ks8)[p2 - 2])
            fills[k0 + int(n * OPT.kss / 10)].append(g)
    fills[OPT.kfo].insert(0, flag_store(flag_kt_nb(WS_FO), "fo", "o"))
    fills[OPT.kpo].insert(0, Group(FO_SOFF + [poll("po", vPoll, sT2)]))
    if not OPT.noep:
        fills[46].append(epoch_pre())
    fills[OPT.kco].insert(0, poll_check("po", vPoll, FO_SOFF, sT2, "o"))
    for n, g in enumerate(x_resid()):
        fills[50 + n].append(g)
    ex = EXS * SLOT
    B0, S0 = ACB[0], ACS[0]
    vEW, vER = "v12", "v14"
    fills[52] += [Group([f"s_add_u32 {sT2}, {sLD}, {ex}", f"v_add_u32 {vEW}, {sT2}, {vL16}",
                         f"s_xor_b32 {sT2}, {sT2}, 16384", f"v_add_u32 {vER}, {sT2}, {vL16}"])]
    for q in range(4):
        fills[57 + q // 2].append(Ins(f"ds_write_b128 {vEW}, {vr(ACB[1] + 4*q, 4)} offset:{q*1024}", lg="exwB"))
    kb = 64 - LK
    steps[kb] = [x for x in steps[kb]]
    i = next(n for n, x in enumerate(steps[kb]) if isinstance(x, str) and x == "s_barrier") if not OPT.nobar else 1
    steps[kb].insert(i, WaitLG("exwB"))
    for q in range(4):
        fills[kb + q // 2].append(Ins(f"ds_read_b128 {vr(RX + 4*q, 4)}, {vER} offset:{q*1024}", lg=("exr", q)))
    T = 208
    gate = [f"v_mov_b32 v10, {hex(f2u(-math.log2(math.e)))}", f"s_mov_b32 {sT3}, 0xffff0000"]
    for q in range(4):
        r = [4*q + i for i in range(4)]
        gate.append(WaitLG(("exr", q)))
        gate += [f"v_add_f32 v{B0+i}, v{B0+i}, v{RX+i}" for i in r]
        gate += [f"v_mul_f32 v{T+i}, v10, v{B0+r[i]}" for i in range(4)]
        gate += [f"v_exp_f32 v{T+i}, v{T+i}" for i in range(4)]
        gate += [f"v_add_f32 v{T+i}, 1.0, v{T+i}" for i in range(4)]
        gate += [f"v_rcp_f32 v{T+i}, v{T+i}" for i in range(4)]
        gate += [f"v_mul_f32 v{B0+r[i]}, v{B0+r[i]}, v{T+i}" for i in range(4)]
    gate.append(WaitVM("xr"))
    XU = RX
    for q in range(4):
        x0, x1 = XR + 2*q, XR + 2*q + 1
        gate += [f"v_lshlrev_b32 v{XU+4*q}, 16, v{x0}", f"v_and_b32 v{XU+4*q+1}, {sT3}, v{x0}",
                 f"v_lshlrev_b32 v{XU+4*q+2}, 16, v{x1}", f"v_and_b32 v{XU+4*q+3}, {sT3}, v{x1}"]
    g0 = kb + 2
    for n, x in enumerate(gate):
        fills[g0 + n * (72 - g0) // len(gate)].append(x)
    for k in range(72):
        I += steps[k] + fills[k]
        if k in (0, 7, 27, 41, 55, 56, 71) and not OPT.gst: I += stamp(f"k{k}", 2)
    for q in range(4):
        I.append(Ins(f"ds_write_b128 {vEW}, {vr(ACS[1] + 4*q, 4)} offset:{4096 + q*1024}", lg="exwS"))
    I += [WaitLG("exwS"), "s_barrier"]
    RS = RX + 16
    for q in range(4):
        I.append(Ins(f"ds_read_b128 {vr(RS + 4*q, 4)}, {vER} offset:{4096 + q*1024}", lg=("exs", q)))
    I += stamp("exch", 2)
    for q in range(4):
        r = [4*q + i for i in range(4)]
        I.append(WaitLG(("exs", q)))
        I += [f"v_add_f32 v{S0+i}, v{S0+i}, v{RS+i}" for i in r]
        I += [f"v_fma_f32 v{S0+i}, v{S0+i}, v{B0+i}, v{XU+i}" for i in r]
        x0, x1 = XR + 2*q, XR + 2*q + 1
        I += [f"v_cvt_pk_bf16_f32 v{x0}, v{S0+4*q}, v{S0+4*q+1}", f"v_cvt_pk_bf16_f32 v{x1}, v{S0+4*q+2}, v{S0+4*q+3}"]
        I.append(Ins(f"buffer_store_dwordx2 {vr(x0, 2)}, {vXo}, {srd(SOUT)}, {sX3} offen offset:{16*q}{OPT.outsc}", vm="out"))
    return I

EP = 224
def epoch_pre():
    C = [Raw("L_epre:"), Ins(f"s_mov_b32 {sT2}, {WS_FKV}")]
    for q in range(4):
        C.append(Ins(f"buffer_load_dwordx4 {vr(EP + 4*q, 4)}, {vL16}, {srd(SWS)}, {sT2} offen offset:{q*1024} sc1"))
    C.append(Ins("s_branch L_epre_back"))
    cold.extend(C)
    return Group([f"s_or_b32 {sT2}, s2, {sW}", f"s_cmp_eq_u32 {sT2}, 0", "s_cbranch_scc1 L_epre", Raw("L_epre_back:")])

def epoch_update():
    C = [Raw("L_epoch:"), Ins(f"s_mov_b32 {sT3}, 0x4000"), Ins("s_waitcnt vmcnt(4)"), Ins("s_branch L_epoch4"),
         Raw("L_epoch2:"), Ins(f"s_mov_b32 {sT2}, {WS_FKV}")]
    for q in range(4):
        C.append(Ins(f"buffer_load_dwordx4 {vr(EP + 4*q, 4)}, {vL16}, {srd(SWS)}, {sT2} offen offset:{q*1024} sc1"))
    C += [Ins("s_waitcnt vmcnt(0)"), Raw("L_epoch4:")]
    for r in range(16):
        C.append(Ins(f"v_xor_b32 v{EP+r}, {sTAG}, v{EP+r}"))
    for r in range(1, 16):
        C.append(Ins(f"v_or_b32 v{EP}, v{EP}, v{EP+r}"))
    C += [Ins(f"v_cmp_ne_u32 vcc, 0, v{EP}"), Ins("s_nop 0"), Ins("s_cbranch_vccz L_epoch3"),
          Ins(f"s_sub_u32 {sT3}, {sT3}, 1"), Ins(f"s_cmp_lg_u32 {sT3}, 0"), Ins("s_cbranch_scc1 L_epoch2"),
          Raw("L_epoch3:"), Ins("s_mov_b64 exec, 1"),
          Ins(f"buffer_store_dword {vTag}, off, {srd(SWS)}, 0 offset:{WS_E} sc0 sc1"),
          Ins("s_endpgm")]
    cold.extend(C)
    return [f"s_or_b32 {sT2}, s2, {sW}", f"s_cmp_eq_u32 {sT2}, 0", "s_cbranch_scc1 L_epoch"]

def dump_q():
    I = [f"s_lshl_b32 {sT1}, {sNB}, 6", f"s_add_u32 {sT1}, {sT1}, {sKT}", f"s_lshl_b32 {sT1}, {sT1}, 11",
         f"s_add_u32 {sT1}, {sT1}, {WS_DBG}"]
    I += [st_frag(QF, sT1, 0, "dq"), st_frag(QF + 4, sT1, 1024, "dq")]
    return I

def common_prefix(a, b):
    n = 0
    while n < len(a) and n < len(b) and type(a[n]) is type(b[n]) and a[n].text == b[n].text:
        n += 1
    return n

def spread(items, groups):
    d = {}
    n = len(items)
    for i, it in enumerate(items if n else []):
        d.setdefault(groups[i * len(groups) // n], []).append(it)
    return d

def finish(items, st, errors, history=()):
    r = resolve(items, st, errors)
    if OPT.opt:
        r = shadow_sink(shadow_fill(r))
    return auto_nop(r, history)

def build():
    errors = []
    sa, sb = State(), State()
    A = finish(phase1(0), sa, errors)
    B = finish(phase1(1), sb, errors)
    hazards(A, errors, "p1/var0"); fresh_store_check(A, errors, "var0")
    hazards(B, errors, "p1/var1"); fresh_store_check(B, errors, "var1")
    n = common_prefix(A, B)
    out = A[:n] + [Ins(f"s_cmp_eq_u32 {sVAR}, 1"), Ins("s_cbranch_scc1 L_var1")] + A[n:] + \
        [Ins("s_branch L_join1"), Raw("L_var1:")] + B[n:] + [Raw("L_join1:")]
    from asmlib import _rw
    for L in (A, B):
        for it in L[n:]:
            if not isinstance(it, Ins): continue
            r, w = _rw(Dec(it.text))
            if ("s", "scc") in r:
                errors.append("SCC live across the variant split: " + it.text)
            if ("s", "scc") in w: break
    st = State.merge(sa, sb)
    f0, f1 = att_final(0), att_final(1)
    pp = p3_prep()
    def att_extra(reads):
        R = att_reads() if reads else []
        ex = [spread(R, [0, 1, 2, 3, 4, 5, 6])] if R else []
        ex.append({0: w2_prep() + rot_prep()})
        order = dma_stage(0) + dma_stage(1) + dma_stage(2)
        if OPT.v2:
            order += dma_stage(5) + dma_stage(6)
            ex.append(spread(order, [1, 2, 3, 4, 5, 6, 7, 8, 9]))
            ex.append(spread(dma_stage(7) + dma_stage(8) + dma_stage(3) + dma_stage(4), [10, 11, 12, 13, 14, 15]))
        else:
            ex.append(spread(order, list(range(OPT.sa0, OPT.sa1 + 1))))
            ex.append(spread(dma_stage(3) + dma_stage(4), list(range(OPT.sb0, OPT.sb1 + 1))))
        ex.append(spread(pp, [3, 4, 5]))
        ex.append({OPT.gh: [flag_store(flag_kt_nb(WS_FH), "fh", "h")]})
        ex.append({8: [Group(["s_waitcnt lgkmcnt(0)", "s_barrier"])]})
        ex.append({OPT.gph: [Group(FH_SOFF + [poll("ph", vPoll, sT2)])]})
        if OPT.ea:
            ex.append({OPT.gch: [poll_check("ph", vPoll, FH_SOFF, sT2, "h" + ("a" if reads else "b"))]})
            ex.append(spread([frag_load(k) for k in range(OPT.ea)], list(range(OPT.gch + 1, 16))))
        m = {}
        for G in range(16):
            cats = [list(d.get(G, [])) for d in ex]
            pre = [c for c in cats if c and getattr(c[0], "first", False)]
            out = []
            cats = [c for c in cats if c]
            while any(cats):
                for c in cats:
                    if c: out.append(c.pop(0))
            m[G] = out
        return m
    tail0 = stamps_move() + stamp("att0", True) + (["s_waitcnt vmcnt(0)", "s_endpgm"] if OPT.quit.strip() == "att0" else []) + zero_invalid()
    hist = A[-30:] + B[-30:]
    T0 = finish(tail0, st, errors, hist)
    s1 = st.copy(); s2 = st.copy()
    AT1 = finish(attention(att_extra(True), True), s1, errors, B[-30:] + T0)
    AT1 = auto_nop(AT1, A[-30:] + T0)
    s2.lg = {}; s2.lg_regs = {}
    AT2 = finish(attention(att_extra(False), False), s2, errors)
    st = State.merge(s1, s2)
    tail = f0 + f1 + stamp("att1", True)
    if OPT.stop == "att":
        tail += [flag_store(flag_kt_nb(WS_FO), "fo", "o")] + dump_q()
    else:
        early_o = [Ins("s_waitcnt vmcnt(0)")] + [Ins(x) for x in flag_kt_nb(WS_FO)] + \
                  [Ins("s_mov_b64 exec, 1"), Ins(f"buffer_store_dword {vTag}, off, {srd(SWS)}, {sT1} sc0 sc1"), Ins("s_mov_b64 exec, -1")]
        if not OPT.ea:
            tail += [poll_check("ph", vPoll, FH_SOFF, sT2, "h", pre=early_o)]
        tail += stamp("pollH", 2)
        tail += phase3()
        if OPT.calib:
            tail += [f"s_mov_b32 s3, {OPT.calib}", Raw("L_cal:"), "s_sub_u32 s3, s3, 1", "s_cmp_lg_u32 s3, 0", "s_cbranch_scc1 L_cal"]
        tail += stamp("end", 2) + stamps_out() + (epoch_update() if not OPT.noep else [])
    tail += ["s_waitcnt vmcnt(0)"]
    T = finish(tail, st, errors, AT1[-30:])
    T = auto_nop(T, AT2[-30:])
    hazards(A[-40:] + T0 + AT1 + T, errors, "att/var0")
    hazards(B[-40:] + T0 + AT1 + T, errors, "att/var1")
    hazards(AT2 + T, errors, "att/copy2")
    fresh_store_check(AT1 + T, errors, "tail")
    out += T0 + AT1 + [Raw("L_att_join:")] + T
    out += [Raw("L_hot_end:"), Raw("L_end:"), Ins("s_endpgm")]
    C = flatten(cold)
    hazards(C, errors, "cold")
    out += C + [Raw("L_att_noread:")] + AT2 + [Ins("s_branch L_att_join")]
    info = dict(est_a=est_cycles(A), est_b=est_cycles(B), est_att=est_cycles(AT1), est_t=est_cycles(T), prefix=n, na=len(A), nb=len(B))
    return out, errors, info

HEADER = """; Fused LayerNorm -> QKV -> sliding-window attention -> Wo, gated by SiLU(channel MLP), one persistent launch.
; @launch grid=(256,1,1) block=(256,1,1) lds=163840
.amdgcn_target "amdgcn-amd-amdhsa--gfx950"
.text
.globl {name}
.p2align 8
.type {name},@function
{name}:
"""
FOOTER = """.section .rodata,"a"
.p2align 6
.amdhsa_kernel {name}
  .amdhsa_next_free_vgpr 512
  .amdhsa_next_free_sgpr 102
  .amdhsa_accum_offset 256
  .amdhsa_group_segment_fixed_size 0
  .amdhsa_kernarg_size 88
  .amdhsa_user_sgpr_count 2
  .amdhsa_user_sgpr_kernarg_segment_ptr 1
  .amdhsa_system_sgpr_workgroup_id_x 1
  .amdhsa_float_denorm_mode_32 3
.end_amdhsa_kernel
"""

def main():
    args = sys.argv[1:]
    outp = args[0]
    for kv in args[1:]:
        k, v = kv.split("=")
        cur = getattr(OPT, k)
        setattr(OPT, k, (v not in ("0", "False")) if isinstance(cur, bool) else (int(v) if isinstance(cur, int) else (" " + v if v else "")))
    items, errors, info = build()
    if OPT.nocheck: errors = []
    for e in errors:
        print("ERROR:", e)
    print(info)
    if OPT.stamps: print("STAMPS", len(STAMP_NAMES), ",".join(STAMP_NAMES))
    txt = HEADER.format(name=NAME) + text_of(items) + FOOTER.format(name=NAME)
    open(outp, "w").write(txt)
    if errors:
        sys.exit(1)

if __name__ == "__main__":
    main()
```

```python
import sys, os, math, struct
from asmlib import *

NAME = "recurrent_scan__sliding_block__mixer_channel_mlp__prompt_kernel"

def f2u(x):
    return struct.unpack("<I", struct.pack("<f", x))[0]

WS_E = 0x0
WS_FKV = 0x1000
WS_FH = 0x2000
WS_FO = 0x3000
WS_KV = 0x10000
REC = 4096
WS_O = 0x500000
WS_H = 0x700000
WS_DBG = 0xE00000
WS_SIZE = 0x2000000

SX, SWQ, SWO, SW1, SW2, SOUT, SWS, SB1, SB2 = 4, 8, 12, 16, 20, 24, 28, 32, 36
def srd(b): return f"s[{b}:{b+3}]"
sMB, sNB, sW, sTAG, sKT, sHB0 = "s40", "s41", "s42", "s43", "s44", "s45"
sI, sVAR = "s46", "s47"
sT0, sT1, sT2, sT3 = "s48", "s49", "s50", "s51"
sXO, sLW, sQB, sH1, sLD = "s52", "s53", "s54", "s55", "s56"
sKV, sHo, sW2B = "s57", "s58", "s59"
sBIT0, sBIT1, sBIT2, sBIT3, sBIT4 = "s[60:61]", "s[62:63]", "s[64:65]", "s[66:67]", "s[68:69]"
sWOB, sH3, sO3, sF3, sX3 = "s52", "s53", "s54", "s55", "s45"
sPaH, sHr, sPaW, sWr = "s8", "s9", "s10", "s11"
sKVL = "s16"

vL = "v0"
vL16, vWq, vW1, vTr = "v1", "v2", "v3", "v4"
vTrA, vTrB = "v5", "v11"
vK1, vK2, vKinv, vR1, vQs = "v6", "v7", "v8", "v9", "v10"
vPoll, vTag, vPollR, vTmp = "v12", "v13", "v14", "v15"
ACC = (16, 32)
WF = 48
DMEAN = 64
D2 = 80
TT = 80
BINV, RFRAG, CHALF = 84, 88, 92
PB = (96, 104)
CONSTA, SEL0, SEL1 = 112, 116, 120
QF = 112
ABIAS = 120
XS = 124
XF = 128

def vr(b, n=1):
    return f"v{b}" if n == 1 else f"v[{b}:{b+n-1}]"
def ar(b, n=1):
    return f"a{b}" if n == 1 else f"a[{b}:{b+n-1}]"
def X(s): return vr(XF + 4 * s, 4)
def MFMA(d, a, b, c):
    return f"v_mfma_f32_32x32x16_bf16 {d}, {a}, {b}, {c}"

AK, AV = 0, 72
def aK(t, hh): return ar(AK + 8 * t + 4 * hh, 4)
def aV(t, s, hh): return ar(AV + 16 * t + 8 * s + 4 * hh, 4)

SLOT = 32768
KVL = SLOT
KVR = 4160

class Opt:
    stop = None
    stamps = False
    sc = " sc1"
    la = 10
    touch = True
    rot = True
    gh = 4
    gph = 13
    kpo = 30
    kco = 40
    st1 = 24
    st2 = 30
    dstart = 1
    dstride10 = 27
    mall = True
    outsc = " sc1"
    opt = True
    gst = False
    lk = 5
    fend = 30
    tlb = False
    h0s = 4
    gV = -8
    gVs = 10
    wst = 27
    gH0 = 2
    gH1 = 33
    gH2 = 65
    gTq = 118
    gH3 = 96
    gTq1 = 90
    gQ1 = 112
    gQ0 = 144
    gFkv = 128
    gPkv = 156
    gKv = 167
    kst = 13
    early = False
    v2 = False
    gTwo = 188
    nohl = False
    hsc = " sc1"
    lk3 = 4
    nowait = False
    nobar = False
    nocheck = False
    only = ""
    calib = 0
    quit = ""
    noep = False
    w2 = True
    ea = 0
    gch = 13
    kfo = 4
    ost = 10
    ks5 = 0
    ks6 = 0
    ks7 = 0
    ks8 = 0
    kss = 10
    probe = ""
    elate = False
    tx = True
    sa0 = 1
    sa1 = 8
    sb0 = 9
    sb1 = 15
    amp = ""
    nost = False
    nodma = False
    nostage = False
    nokv = False
OPT = Opt()

STAMP_NAMES = ["start"]
def sreg(i):
    return 180 + i
LATE = {}
LATE_REGS = [33, 34, 35, 19, 46] + list(range(70, 102))
def stamp(name, late=False):
    if OPT.amp:
        a, b, K = OPT.amp.strip().split(":")
        if name == a: return [Group(["s_memtime s[0:1]", "s_waitcnt lgkmcnt(0)", "s_mov_b32 s3, s0"])]
        if name == b: return [Group(["s_memtime s[0:1]", "s_waitcnt lgkmcnt(0)", "s_sub_u32 s33, s0, s3"])]
        return []
    if not OPT.stamps:
        return []
    if OPT.only and name not in OPT.only.replace(" ", "").split("+"):
        return []
    if name not in STAMP_NAMES:
        STAMP_NAMES.append(name)
    i = STAMP_NAMES.index(name)
    if late:
        if name not in LATE:
            pool = LATE_REGS[:5] if late is True else LATE_REGS[5:]
            LATE[name] = [r for r in pool if r not in LATE.values()][0]
        mv = f"s_mov_b32 s{LATE[name]}, s0"
    else:
        mv = f"v_accvgpr_write_b32 a{sreg(i)}, s0"
    return [Group(["s_memtime s[0:1]", "s_waitcnt lgkmcnt(0)", mv])]

def stamps_move():
    if not OPT.stamps: return []
    I = ["s_lshl_b32 s3, s2, 2", f"s_add_u32 s3, s3, {sW}", "s_lshl_b32 s3, s3, 7", f"s_add_u32 s3, s3, {WS_DBG + (4 << 20)}"]
    n = len(STAMP_NAMES)
    for i in range(n):
        I.append(f"v_accvgpr_read_b32 v{128+i}, a{sreg(i)}")
    I.append("v_accvgpr_read_b32 v160, a179")
    for i in range(n):
        I.append(Ins(f"buffer_store_dword v{128+i}, off, {srd(SWS)}, s3 offset:{4*i}"))
    I.append(Ins(f"buffer_store_dword v160, off, {srd(SWS)}, s3 offset:120"))
    return I

def stamps_out():
    if not OPT.stamps: return []
    I = ["s_memrealtime s[0:1]", "s_waitcnt lgkmcnt(0)", "v_mov_b32 v16, s0",
         Ins(f"buffer_store_dword v16, off, {srd(SWS)}, s3 offset:124")]
    if OPT.probe:
        I += ["v_mov_b32 v40, s33", "v_mov_b32 v41, s34", Ins(f"buffer_store_dword v40, off, {srd(SWS)}, s3 offset:112"), Ins(f"buffer_store_dword v41, off, {srd(SWS)}, s3 offset:116")]
    for n, (name, r) in enumerate(LATE.items()):
        I += [f"v_mov_b32 v{17+n}, s{r}", Ins(f"buffer_store_dword v{17+n}, off, {srd(SWS)}, s3 offset:{4*STAMP_NAMES.index(name)}")]
    return I

def prologue():
    I = []
    a = I.append
    a("s_cmp_ge_u32 s2, 256" if OPT.quit.strip() != "start" else "s_cmp_ge_u32 s2, 0")
    a("s_cbranch_scc1 L_end")
    for (b, off) in ((SX, 0), (SWQ, 8), (SWS, 80), (SB1, 40), (SW1, 32), (SWO, 16), (SW2, 48), (SB2, 56), (SOUT, 64)):
        a(f"s_load_dwordx2 s[{b}:{b+1}], s[0:1], {off}")
    if OPT.amp and OPT.amp.strip().startswith("start"):
        a("s_memtime s[98:99]")
    if OPT.stamps:
        a("s_memtime s[98:99]")
        a("s_memrealtime s[96:97]")
    a("s_getpc_b64 s[60:61]")
    a(Raw("L_pc:"))
    a("v_lshrrev_b32 v2, 6, v0")
    a("v_and_b32 v1, 3, v0")
    a("v_lshl_add_u32 v1, v2, 2, v1")
    a(f"s_lshr_b32 {sI}, s2, 3")
    a(f"s_lshl_b32 s49, {sI}, 11")
    a("v_lshlrev_b32 v1, 7, v1")
    a("v_add_u32 v1, s49, v1")
    a("s_mov_b32 s50, L_hot_end-L_pc-4")
    a("v_min_u32 v1, s50, v1")
    a("v_readfirstlane_b32 s42, v2")
    a(Ins("global_load_dword a255, v1, s[60:61]", vm="pf"))
    a("s_and_b32 s49, s2, 7")
    a("s_lshr_b32 s50, s49, 1")
    a("s_lshl_b32 s50, s50, 2")
    a(f"s_and_b32 s51, {sI}, 3")
    a(f"s_add_u32 {sMB}, s50, s51")
    a("s_and_b32 s50, s49, 1")
    a("s_lshl_b32 s50, s50, 3")
    a(f"s_lshr_b32 s51, {sI}, 2")
    a(f"s_add_u32 {sNB}, s50, s51")
    a("v_and_b32 v0, 63, v0")
    for (b, size) in ((SX, 2048*512*2), (SWQ, 512*1536*2), (SWS, WS_SIZE), (SB1, 1792*2)):
        a(f"s_mov_b32 s{b+2}, {size}")
        a(f"s_mov_b32 s{b+3}, 0x20000")
    a(f"s_lshr_b32 s50, {sNB}, 1")
    a("s_mul_i32 s50, s50, 7")
    a(f"s_and_b32 {sVAR}, {sNB}, 1")
    a(f"s_lshl_b32 s51, {sVAR}, 2")
    a(f"s_add_u32 {sHB0}, s50, s51")
    if OPT.touch:
        a(f"s_cmp_lt_u32 {sW}, 2")
        a("s_cbranch_scc0 L_tw")
        a(f"s_lshr_b32 s50, {sMB}, 2")
        a("s_lshl_b32 s50, s50, 9")
        a(f"s_lshl_b32 s51, {sI}, 4")
        a("s_add_u32 s50, s50, s51")
        a(f"s_lshl_b32 s51, {sW}, 3")
        a("s_add_u32 s50, s50, s51")
        a("s_lshl_b32 s50, s50, 10")
        a(f"v_lshrrev_b32 v1, 3, {vL}")
        a(f"v_and_b32 v2, 7, {vL}")
        a("v_lshlrev_b32 v2, 7, v2")
        a("v_lshl_add_u32 v1, v1, 10, v2")
        a("s_waitcnt lgkmcnt(0)")
        a(Ins(f"buffer_load_dword a254, v1, {srd(SX)}, s50 offen", vm="t1") if OPT.tx else Ins(f"buffer_load_dword a254, off, {srd(SX)}, s50", vm="t1"))
        a("s_branch L_td")
        a(Raw("L_tw:"))
        a(f"s_mul_i32 s50, {sI}, {16*3072}")
        a(f"s_lshr_b32 s51, {sNB}, 3")
        a("s_lshl_b32 s51, s51, 9")
        a("s_add_u32 s50, s50, s51")
        a(f"s_sub_u32 s51, {sW}, 1")
        a("s_lshl_b32 s51, s51, 10")
        a("s_add_u32 s50, s50, s51")
        a(f"v_lshrrev_b32 v1, 2, {vL}")
        a(f"v_and_b32 v2, 3, {vL}")
        a("v_lshlrev_b32 v2, 7, v2")
        a("s_movk_i32 s51, 3072")
        a("v_mad_u32_u24 v1, v1, s51, v2")
        a("s_waitcnt lgkmcnt(0)")
        a(Ins(f"buffer_load_dword a254, v1, {srd(SWQ)}, s50 offen", nocount=True))
        a(Raw("L_td:"))
    a("s_waitcnt lgkmcnt(0)")
    if OPT.amp and OPT.amp.strip().startswith("start"):
        a("s_mov_b32 s3, s98")
    I += stamp("karg")
    if not OPT.elate:
        I += e_bias_loads()
    if OPT.tlb:
        for (b, size) in ((SW1, 512*1792*2), (SWO, 512*512*2), (SW2, 1792*512*2), (SB2, 512*2), (SOUT, 2048*512*2)):
            a(f"s_mov_b32 s{b+2}, {size}")
            a(f"s_mov_b32 s{b+3}, 0x20000")
        for n, b in enumerate((SW1, SW2, SWO, SB2, SOUT)):
            a(Ins(f"buffer_load_dword a{240+n}, off, {srd(b)}, 0", vm=("tlb", n)))
        a(f"v_and_b32 v12, 7, {vL}")
        a("v_lshlrev_b32 v12, 21, v12")
        a(Ins(f"buffer_load_dword a245, v12, {srd(SWS)}, 0 offen offset:2048 sc1", vm=("tlb", 5)))
    a(f"s_lshl_b32 {sKT}, {sMB}, 2")
    a(f"s_add_u32 {sKT}, {sKT}, {sW}")
    a(f"s_lshl_b32 {sXO}, {sKT}, 15")
    a(f"s_lshl_b32 {sLW}, {sW}, 15")
    a(f"v_lshrrev_b32 v14, 4, {vL}")
    a(f"v_and_b32 v12, 15, {vL}")
    a("v_xor_b32 v12, v12, v14")
    a("v_lshlrev_b32 v12, 4, v12")
    a(f"v_lshl_add_u32 v{XS}, v14, 10, v12")
    for j in range(1, 4):
        a(f"v_xor_b32 v{XS+j}, {64*j}, v{XS}")
    a(f"s_lshl_b32 {sLD}, {sW}, 13")
    a(f"s_mul_i32 {sQB}, {sW}, {8*16*3072}")
    a(f"s_lshl_b32 s50, {sNB}, 6")
    a(f"s_add_u32 {sQB}, {sQB}, s50")
    a(f"v_lshlrev_b32 {vL16}, 4, {vL}")
    a(f"v_lshrrev_b32 v14, 2, {vL}")
    a(f"v_and_b32 v12, 3, {vL}")
    a("v_lshlrev_b32 v12, 4, v12")
    a("s_movk_i32 s50, 3072")
    a("s_movk_i32 s51, 3584")
    a(f"v_mad_u32_u24 {vWq}, v14, s50, v12")
    a(f"v_mad_u32_u24 {vW1}, v14, s51, v12")
    a(f"s_mul_i32 {sH1}, {sW}, {8*16*3584}")
    a(f"s_lshl_b32 s50, {sHB0}, 6")
    a(f"s_add_u32 {sH1}, {sH1}, s50")
    a(f"s_lshl_b32 s50, {sNB}, 6")
    a(f"s_add_u32 s50, s50, {sKT}")
    a(f"s_lshl_b32 {sKV}, s50, 12")
    a(f"s_add_u32 {sKV}, {sKV}, {WS_KV}")
    a(f"s_mul_i32 s50, {sKT}, 112")
    a(f"s_lshl_b32 s51, {sHB0}, 1")
    a("s_add_u32 s50, s50, s51")
    a("s_lshl_b32 s50, s50, 10")
    a(f"s_add_u32 {sHo}, s50, {WS_H}")
    for (b, size) in ((SW1, 512*1792*2), (SWO, 512*512*2), (SW2, 1792*512*2), (SB2, 512*2), (SOUT, 2048*512*2)):
        a(f"s_mov_b32 s{b+2}, {size}")
        a(f"s_mov_b32 s{b+3}, 0x20000")
    if OPT.stamps:
        a("v_accvgpr_write_b32 a180, s98"); a("v_accvgpr_write_b32 a179, s96")
    return I

def e_bias_loads():
    I = [Ins(f"buffer_load_dword {vTag}, off, {srd(SWS)}, 0 offset:{WS_E}{OPT.sc}", vm="E"),
         Group([f"v_and_b32 v14, 31, {vL}", "v_lshlrev_b32 v14, 1, v14", f"s_lshl_b32 {sT1}, {sHB0}, 6"] +
               [Ins(f"buffer_load_ushort v{104+j}, v14, {srd(SB1)}, {sT1} offen offset:{64*j}", vm="bias") for j in range(4)])]
    return I

def dma_x(kq):
    I = []
    for g in range(8):
        I.append(Group([f"s_add_u32 m0, {sLW}, {kq*8192 + g*1024}",
                        f"s_add_u32 {sT0}, {sXO}, {g*4096 + kq*256}",
                        Ins(f"buffer_load_dwordx4 v{XS + (g & 3)}, {srd(SX)}, {sT0} offen lds", vm=("x", kq))]))
    return I

def dma_w(tag, slot, kind, j=0):
    I = []
    if OPT.nodma and tag not in ("wK", "wV"): return I
    for i8 in range(8):
        if kind == "H":
            base, voff, s, c = sH1, vW1, SW1, j * 64 + i8 * 16 * 3584
        else:
            base, voff, s, c = sQB, vWq, SWQ, {"Q": 0, "K": 1024, "V": 2048}[kind] + i8 * 16 * 3072
        I.append(Group([f"s_add_u32 m0, {sLD}, {slot*SLOT + i8*1024}",
                        f"s_add_u32 {sT0}, {base}, {c}",
                        Ins(f"buffer_load_dwordx4 {voff}, {srd(s)}, {sT0} offen lds", vm=tag)]))
    return I

def touch_h():
    return Group([f"v_and_b32 {vTmp}, 3, {vL}", f"s_lshl_b32 {sT2}, {sW}, 2", f"v_add_u32 {vTmp}, {sT2}, {vTmp}",
                  f"v_min_u32 {vTmp}, 13, {vTmp}", f"v_lshlrev_b32 {vTmp}, 7, {vTmp}",
                  f"v_lshrrev_b32 {vPoll}, 2, {vL}", f"s_movk_i32 {sT2}, 3584", f"v_mad_u32_u24 {vTmp}, {vPoll}, {sT2}, {vTmp}",
                  f"s_mul_i32 {sT2}, {sI}, {16*3584}", f"s_lshr_b32 {sT3}, {sNB}, 3", f"s_mul_i32 {sT3}, {sT3}, 1792",
                  f"s_add_u32 {sT2}, {sT2}, {sT3}",
                  Ins(f"buffer_load_dword a253, {vTmp}, {srd(SW1)}, {sT2} offen", vm="t2")])

def touch_q():
    return Group([f"v_bfe_u32 {vPoll}, {vL}, 2, 2", f"v_and_b32 {vTmp}, 3, {vL}", f"v_lshlrev_b32 {vTmp}, 7, {vTmp}",
                  f"s_movk_i32 {sT2}, 3072", f"v_mad_u32_u24 {vTmp}, {vPoll}, {sT2}, {vTmp}",
                  f"s_lshl_b32 {sT2}, {sI}, 2", f"s_add_u32 {sT2}, {sT2}, {sW}", f"s_mul_i32 {sT2}, {sT2}, {4*3072}",
                  f"s_lshr_b32 {sT3}, {sNB}, 3", f"s_lshl_b32 {sT3}, {sT3}, 9", f"s_add_u32 {sT2}, {sT2}, {sT3}",
                  Ins(f"buffer_load_dword a252, {vTmp}, {srd(SWQ)}, {sT2} offen", vm="t3")])

def touch_wo():
    return Group([f"v_bfe_u32 {vPollR}, {vL}, 3, 2", f"v_and_b32 {vTmp}, 7, {vL}", f"v_lshlrev_b32 {vTmp}, 7, {vTmp}",
                  f"v_lshl_add_u32 {vTmp}, {vPollR}, 10, {vTmp}",
                  f"s_lshl_b32 {sT2}, {sI}, 2", f"s_add_u32 {sT2}, {sT2}, {sW}", f"s_lshl_b32 {sT2}, {sT2}, 12",
                  Ins(f"buffer_load_dword a249, {vTmp}, {srd(SWO)}, {sT2} offen", vm="t4")])

def setup_idle():
    I = []
    a = I.append
    a(f"v_lshrrev_b32 v14, 5, {vL}")
    a("v_lshlrev_b32 v14, 2, v14")
    a(f"v_bfe_u32 v15, {vL}, 2, 2")
    a("v_add_u32 v14, v14, v15")
    a("v_lshlrev_b32 v14, 6, v14")
    a(f"v_bfe_u32 v15, {vL}, 4, 1")
    a("v_lshl_add_u32 v14, v15, 5, v14")
    a(f"v_and_b32 v15, 3, {vL}")
    a(f"v_lshl_add_u32 {vTr}, v15, 3, v14")
    a(f"v_and_b32 v14, 31, {vL}")
    a(f"v_lshrrev_b32 v15, 5, {vL}")
    a(f"v_and_b32 v96, 15, {vL}")
    a("v_xor_b32 v15, v15, v96")
    a("v_lshlrev_b32 v15, 4, v15")
    a("v_lshl_add_u32 v14, v14, 8, v15")
    a(f"v_add_u32 v96, {sLW}, v14")
    for sp in range(1, 8):
        a(f"v_xor_b32 v{96+sp}, {32*sp}, v96")
    for r in range(4):
        a(f"v_mov_b32 v{CONSTA+r}, 0xbb00bb00")
    a(f"v_and_b32 v14, 31, {vL}")
    a(f"v_lshrrev_b32 v15, 5, {vL}")
    a("v_lshlrev_b32 v15, 3, v15")
    a("v_sub_u32 v14, v14, v15")
    a("v_and_b32 v15, 1, v14")
    a("v_lshlrev_b32 v15, 4, v15")
    a("v_mov_b32 v16, 0x3f80")
    a("v_lshlrev_b32 v15, v15, v16")
    a("v_lshrrev_b32 v16, 1, v14")
    a("v_subrev_u32 v17, 8, v16")
    for (sel, src) in ((SEL0, "v16"), (SEL1, "v17")):
        for j in range(4):
            p = 60 + 2 * (j & 1)
            a(f"v_cmp_eq_u32 s[{p}:{p+1}], {j}, {src}")
            a(f"v_cndmask_b32 v{sel+j}, 0, v15, s[{p}:{p+1}]")
    for (p, val) in ((60, 0xAAAAAAAA), (62, 0xCCCCCCCC), (64, 0xF0F0F0F0), (66, 0xFF00FF00), (68, 0xFFFF0000)):
        a(f"s_mov_b32 s{p}, {hex(val)}")
        a(f"s_mov_b32 s{p+1}, {hex(val)}")
    a(f"v_and_b32 v14, 31, {vL}")
    a(f"v_lshrrev_b32 v15, 5, {vL}")
    a("v_lshlrev_b32 v15, 2, v15")
    a("v_sub_u32 v14, v14, v15")
    for r in range(16):
        a(f"v_cmp_le_i32 s[{70+2*r}:{71+2*r}], {8*(r>>2) + (r&3)}, v14")
    return I

def pass1():
    I = dma_x(0) + dma_x(1) + stamp("xissued")
    t2 = [touch_h()] if OPT.touch else []
    if OPT.early: t2 += ([touch_q()] if OPT.touch else []) + (touch_mall() if OPT.mall else [])
    later = [dma_x(2), dma_x(3), dma_w("wK", 4, "K"), t2 + (e_bias_loads() if OPT.elate else [])]
    for kq in range(4):
        I.append(WaitVM(("x", kq)))
        if kq in (0, 3): I += stamp(f"x{kq}")
        for sp in range(8):
            s = 8 * kq + sp
            I.append(Ins(f"ds_read_b128 {X(s)}, v{96+sp} offset:{kq*8192}", lg=("xr", s)))
        if kq == 2 and not OPT.elate:
            I.append(WaitVM("bias"))
            I += [f"v_mov_b32 v{XS+j}, v{104+j}" for j in range(4)]
        steps = []
        for sp in range(8):
            s = 8 * kq + sp
            steps.append([WaitLG(("xr", s)),
                          MFMA(vr(DMEAN, 16), vr(CONSTA, 4), X(s), vr(DMEAN, 16) if s else "0"),
                          MFMA(vr(D2, 16), X(s), X(s), vr(D2, 16) if s else "0")])
        I += place(steps, steps_for(later[kq], 0, 1), [])
    I += stamp("pass1")
    if OPT.quit.strip() == "pass1": I += ["s_waitcnt vmcnt(0)", "s_endpgm"]
    I.append("s_barrier")
    return I

def stats():
    I = []
    a = I.append
    d = lambda i: f"v{D2+i}"
    for p in range(8): a(f"v_cndmask_b32 {d(2*p)}, {d(2*p)}, {d(2*p+1)}, {sBIT0}")
    for p in range(4): a(f"v_cndmask_b32 {d(4*p)}, {d(4*p)}, {d(4*p+2)}, {sBIT1}")
    for p in range(2): a(f"v_cndmask_b32 {d(8*p)}, {d(8*p)}, {d(8*p+4)}, {sBIT3}")
    a(f"v_cndmask_b32 {d(0)}, {d(0)}, {d(8)}, {sBIT4}")
    a(f"v_mul_f32 {d(2)}, v{DMEAN}, v{DMEAN}")
    a(f"v_mov_b32 {d(1)}, {d(0)}")
    a(f"v_mov_b32 {d(3)}, 0x3b000000")
    a(f"v_permlane32_swap_b32 {d(0)}, {d(1)}")
    a(f"v_mov_b32 {d(4)}, 0x3727c5ac")
    a(f"v_cndmask_b32 {d(0)}, {d(0)}, {d(1)}, {sBIT2}")
    a(f"v_fma_f32 {d(0)}, {d(0)}, {d(3)}, -{d(2)}")
    a(f"v_max_f32 {d(0)}, 0, {d(0)}")
    a(f"v_add_f32 {d(1)}, {d(0)}, {d(4)}")
    a(f"v_rsq_f32 {vR1}, {d(1)}")
    a(f"v_mul_f32 {d(1)}, {vR1}, {vR1}")
    a(f"v_fma_f32 {d(1)}, {d(0)}, {d(1)}, {d(4)}")
    a(f"v_rsq_f32 {d(1)}, {d(1)}")
    a(f"v_mul_f32 {d(1)}, {d(1)}, {vR1}")
    a(f"v_mul_f32 {vQs}, {hex(f2u(math.log2(math.e) / 4))}, {vR1}")
    a(f"v_rcp_f32 {vKinv}, {d(1)}")
    c1 = -2 * math.log2(math.e) * math.sqrt(2 / math.pi)
    a(f"v_mul_f32 {vK1}, {hex(f2u(c1))}, {d(1)}")
    a(f"v_mul_f32 {d(2)}, {d(1)}, {d(1)}")
    a(f"v_mul_f32 {d(2)}, {d(2)}, {d(1)}")
    a(f"v_mul_f32 {vK2}, {hex(f2u(c1 * 0.044715))}, {d(2)}")
    a(f"v_mul_f32 {d(0)}, 0.5, {vKinv}")
    a(f"v_cvt_pk_bf16_f32 {d(1)}, {d(0)}, {d(0)}")
    a(f"v_cvt_pk_bf16_f32 {d(2)}, {vR1}, {vR1}")
    a(f"v_and_b32 {d(1)}, 0xffff0000, {d(1)}")
    a(f"v_and_b32 {d(2)}, 0xffff0000, {d(2)}")
    a(f"v_sub_f32 {d(1)}, {d(0)}, {d(1)}")
    a(f"v_sub_f32 {d(2)}, {vR1}, {d(2)}")
    a(f"v_cvt_pk_bf16_f32 v{BINV}, {d(0)}, {d(1)}")
    a(f"v_cvt_pk_bf16_f32 v{RFRAG}, {vR1}, {d(2)}")
    a(f"v_mov_b32 v{CHALF}, 0x3f003f00")
    for b in (BINV, RFRAG, CHALF):
        for r in range(1, 4):
            a(f"v_mov_b32 v{b+r}, 0")
    return I

def center_cvts(j):
    buf = (ACC[1], ACC[0], WF)[j % 3]
    return [f"v_cvt_pk_bf16_f32 v{XF + 8*j + q}, v{buf + 2*q}, v{buf + 2*q + 1}" for q in range(8)]

def centering(at, fillers, mid):
    steps = []
    bufs = (ACC[1], ACC[0], WF)
    for j in range(16):
        st = []
        buf = vr(bufs[j % 3], 16)
        st.append(MFMA(buf, vr(SEL0, 4), X(2 * j), vr(DMEAN, 16)))
        if j >= 2:
            st += center_cvts(j - 2)[:4]
        st.append(MFMA(buf, vr(SEL1, 4), X(2 * j + 1), buf))
        if j >= 2:
            st += center_cvts(j - 2)[4:]
        steps.append(st)
    I = place(steps, at, fillers, start=3, end=15)
    I += mid
    I += stamp("center")
    return I

AWF = 216
def wf(n): return ar(AWF + 4 * (n % 8), 4)

def tr_reads(gstep, s, addr):
    b = AWF + 4 * (gstep % 8)
    return [Ins(f"ds_read_b64_tr_b16 {ar(b, 2)}, {addr} offset:{s*1024}", lg=("w", gstep)),
            Ins(f"ds_read_b64_tr_b16 {ar(b+2, 2)}, {addr} offset:{s*1024 + 512}", lg=("w", gstep))]

def epi_scale(acc, scale, pbuf):
    I = []
    for g in range(4):
        for r in range(4 * g, 4 * g + 4):
            sc = scale(r) if callable(scale) else scale
            I.append(f"v_mul_f32 v{acc+r}, v{acc+r}, {sc}")
        I.append(f"v_cvt_pk_bf16_f32 v{pbuf+2*g}, v{acc+4*g}, v{acc+4*g+1}")
        I.append(f"v_cvt_pk_bf16_f32 v{pbuf+2*g+1}, v{acc+4*g+2}, v{acc+4*g+3}")
    return I

def st_frag(reg, soff, off, tag):
    if OPT.nost and tag in ("kv", "h"): return "s_nop 0"
    return Ins(f"buffer_store_dwordx4 {vr(reg, 4)}, {vL16}, {srd(SWS)}, {soff} offen offset:{off}{OPT.sc}", vm=tag)

def epi_k(acc):
    return epi_scale(acc, vR1, PB[0])
def st_k():
    return [st_frag(PB[0], sKV, 0, "kv"), st_frag(PB[0] + 4, sKV, 1024, "kv")]

def epi_v(acc):
    return epi_scale(acc, lambda r: f"v{DMEAN+r}", PB[1])
def st_v():
    return [st_frag(PB[1], sKV, 2048, "kv"), st_frag(PB[1] + 4, sKV, 3072, "kv")]

def epi_q(acc):
    return epi_scale(acc, vQs, QF)

def epi_h(acc, j):
    p = PB[j & 1]
    I = []
    for g in range(4):
        u = [f"v{acc + 4*g + i}" for i in range(4)]
        t = [f"v{TT + i}" for i in range(4)]
        for i in range(4): I.append(f"v_mul_f32 {t[i]}, {u[i]}, {u[i]}")
        for i in range(4): I.append(f"v_fma_f32 {t[i]}, {t[i]}, {vK2}, {vK1}")
        for i in range(4): I.append(f"v_mul_f32 {t[i]}, {u[i]}, {t[i]}")
        for i in range(4): I.append(f"v_exp_f32 {t[i]}, {t[i]}")
        for i in range(4): I.append(f"v_fma_f32 {t[i]}, {t[i]}, {vKinv}, {vKinv}")
        for i in range(4): I.append(f"v_rcp_f32 {t[i]}, {t[i]}")
        for i in range(4): I.append(f"v_mul_f32 {t[i]}, {u[i]}, {t[i]}")
        I.append(f"v_cvt_pk_bf16_f32 v{p+2*g}, {t[0]}, {t[1]}")
        I.append(f"v_cvt_pk_bf16_f32 v{p+2*g+1}, {t[2]}, {t[3]}")
    return I

def st_h(j):
    p = PB[j & 1]
    return [Group([f"s_add_u32 {sT1}, {sHo}, {j*2048}", st_frag(p + 4 * s, sT1, s * 1024, "h")]) for s in range(2)]

def stores_at(st):
    return {OPT.st1: [st[0]], OPT.st2: [st[1]]}

def bias_prep(j):
    return [f"v_lshl_or_b32 v{ABIAS}, v{XS+j}, 16, v{XS+j}"]

def run_blocks(blocks):
    I = []
    trs = (vTrA, vTrB)
    nb = len(blocks)
    I.append(WaitLG(("w", 1 if OPT.w2 else 0)))
    for bi, B in enumerate(blocks):
        addr = trs[bi & 1]
        naddr = trs[(bi + 1) & 1]
        steps = []
        accr = vr(B["acc"], 16)
        for s in range(32):
            g = 32 * bi + s
            st = []
            if s == 0 and B.get("bias") is not None:
                st.append(MFMA(accr, vr(ABIAS, 4), vr(BINV, 4), "0"))
            c = accr if (s or B.get("bias") is not None) else "0"
            if B.get("swap"):
                st.append(MFMA(accr, X(s), wf(g), c))
            else:
                st.append(MFMA(accr, wf(g), X(s), c))
            last = 32 * nb - 1
            if OPT.w2:
                if g % 2 == 1 and g + 1 <= last:
                    st.append(WaitLG(("w", min(g + 2, last))))
            elif g + 1 <= last:
                st.append(WaitLG(("w", g + 1)))
            LK = OPT.lk
            if s + LK < 32:
                st += tr_reads(g + LK, s + LK, addr)
            elif bi + 1 < nb:
                if s == 32 - LK:
                    st += stamp(f"xa{bi}") + [WaitVM(blocks[bi + 1]["tag"])] + stamp(f"xw{bi}") + ["s_barrier"] + stamp(f"xb{bi}")
                st += tr_reads(g + LK, s + LK - 32, naddr)
            steps.append(st)
        fill = list(B.get("fill", []))
        if bi + 1 < nb:
            fill = [f"v_add_u32 {naddr}, {blocks[bi+1]['slot']*SLOT}, {vTr}"] + fill
        I += place(steps, B.get("at", {}), fill, start=B.get("fstart", 2), end=OPT.fend)
        I += stamp(f"blk{bi}" if B["name"] != "Q" else "blkQ")
    return I

def touch_mall():
    return [Group([f"v_and_b32 {vTmp}, 15, {vL}", f"v_lshlrev_b32 {vTmp}, 7, {vTmp}",
                   f"s_lshl_b32 {sT2}, s2, 2", f"s_add_u32 {sT2}, {sT2}, {sW}", f"s_lshl_b32 {sT2}, {sT2}, 11",
                   Ins(f"buffer_load_dword a251, {vTmp}, {srd(SW2)}, {sT2} offen", vm="t5")]),
            Group([f"v_and_b32 {vTmp}, 3, {vL}", f"v_lshlrev_b32 {vTmp}, 7, {vTmp}",
                   f"s_lshl_b32 {sT2}, s2, 2", f"s_add_u32 {sT2}, {sT2}, {sW}", f"s_lshl_b32 {sT2}, {sT2}, 9",
                   Ins(f"buffer_load_dword a250, {vTmp}, {srd(SWO)}, {sT2} offen", vm="t6")])]

def probe(item):
    fl = flatten([item])
    out = []
    for x in fl:
        if isinstance(x, Ins) and x.text.startswith("buffer_"):
            reg = "s34" if "store" in x.text else "s33"
            out += ["s_memtime s[0:1]", "s_waitcnt lgkmcnt(0)", "s_mov_b32 s35, s0", x,
                    "s_memtime s[0:1]", "s_waitcnt lgkmcnt(0)", "s_sub_u32 s0, s0, s35", f"s_add_u32 {reg}, {reg}, s0"]
        else:
            out.append(x)
    return Group(out)

def sched(*entries):
    at = {}
    for items, g0, stride in entries:
        for n, it in enumerate(items):
            at.setdefault(g0 + int(n * stride), []).append(it)
    return at

def sub_at(at, lo, hi):
    return {g - lo: v for g, v in at.items() if lo <= g < hi}

def phase1(variant):
    O = OPT
    I = []
    I += prologue()
    I += setup_idle()
    if OPT.probe: I += ["s_mov_b32 s33, 0", "s_mov_b32 s34, 0"]
    I += pass1()
    first = stamp("ka") + [WaitVM("wK")] + stamp("kw") + ["s_barrier", f"v_add_u32 {vTrA}, {4*SLOT}, {vTr}"]
    for s in range(OPT.lk):
        first += tr_reads(s, s, vTrA)
    A, B_ = ACC
    flag_kv = flag_store([f"s_lshl_b32 {sT1}, {sNB}, 8", f"s_lshl_b32 {sT2}, {sKT}, 2", f"s_add_u32 {sT1}, {sT1}, {sT2}",
                          f"s_add_u32 {sT1}, {sT1}, {WS_FKV}"], "fkv", "kv")
    st = O.wst / 10
    E = [(dma_w("wV", 0, "V"), O.gV, O.gVs / 10),
         (dma_w("wH0", 1, "H", 0), O.gH0, st), (dma_w("wH1", 2, "H", 1), O.gH1, st), (dma_w("wH2", 3, "H", 2), O.gH2, st)]
    tq = ([touch_q()] if O.touch else []) + (touch_mall() if O.mall else [])
    if not O.early: E.append((tq, O.gTq if variant == 0 else O.gTq1, 1))
    def S(stl, b): return [([stl[0]], 32 * b + O.st1, 1), ([stl[1]], 32 * b + O.st2, 1)]
    E += S(st_k(), 1) + S(st_v(), 2) + S(st_h(0), 3) + S(st_h(1), 4) + S(st_h(2), 5)
    E.append(([flag_kv], O.gFkv, 1))
    E.append((poll_kv_issue(), O.gPkv, 1))
    if variant == 0:
        E += [(dma_w("wH3", 0, "H", 3), O.gH3, st), (dma_w("wQ", 4, "Q"), O.gQ0, st)] + S(st_h(3), 6)
    else:
        E += [(dma_w("wQ", 4, "Q"), O.gQ1, st)]
    ck, ld = kv_stage(variant)
    E += [(ck, O.gKv, 1), (ld, O.gKv + 1, O.kst / 10)]
    if O.touch:
        E.append(([touch_wo()], O.gTwo, 1))
    at = sched(*E)
    I += centering(merge_at(sub_at(at, -16, 0), {1: ["s_nop 2"]}), stats(), first)
    zero_abias = [f"v_mov_b32 v{ABIAS+r}, 0" for r in range(1, 4)]
    tagcalc = [WaitVM("E"),
               Group([f"v_readfirstlane_b32 {sTAG}, {vTag}",
                      f"s_mul_i32 {sTAG}, {sTAG}, 0x41c64e6d", f"s_add_u32 {sTAG}, {sTAG}, 0x3039"]),
               f"v_mov_b32 {vTag}, {sTAG}"]
    rt = [MFMA(vr(DMEAN, 16), vr(RFRAG, 4), vr(CHALF, 4), "0")]
    blocks = [
        dict(name="K", slot=4, acc=A, tag="wK", fill=center_cvts(14) + center_cvts(15) + rt + zero_abias + tagcalc +
             ([WaitVM("bias")] + [f"v_mov_b32 v{XS+j}, v{104+j}" for j in range(4)] if OPT.elate else []), fstart=1),
        dict(name="V", slot=0, acc=B_, swap=True, tag="wV", fill=epi_k(A) + bias_prep(0)),
        dict(name="H0", slot=1, acc=A, bias=0, tag="wH0", fill=epi_v(B_) + bias_prep(1) + mask_regs()),
        dict(name="H1", slot=2, acc=B_, bias=1, tag="wH1", fill=epi_h(A, 0) + bias_prep(2)),
    ]
    if variant == 0:
        blocks += [
            dict(name="H2", slot=3, acc=A, bias=2, tag="wH2", fill=epi_h(B_, 1) + bias_prep(3) + kv_prep()),
            dict(name="H3", slot=0, acc=B_, bias=3, tag="wH3", fill=epi_h(A, 2)),
            dict(name="Q", slot=4, acc=A, tag="wQ", fill=epi_h(B_, 3))]
        qacc = A
    else:
        blocks += [
            dict(name="H2", slot=3, acc=A, bias=2, tag="wH2", fill=epi_h(B_, 1) + kv_prep()),
            dict(name="Q", slot=4, acc=B_, tag="wQ", fill=epi_h(A, 2))]
        qacc = B_
    for bi, B in enumerate(blocks):
        B["at"] = sub_at(at, 32 * bi, 32 * bi + 32)
        if OPT.probe and str(bi) in OPT.probe:
            for stp, lst in B["at"].items():
                B["at"][stp] = [probe(x) for x in lst]
    assert max(at) < 32 * len(blocks), max(at)
    I += run_blocks(blocks)
    I += stamp("ea") + [WaitVM("kvs")] + stamp("ew") + ["s_barrier"] + stamp("eb")
    I += att_first_reads() + epi_q(qacc)
    return I

VA = 124
vKa = "v3"
MM = 88
SBUF = (16, 32)
SDIAG = 64
PBUF = (96, 104)
PFAR = 80
OACC = (48, 64)
OPK = (16, 20)
cold = []
cold_big = []

def mask_regs():
    I = [f"s_mov_b32 {sT2}, 0xffff"]
    for j in range(8):
        I += [f"v_cndmask_b32 v{MM+j}, 0, -1, s[{70+4*j}:{71+4*j}]",
              f"v_cndmask_b32 {vTmp}, 0, -1, s[{72+4*j}:{73+4*j}]",
              f"v_bfi_b32 v{MM+j}, {sT2}, v{MM+j}, {vTmp}"]
    return [I[0]] + [Group(I[1+3*j:4+3*j]) for j in range(8)]

def poll(tag, voff, soff, res=vPollR):
    return Ins(f"buffer_load_dword {res}, {voff}, {srd(SWS)}, {soff} offen sc1", vm=tag)

def poll_check(tag, voff, soff_setup, soff, name, res=vPollR, pre=()):
    cold.extend([Raw(f"L_spin_{name}:")] + [Ins(x) if isinstance(x, str) else x for x in pre] +
                [Ins(f"s_mov_b32 {sT3}, 0x4000"), Raw(f"L_spin2_{name}:")] +
                [Ins(x) for x in soff_setup] +
                [Ins(f"buffer_load_dword {res}, {voff}, {srd(SWS)}, {soff} offen sc1"),
                 Ins("s_waitcnt vmcnt(0)"),
                 Ins(f"v_cmp_ne_u32 vcc, {sTAG}, {res}"),
                 Ins("s_nop 0"),
                 Ins(f"s_cbranch_vccz L_back_{name}"),
                 Ins(f"s_sub_u32 {sT3}, {sT3}, 1"),
                 Ins(f"s_cmp_lg_u32 {sT3}, 0"),
                 Ins(f"s_cbranch_scc1 L_spin2_{name}"),
                 Ins(f"s_branch L_back_{name}")])
    return Group([WaitVM(tag), f"v_cmp_ne_u32 vcc, {sTAG}, {res}", "s_nop 0",
                  f"s_cbranch_vccnz L_spin_{name}", Raw(f"L_back_{name}:")])

KV_SOFF = [f"s_lshl_b32 {sT2}, {sNB}, 8", f"s_add_u32 {sT2}, {sT2}, {WS_FKV}"]
def poll_kv_issue():
    return [Group([f"v_min_u32 {vPoll}, 11, {vL}", f"s_lshl_b32 {sT2}, {sMB}, 2", f"s_sub_u32 {sT2}, {sT2}, 8",
                   f"v_add_u32 {vPoll}, {sT2}, {vPoll}", f"v_max_i32 {vPoll}, 0, {vPoll}", f"v_lshlrev_b32 {vPoll}, 2, {vPoll}"]
                  + KV_SOFF + [poll("pkv", vPoll, sT2)])]

def kv_prep():
    I = [f"s_mul_i32 {sT2}, {sW}, {KVR}", f"s_add_u32 {sT2}, {sT2}, {KVL}", f"v_add_u32 {vKa}, {sT2}, {vL16}",
         f"v_add_u32 v{VA}, 2048, {vKa}", f"v_add_u32 v{VA+1}, 3072, {vKa}",
         f"s_add_u32 {sT2}, {sT2}, 4096", f"v_mov_b32 {vTmp}, {sT2}"]
    I = [Group(I),
         f"v_cndmask_b32 v{VA+2}, {vTmp}, v{VA}, {sBIT4}", f"v_cndmask_b32 v{VA+3}, {vTmp}, v{VA+1}, {sBIT4}",
         f"v_cndmask_b32 v{VA}, v{VA}, {vTmp}, {sBIT4}", f"v_cndmask_b32 v{VA+1}, v{VA+1}, {vTmp}, {sBIT4}",
         Group([f"s_lshl_b32 {sT2}, {sNB}, 6", f"s_lshl_b32 {sT3}, {sMB}, 2", f"s_add_u32 {sT2}, {sT2}, {sT3}",
                f"s_mul_i32 {sT3}, {sW}, 3", f"s_add_u32 {sT2}, {sT2}, {sT3}", f"s_lshl_b32 {sKVL}, {sT2}, 12",
                f"s_add_u32 {sKVL}, {sKVL}, {WS_KV - 8*REC}",
                f"s_mul_i32 s17, {sW}, {3*KVR}"])]
    return I

def kv_stage(variant):
    ones = Group([f"v_min_u32 {vTmp}, 11, {vL}", f"s_lshl_b32 {sT2}, {sMB}, 2", f"s_sub_u32 {sT2}, {sT2}, 8",
                  f"v_add_u32 {vPollR}, {sT2}, {vTmp}", f"v_cmp_le_i32 s[18:19], 0, {vPollR}",
                  f"s_movk_i32 {sT2}, {KVR}", f"v_mul_u32_u24 {vTmp}, {sT2}, {vTmp}",
                  f"v_add_u32 {vTmp}, {KVL + 4096}, {vTmp}", f"v_mov_b32 {vPollR}, 0x3f803f80",
                  f"v_cndmask_b32 {vPollR}, 0, {vPollR}, s[18:19]",
                  Ins(f"ds_write2_b32 {vTmp}, {vPollR}, {vPollR} offset0:0 offset1:1", lg="ones"),
                  Ins(f"ds_write2_b32 {vTmp}, {vPollR}, {vPollR} offset0:2 offset1:3", lg="ones")])
    L = []
    for q in range(3):
        for u in range(4):
            pre = []
            if u == 0:
                pre = [f"s_mul_i32 {sT2}, {sW}, 3", f"s_lshl_b32 {sT3}, {sMB}, 2", f"s_add_u32 {sT2}, {sT2}, {sT3}",
                       f"s_add_u32 {sT2}, {sT2}, {q}", f"s_cmp_lt_u32 {sT2}, 8", f"s_cselect_b32 {sT2}, 0x40000000, 0",
                       f"v_add_u32 {vPoll}, {sT2}, {vL16}",
                       f"s_add_u32 m0, s17, {KVL + q*KVR}", f"s_add_u32 s18, {sKVL}, {q*REC}"]
            L.append(Group(pre + [Ins(f"buffer_load_dwordx4 {vPoll}, {srd(SWS)}, s18 offen offset:{u*1024}{OPT.sc} lds", vm="kvs")]))
    return [Group([poll_check("pkv", vPoll, KV_SOFF, sT2, f"kv{variant}"), ones])], (L if not OPT.nokv else [])

def rdK(t, hh):
    return Ins(f"ds_read_b128 {aK(t, hh)}, {vKa} offset:{t*KVR + hh*1024}", lg=("k", t, hh))
def rdV(t, s, hh):
    return Ins(f"ds_read_b128 {aV(t, s, hh)}, v{VA + 2*hh + s} offset:{t*KVR}", lg=("v", t, hh))

def att_first_reads():
    return [rdK(0, 0), rdK(8, 0), rdK(1, 0), rdK(2, 0)]

def att_reads():
    L = []
    V = lambda t, hh: [rdV(t, 0, hh), rdV(t, 1, hh)]
    L += V(0, 0) + V(8, 0) + [rdK(3, 0)] + V(1, 0) + [rdK(4, 0)] + V(2, 0) + [rdK(5, 0)] + V(3, 0) + [rdK(6, 0)]
    L += V(4, 0) + [rdK(7, 0)] + V(5, 0) + V(6, 0) + V(7, 0)
    L += [rdK(0, 1), rdK(8, 1), rdK(1, 1)] + V(0, 1) + V(8, 1) + [rdK(2, 1)]
    for t in range(1, 8):
        L += V(t, 1) + ([rdK(t + 2, 1)] if t + 2 <= 7 else [])
    return L

def fallback(hh):
    S, P, M, T = 24, 96, 40, 41
    O = OACC[hh]; Q = vr(QF + 4*hh, 4)
    C = [Raw(f"L_fb{hh}:"), Ins("s_nop 15"), Ins(f"v_mov_b32 v{M}, 0xff800000"), Ins(f"v_mov_b32 v{T+1}, 0xff800000")]
    def scores(t):
        c = [Ins(MFMA(vr(S, 16), aK(t, hh), Q, "0")), Ins("s_nop 15")]
        if t == 8:
            c += [Ins(f"v_cndmask_b32 v{S+r}, v{T+1}, v{S+r}, s[{70+2*r}:{71+2*r}]") for r in range(16)]
        if t == 0:
            c += [Ins(f"v_cndmask_b32 v{S+r}, v{S+r}, v{T+1}, s[{70+2*r}:{71+2*r}]") for r in range(16)]
        return c
    def guard(t, lab):
        if t == 8: return []
        return [Ins(f"s_add_u32 {sT2}, {sKT}, {t}"), Ins(f"s_cmp_lt_u32 {sT2}, 8"), Ins(f"s_cbranch_scc1 {lab}")]
    for t in range(9):
        lab = f"L_fb{hh}_a{t}"
        C += guard(t, lab) + scores(t)
        C += [Ins(f"v_max3_f32 v{M}, v{M}, v{S+2*j}, v{S+2*j+1}") for j in range(8)]
        C.append(Raw(lab + ":"))
    C += [Ins(f"v_mov_b32 v{T}, v{M}"), Ins("s_nop 1"), Ins(f"v_permlane32_swap_b32 v{M}, v{T}"), Ins("s_nop 1"),
          Ins(f"v_max_f32 v{M}, v{M}, v{T}")]
    C += [Ins(f"v_mov_b32 v{O+r}, 0") for r in range(16)]
    for t in range(9):
        lab = f"L_fb{hh}_b{t}"
        C += guard(t, lab) + scores(t)
        C += [Ins(f"v_sub_f32 v{S+r}, v{S+r}, v{M}") for r in range(16)]
        C += [Ins(f"v_exp_f32 v{S+r}, v{S+r}") for r in range(16)]
        C += [Ins("s_nop 0")]
        C += [Ins(f"v_cvt_pk_bf16_f32 v{P+j}, v{S+2*j}, v{S+2*j+1}") for j in range(8)]
        C += [Ins("s_nop 1")]
        for s in range(2):
            C.append(Ins(MFMA(vr(O, 16), aV(t, s, hh), vr(P + 4*s, 4), vr(O, 16))))
        C += [Ins("s_nop 7"), Raw(lab + ":")]
    C += [Ins("s_nop 15"), Ins(f"s_branch L_fb{hh}_back")]
    cold_big.extend(C)

def att_final(hh):
    O = OACC[hh]
    ol, ll = (O, O + 8) if hh == 0 else (O + 8, O)
    pk = OPK[hh]
    fallback(hh)
    I = [Group([f"v_subrev_u32 {vTmp}, 0x2b800000, v{ll}", f"v_cmp_lt_u32 vcc, 0x28000000, {vTmp}", "s_nop 0",
                f"s_cbranch_vccnz L_fb{hh}", Raw(f"L_fb{hh}_back:")]),
         f"v_rcp_f32 {vTmp}, v{ll}"]
    I += [f"v_mul_f32 v{ol+r}, v{ol+r}, {vTmp}" for r in range(8)]
    I += [f"v_cvt_pk_bf16_f32 v{pk+j}, v{ol+2*j}, v{ol+2*j+1}" for j in range(4)]
    I.append(Group([f"s_lshl_b32 {sT1}, {sKT}, 5", f"s_lshl_b32 {sT2}, {sNB}, 1", f"s_add_u32 {sT1}, {sT1}, {sT2}",
                    f"s_lshl_b32 {sT1}, {sT1}, 10", f"s_add_u32 {sT1}, {sT1}, {WS_O}",
                    Ins(f"buffer_store_dwordx4 {vr(pk, 4)}, {vL16}, {srd(SWS)}, {sT1} offen offset:{hh*1024}{OPT.sc}", vm="o")]))
    return I

def flag_store(idx_setup, tag, wait):
    return Group([WaitVM(wait)] + idx_setup + ["s_mov_b64 exec, 1",
                  Ins(f"buffer_store_dword {vTag}, off, {srd(SWS)}, {sT1} sc0 sc1", vm=tag),
                  "s_mov_b64 exec, -1"])

def flag_kt_nb(base):
    return [f"s_lshl_b32 {sT1}, {sKT}, 6", f"s_lshl_b32 {sT2}, {sNB}, 2", f"s_add_u32 {sT1}, {sT1}, {sT2}",
            f"s_add_u32 {sT1}, {sT1}, {base}"]

def attention(extra, reads):
    W = WaitLG if reads else (lambda *a: None)
    def s_mfma(G):
        hh, g = divmod(G, 8)
        Q = vr(QF + 4*hh, 4)
        b = vr(SBUF[G & 1], 16)
        if g == 0:
            return [[W(("k", 0, hh)), MFMA(b, aK(0, hh), Q, "0")],
                    [W(("k", 8, hh)), MFMA(vr(SDIAG, 16), aK(8, hh), Q, "0")]]
        return [[W(("k", g, hh)), MFMA(b, aK(g, hh), Q, "0")]]
    def pv(G):
        hh, g = divmod(G, 8)
        O = vr(OACC[hh], 16)
        P = PBUF[G & 1]
        if g == 0:
            return [[W(("v", 0, hh)), MFMA(O, aV(0, 0, hh), vr(PFAR, 4), "0")],
                    [MFMA(O, aV(0, 1, hh), vr(PFAR + 4, 4), O)],
                    [W(("v", 8, hh)), MFMA(O, aV(8, 0, hh), vr(P, 4), O)],
                    [MFMA(O, aV(8, 1, hh), vr(P + 4, 4), O)]]
        return [[W(("v", g, hh)), MFMA(O, aV(g, 0, hh), vr(P, 4), O)],
                [MFMA(O, aV(g, 1, hh), vr(P + 4, 4), O)]]
    I = []
    for m in s_mfma(0): I += m
    for G in range(16):
        hh, g = divmod(G, 8)
        S, P = SBUF[G & 1], PBUF[G & 1]
        mf = (s_mfma(G + 1) if G < 15 else []) + (pv(G - 1) if G > 0 else [])
        chunks = []
        if g == 0:
            cn = [f"v_cndmask_b32 v{S+r}, v{S+r}, v{SDIAG+r}, s[{70+2*r}:{71+2*r}]" for r in range(16)]
            chunks += [cn[0:4], cn[4:8], cn[8:12], cn[12:16]]
        for q in range(4):
            c = [f"v_exp_f32 v{S+4*q+i}, v{S+4*q+i}" for i in range(4)]
            if q > 0:
                c += [f"v_cvt_pk_bf16_f32 v{P+2*q-2}, v{S+4*q-4}, v{S+4*q-3}", f"v_cvt_pk_bf16_f32 v{P+2*q-1}, v{S+4*q-2}, v{S+4*q-1}"]
            chunks.append(c)
        chunks.append([f"v_cvt_pk_bf16_f32 v{P+6}, v{S+12}, v{S+13}", f"v_cvt_pk_bf16_f32 v{P+7}, v{S+14}, v{S+15}"])
        if g == 0:
            chunks.append([f"v_bfi_b32 v{PFAR+j}, v{MM+j}, 0, v{P+j}" for j in range(8)])
            chunks.append([f"v_and_b32 v{P+j}, v{MM+j}, v{P+j}" for j in range(8)])
        ex = list(extra.get(G, []))
        def is_vm(it):
            return any(isinstance(x, Ins) and x.text.startswith("buffer_") for x in flatten([it]))
        vm = [x for x in ex if is_vm(x)]
        ot = [x for x in ex if not is_vm(x)]
        seq = []
        k = 0
        ngap = len(chunks) - 1
        first_gap = 4 if g == 0 else 0
        slots = [[] for _ in range(ngap)]
        pos = 0
        nv = 0
        order = []
        for x in ex:
            order.append(x)
        per = max(1, -(-len(ot) // max(1, ngap)))
        gi = 0; cnt = 0
        for x in order:
            if is_vm(x):
                if any(is_vm(y) for y in slots[min(gi, ngap - 1)]) and gi < ngap - 1: gi += 1; cnt = 0
                slots[min(gi, ngap - 1)].append(x)
            else:
                if cnt >= per and gi < ngap - 1: gi += 1; cnt = 0
                slots[min(gi, ngap - 1)].append(x); cnt += 1
        ex = []
        for ci, c in enumerate(chunks):
            if k < len(mf):
                I += mf[k]; k += 1
            I += c
            if ci < ngap:
                I += slots[ci]
        while k < len(mf):
            I += mf[k]; k += 1
        I += ex
        if OPT.gst and G in (0, 1, 2, 3, 5, 7, 8, 9, 11, 13): I += stamp(f"g{G}", True)
    for m in pv(15): I += m
    return I

SIG = [0, 3, 4, 1, 2, 0, 3, 4, 1]
EXS = 2
vW2 = "v2"
ACB = (16, 32); ACS = (64, 128)
W3 = ((48, 52), (56, 60), (96, 100), (104, 108), (112, 116), (80, 84))
T3L = ("v8", "v9")
T3 = (("v5", "v6"), ("v11", "v7"))
vXo = "v3"
XR = 168
RX = 176
CQ = 88

def w2_prep():
    return [f"v_lshrrev_b32 {vTmp}, 3, {vL}", f"v_lshlrev_b32 {vTmp}, 10, {vTmp}",
            f"v_bfe_u32 {vW2}, {vL}, 4, 1", f"v_lshlrev_b32 {vW2}, 2, {vW2}",
            f"v_xor_b32 {vW2}, {vW2}, {vL}", f"v_and_b32 {vW2}, 7, {vW2}",
            f"v_lshl_add_u32 {vW2}, {vW2}, 4, {vTmp}"]

def rot_prep():
    rot = [f"s_and_b32 {sT2}, {sNB}, 7", f"s_and_b32 {sT3}, {sMB}, 3", f"s_lshl_b32 {sT3}, {sT3}, 1", f"s_add_u32 {sPaW}, {sT2}, {sT3}",
           f"s_cmp_ge_u32 {sPaW}, 7", f"s_cselect_b32 {sT2}, 7, 0", f"s_sub_u32 {sPaW}, {sPaW}, {sT2}"]
    if not OPT.rot:
        rot = [f"s_mov_b32 {sPaW}, 0"]
    return rot + [f"s_mov_b32 {sPaH}, {sPaW}",
                  f"s_lshr_b32 {sT2}, {sW}, 1", f"s_mul_i32 {sW2B}, {sT2}, 917504", f"s_lshl_b32 {sWOB}, {sT2}, 18",
                  f"s_and_b32 {sT2}, {sW}, 1", f"s_lshl_b32 {sT2}, {sT2}, 16",
                  f"s_add_u32 {sW2B}, {sW2B}, {sT2}", f"s_add_u32 {sWOB}, {sWOB}, {sT2}",
                  f"s_and_b32 {sT2}, {sNB}, 7", f"s_lshl_b32 {sT2}, {sT2}, 7",
                  f"s_add_u32 {sW2B}, {sW2B}, {sT2}", f"s_add_u32 {sWOB}, {sWOB}, {sT2}"]

def advance(pa):
    return [f"s_add_u32 {pa}, {pa}, 1", f"s_cmp_eq_u32 {pa}, 7", f"s_cselect_b32 {pa}, 0, {pa}"]

def stage_base(p):
    return [f"s_add_u32 {sWr}, {sPaW}, {p}", f"s_cmp_ge_u32 {sWr}, 7", f"s_cselect_b32 {sT3}, 7, 0", f"s_sub_u32 {sWr}, {sWr}, {sT3}",
            f"s_lshl_b32 {sWr}, {sWr}, 17", f"s_add_u32 {sWr}, {sWr}, {sW2B}"]

SG = 128
def sg_reg(p, n): return SG + 32 * (p - 5) + 4 * n

def dma_stage(p):
    I = []
    if OPT.nostage: return I
    for jj in range(4):
        for half in range(2):
            n = 2 * jj + half
            pre = []
            if p <= 6:
                base, s, c = sWr, SW2, (16 * jj + 8 * half) * 1024
                if n == 0: pre = stage_base(p)
            else:
                base, s, c = sWOB, SWO, (16 * (8 * (p - 7) + jj) + 8 * half) * 1024
            if p <= 4 or not OPT.v2:
                I.append(Group(pre + [f"s_add_u32 m0, {sLD}, {SIG[p]*SLOT + jj*2048 + half*1024}",
                                      f"s_add_u32 {sT0}, {base}, {c}",
                                      Ins(f"buffer_load_dwordx4 {vW2}, {srd(s)}, {sT0} offen lds", vm=("st", p))]))
            else:
                I.append(Group(pre + [f"s_add_u32 {sT0}, {base}, {c}",
                                      Ins(f"buffer_load_dwordx4 {vr(sg_reg(p, n), 4)}, {vW2}, {srd(s)}, {sT0} offen", vm=("sg", p))]))
    return I

def write_stage(p):
    I = [Group([WaitVM(("sg", p)), f"s_add_u32 {sT2}, {sLD}, {SIG[p]*SLOT}", f"v_add_u32 v4, {sT2}, {vL16}"])]
    for n in range(8):
        I.append(Ins(f"ds_write_b128 v4, {vr(sg_reg(p, n), 4)} offset:{n*1024}", lg=("sw", p)))
    return I

def p3_prep():
    I = [Group([f"s_lshr_b32 {sT2}, {sNB}, 3", f"s_lshl_b32 {sT2}, {sT2}, 1", f"s_and_b32 {sT3}, {sW}, 1",
                f"s_add_u32 {sT2}, {sT2}, {sT3}", f"s_lshl_b32 {sT3}, {sMB}, 2", f"s_add_u32 {sT2}, {sT2}, {sT3}",
                f"s_lshr_b32 {sT3}, {sW}, 1",
                f"s_mul_i32 {sH3}, {sT2}, 112", f"s_mul_i32 {sO3}, {sT3}, 56", f"s_add_u32 {sH3}, {sH3}, {sO3}",
                f"s_lshl_b32 {sH3}, {sH3}, 10", f"s_add_u32 {sH3}, {sH3}, {WS_H}",
                f"s_lshl_b32 {sO3}, {sT2}, 5", f"s_lshl_b32 {sF3}, {sT3}, 4", f"s_add_u32 {sO3}, {sO3}, {sF3}",
                f"s_lshl_b32 {sO3}, {sO3}, 10", f"s_add_u32 {sO3}, {sO3}, {WS_O}",
                f"s_lshl_b32 {sF3}, {sT2}, 6", f"s_lshl_b32 {sX3}, {sT3}, 5", f"s_add_u32 {sF3}, {sF3}, {sX3}",
                f"s_lshl_b32 {sX3}, {sT2}, 15", f"s_and_b32 {sT2}, {sNB}, 7", f"s_lshl_b32 {sT2}, {sT2}, 7",
                f"s_add_u32 {sX3}, {sX3}, {sT2}", f"s_lshl_b32 {sT3}, {sT3}, 6", f"s_add_u32 {sX3}, {sX3}, {sT3}"])]
    a = I.append
    a(f"v_lshrrev_b32 {T3L[0]}, 5, {vL}")
    a(f"v_lshlrev_b32 {T3L[0]}, 2, {T3L[0]}")
    a(f"v_bfe_u32 {vTmp}, {vL}, 2, 2")
    a(f"v_add_u32 {T3L[0]}, {T3L[0]}, {vTmp}")
    a(f"v_lshlrev_b32 {T3L[0]}, 7, {T3L[0]}")
    a(f"v_bfe_u32 {vTmp}, {vL}, 4, 1")
    a(f"v_lshlrev_b32 {vTmp}, 1, {vTmp}")
    a(f"v_bfe_u32 {T3L[1]}, {vL}, 1, 1")
    a(f"v_add_u32 {vTmp}, {vTmp}, {T3L[1]}")
    a(f"v_bfe_u32 {T3L[1]}, {vL}, 3, 1")
    a(f"v_lshl_add_u32 {vTmp}, {T3L[1]}, 2, {vTmp}")
    a(f"v_lshl_add_u32 {T3L[0]}, {vTmp}, 4, {T3L[0]}")
    a(f"v_and_b32 {vTmp}, 1, {vL}")
    a(f"v_lshl_add_u32 {T3L[0]}, {vTmp}, 3, {T3L[0]}")
    a(Group([f"s_lshr_b32 {sT3}, {sW}, 1", f"s_lshl_b32 {sT2}, {sT3}, 6", f"s_lshl_b32 {sT3}, {sT3}, 14",
             f"v_xor_b32 {T3L[0]}, {sT2}, {T3L[0]}", f"v_add_u32 {T3L[0]}, {sT3}, {T3L[0]}"]))
    a(f"v_xor_b32 {T3L[1]}, 64, {T3L[0]}")
    a(f"v_and_b32 {vPoll}, 7, {vL}")
    a(f"v_lshlrev_b32 {vPoll}, 2, {vPoll}")
    a(Group([f"v_and_b32 {vTmp}, 31, {vL}", f"v_lshlrev_b32 {vTmp}, 1, {vTmp}",
             f"s_and_b32 {sT2}, {sNB}, 7", f"s_lshl_b32 {sT2}, {sT2}, 7", f"s_lshr_b32 {sT3}, {sW}, 1",
             f"s_lshl_b32 {sT3}, {sT3}, 6", f"s_add_u32 {sT2}, {sT2}, {sT3}",
             Ins(f"buffer_load_ushort v10, {vTmp}, {srd(SB2)}, {sT2} offen", vm="b2")]))
    return I

def x_resid():
    I = [Group([f"v_and_b32 {vXo}, 31, {vL}", f"v_lshlrev_b32 {vXo}, 10, {vXo}", f"v_lshrrev_b32 {vTmp}, 5, {vL}",
                f"v_lshl_add_u32 {vXo}, {vTmp}, 3, {vXo}"])]
    for q in range(4):
        I.append(Ins(f"buffer_load_dwordx2 {vr(XR + 2*q, 2)}, {vXo}, {srd(SX)}, {sX3} offen offset:{16*q}", vm="xr"))
    return I

FH_SOFF = [f"s_add_u32 {sT2}, {sF3}, {WS_FH}"]
FO_SOFF = [f"s_add_u32 {sT2}, {sF3}, {WS_FO}"]

def frag_reg(k):
    if k < 10: return 216 + 4*k
    if k < 56: return 4*(k - 10)
    return 184 + 4*(k - 56)

sHq = "s17"
def frag_load(k):
    pre = []
    if k < 56:
        j8 = k & 7
        if j8 == 0:
            pre = [f"s_lshl_b32 {sHr}, {sPaH}, 13", f"s_add_u32 {sHr}, {sHr}, {sH3}"] + advance(sPaH)
        elif j8 == 4:
            pre = [f"s_add_u32 {sHr}, {sHr}, 4096"]
        so = sHr
    else:
        j = k - 56
        if (j & 3) == 0:
            pre = [f"s_add_u32 {sHq}, {sO3}, {(j >> 2)*4096}"]
        so = sHq
    if OPT.nohl: return Group(pre)
    return Group(pre + [Ins(f"buffer_load_dwordx4 {ar(frag_reg(k), 4)}, {vL16}, {srd(SWS)}, {so} offen offset:{(k & 3)*1024}{OPT.hsc}", vm=("f", k))])

def p3_reads(k):
    p, j8 = divmod(k, 8)
    I = []
    for j in range(2):
        b = W3[k % 6][j]; ad = T3[p & 1][j]
        I += [Ins(f"ds_read_b64_tr_b16 {vr(b, 2)}, {ad} offset:{j8*2048}", lg=("w3", k)),
              Ins(f"ds_read_b64_tr_b16 {vr(b+2, 2)}, {ad} offset:{j8*2048 + 1024}", lg=("w3", k))]
    return I

def t3_set(p):
    return [f"v_add_u32 {T3[p & 1][j]}, {SIG[p]*SLOT}, {T3L[j]}" for j in range(2)]

def phase3():
    LA = OPT.la
    I = []
    for k in range(OPT.ea, LA):
        I.append(frag_load(k))
    I += [f"v_mov_b32 v{CQ}, 0x3e803e80"] + [f"v_mov_b32 v{CQ+r}, 0" for r in range(1, 4)]
    I += [WaitVM("b2"), f"v_lshl_or_b32 v{ABIAS}, v10, 16, v10"]
    I += t3_set(0)
    I += [WaitVM(("st", 0), ("st", 1)), "s_barrier"]
    I += stamp("p3start", 2)
    I += [MFMA(vr(ACB[0], 16), vr(ABIAS, 4), vr(CQ, 4), "0")]
    for k in range(OPT.lk3):
        I += p3_reads(k)
    steps = []
    LK = OPT.lk3
    fills = {k: [] for k in range(72)}
    I += [WaitVM(("f", 1 if OPT.w2 else 0)), WaitLG(("w3", 1 if OPT.w2 else 0))]
    for k in range(72):
        p, j8 = divmod(k, 8)
        acc = ACB if p <= 6 else ACS
        st = []
        for j in range(2):
            first = (k == 0 and j == 1) or k == 56
            st.append(MFMA(vr(acc[j], 16), vr(W3[k % 6][j], 4), ar(frag_reg(k), 4), "0" if first else vr(acc[j], 16)))
            if j == 0:
                if OPT.w2:
                    if k % 2 == 1 and k + 1 < 72:
                        st.append(WaitLG(("w3", min(k + 2, 71))))
                elif k + 1 < 72:
                    st.append(WaitLG(("w3", k + 1)))
                if k + LK < 72:
                    k2 = k + LK
                    if k2 % 8 == 0:
                        p2 = k2 // 8
                        if p2 >= 2:
                            st += [WaitLG(("sw", p2)) if (OPT.v2 and p2 >= 5) else WaitVM(("st", p2))] + ([] if OPT.nobar else ["s_barrier"])
                    st += p3_reads(k2)[:2]
            else:
                if OPT.w2:
                    if k % 2 == 1 and k + 1 < 72 and not OPT.nowait:
                        st.append(WaitVM(("f", min(k + 2, 71))))
                elif k + 1 < 72 and not OPT.nowait:
                    st.append(WaitVM(("f", k + 1)))
                if k + LK < 72:
                    st += p3_reads(k + LK)[2:]
        if j8 == 1 and p + 1 <= 8:
            st += t3_set(p + 1)
        steps.append(st)
    for k in range(LA, 72):
        kk = k - LA
        if k >= 56:
            kk = OPT.kco + int((k - 56) * OPT.ost / 10)
        fills[kk].append(frag_load(k))
    for p2 in range(2, 6):
        d = write_stage(p2 + 3) if OPT.v2 else dma_stage(p2 + 3)
        for n, g in enumerate(d):
            k0 = max(8 * p2 - LK, (OPT.ks5, OPT.ks6, OPT.ks7, OPT.ks8)[p2 - 2])
            fills[k0 + int(n * OPT.kss / 10)].append(g)
    fills[OPT.kfo].insert(0, flag_store(flag_kt_nb(WS_FO), "fo", "o"))
    fills[OPT.kpo].insert(0, Group(FO_SOFF + [poll("po", vPoll, sT2)]))
    if not OPT.noep:
        fills[46].append(epoch_pre())
    fills[OPT.kco].insert(0, poll_check("po", vPoll, FO_SOFF, sT2, "o"))
    for n, g in enumerate(x_resid()):
        fills[50 + n].append(g)
    ex = EXS * SLOT
    B0, S0 = ACB[0], ACS[0]
    vEW, vER = "v12", "v14"
    fills[52] += [Group([f"s_add_u32 {sT2}, {sLD}, {ex}", f"v_add_u32 {vEW}, {sT2}, {vL16}",
                         f"s_xor_b32 {sT2}, {sT2}, 16384", f"v_add_u32 {vER}, {sT2}, {vL16}"])]
    for q in range(4):
        fills[57 + q // 2].append(Ins(f"ds_write_b128 {vEW}, {vr(ACB[1] + 4*q, 4)} offset:{q*1024}", lg="exwB"))
    kb = 64 - LK
    steps[kb] = [x for x in steps[kb]]
    i = next(n for n, x in enumerate(steps[kb]) if isinstance(x, str) and x == "s_barrier") if not OPT.nobar else 1
    steps[kb].insert(i, WaitLG("exwB"))
    for q in range(4):
        fills[kb + q // 2].append(Ins(f"ds_read_b128 {vr(RX + 4*q, 4)}, {vER} offset:{q*1024}", lg=("exr", q)))
    T = 208
    gate = [f"v_mov_b32 v10, {hex(f2u(-math.log2(math.e)))}", f"s_mov_b32 {sT3}, 0xffff0000"]
    for q in range(4):
        r = [4*q + i for i in range(4)]
        gate.append(WaitLG(("exr", q)))
        gate += [f"v_add_f32 v{B0+i}, v{B0+i}, v{RX+i}" for i in r]
        gate += [f"v_mul_f32 v{T+i}, v10, v{B0+r[i]}" for i in range(4)]
        gate += [f"v_exp_f32 v{T+i}, v{T+i}" for i in range(4)]
        gate += [f"v_add_f32 v{T+i}, 1.0, v{T+i}" for i in range(4)]
        gate += [f"v_rcp_f32 v{T+i}, v{T+i}" for i in range(4)]
        gate += [f"v_mul_f32 v{B0+r[i]}, v{B0+r[i]}, v{T+i}" for i in range(4)]
    gate.append(WaitVM("xr"))
    XU = RX
    for q in range(4):
        x0, x1 = XR + 2*q, XR + 2*q + 1
        gate += [f"v_lshlrev_b32 v{XU+4*q}, 16, v{x0}", f"v_and_b32 v{XU+4*q+1}, {sT3}, v{x0}",
                 f"v_lshlrev_b32 v{XU+4*q+2}, 16, v{x1}", f"v_and_b32 v{XU+4*q+3}, {sT3}, v{x1}"]
    g0 = kb + 2
    for n, x in enumerate(gate):
        fills[g0 + n * (72 - g0) // len(gate)].append(x)
    for k in range(72):
        I += steps[k] + fills[k]
        if k in (0, 7, 27, 41, 55, 56, 71) and not OPT.gst: I += stamp(f"k{k}", 2)
    for q in range(4):
        I.append(Ins(f"ds_write_b128 {vEW}, {vr(ACS[1] + 4*q, 4)} offset:{4096 + q*1024}", lg="exwS"))
    I += [WaitLG("exwS"), "s_barrier"]
    RS = RX + 16
    for q in range(4):
        I.append(Ins(f"ds_read_b128 {vr(RS + 4*q, 4)}, {vER} offset:{4096 + q*1024}", lg=("exs", q)))
    I += stamp("exch", 2)
    for q in range(4):
        r = [4*q + i for i in range(4)]
        I.append(WaitLG(("exs", q)))
        I += [f"v_add_f32 v{S0+i}, v{S0+i}, v{RS+i}" for i in r]
        I += [f"v_fma_f32 v{S0+i}, v{S0+i}, v{B0+i}, v{XU+i}" for i in r]
        x0, x1 = XR + 2*q, XR + 2*q + 1
        I += [f"v_cvt_pk_bf16_f32 v{x0}, v{S0+4*q}, v{S0+4*q+1}", f"v_cvt_pk_bf16_f32 v{x1}, v{S0+4*q+2}, v{S0+4*q+3}"]
        I.append(Ins(f"buffer_store_dwordx2 {vr(x0, 2)}, {vXo}, {srd(SOUT)}, {sX3} offen offset:{16*q}{OPT.outsc}", vm="out"))
    return I

EP = 224
def epoch_pre():
    C = [Raw("L_epre:"), Ins(f"s_mov_b32 {sT2}, {WS_FKV}")]
    for q in range(4):
        C.append(Ins(f"buffer_load_dwordx4 {vr(EP + 4*q, 4)}, {vL16}, {srd(SWS)}, {sT2} offen offset:{q*1024} sc1"))
    C.append(Ins("s_branch L_epre_back"))
    cold.extend(C)
    return Group([f"s_or_b32 {sT2}, s2, {sW}", f"s_cmp_eq_u32 {sT2}, 0", "s_cbranch_scc1 L_epre", Raw("L_epre_back:")])

def epoch_update():
    C = [Raw("L_epoch:"), Ins(f"s_mov_b32 {sT3}, 0x4000"), Ins("s_waitcnt vmcnt(4)"), Ins("s_branch L_epoch4"),
         Raw("L_epoch2:"), Ins(f"s_mov_b32 {sT2}, {WS_FKV}")]
    for q in range(4):
        C.append(Ins(f"buffer_load_dwordx4 {vr(EP + 4*q, 4)}, {vL16}, {srd(SWS)}, {sT2} offen offset:{q*1024} sc1"))
    C += [Ins("s_waitcnt vmcnt(0)"), Raw("L_epoch4:")]
    for r in range(16):
        C.append(Ins(f"v_xor_b32 v{EP+r}, {sTAG}, v{EP+r}"))
    for r in range(1, 16):
        C.append(Ins(f"v_or_b32 v{EP}, v{EP}, v{EP+r}"))
    C += [Ins(f"v_cmp_ne_u32 vcc, 0, v{EP}"), Ins("s_nop 0"), Ins("s_cbranch_vccz L_epoch3"),
          Ins(f"s_sub_u32 {sT3}, {sT3}, 1"), Ins(f"s_cmp_lg_u32 {sT3}, 0"), Ins("s_cbranch_scc1 L_epoch2"),
          Raw("L_epoch3:"), Ins("s_mov_b64 exec, 1"),
          Ins(f"buffer_store_dword {vTag}, off, {srd(SWS)}, 0 offset:{WS_E} sc0 sc1"),
          Ins("s_endpgm")]
    cold.extend(C)
    return [f"s_or_b32 {sT2}, s2, {sW}", f"s_cmp_eq_u32 {sT2}, 0", "s_cbranch_scc1 L_epoch"]

def dump_q():
    I = [f"s_lshl_b32 {sT1}, {sNB}, 6", f"s_add_u32 {sT1}, {sT1}, {sKT}", f"s_lshl_b32 {sT1}, {sT1}, 11",
         f"s_add_u32 {sT1}, {sT1}, {WS_DBG}"]
    I += [st_frag(QF, sT1, 0, "dq"), st_frag(QF + 4, sT1, 1024, "dq")]
    return I

def common_prefix(a, b):
    n = 0
    while n < len(a) and n < len(b) and type(a[n]) is type(b[n]) and a[n].text == b[n].text:
        n += 1
    return n

def spread(items, groups):
    d = {}
    n = len(items)
    for i, it in enumerate(items if n else []):
        d.setdefault(groups[i * len(groups) // n], []).append(it)
    return d

def finish(items, st, errors, history=()):
    r = resolve(items, st, errors)
    if OPT.opt:
        r = shadow_sink(shadow_fill(r))
    return auto_nop(r, history)

def build():
    errors = []
    sa, sb = State(), State()
    A = finish(phase1(0), sa, errors)
    B = finish(phase1(1), sb, errors)
    hazards(A, errors, "p1/var0"); fresh_store_check(A, errors, "var0")
    hazards(B, errors, "p1/var1"); fresh_store_check(B, errors, "var1")
    n = common_prefix(A, B)
    out = A[:n] + [Ins(f"s_cmp_eq_u32 {sVAR}, 1"), Ins("s_cbranch_scc1 L_var1")] + A[n:] + \
        [Ins("s_branch L_join1"), Raw("L_var1:")] + B[n:] + [Raw("L_join1:")]
    from asmlib import _rw
    for L in (A, B):
        for it in L[n:]:
            if not isinstance(it, Ins): continue
            r, w = _rw(Dec(it.text))
            if ("s", "scc") in r:
                errors.append("SCC live across the variant split: " + it.text)
            if ("s", "scc") in w: break
    st = State.merge(sa, sb)
    f0, f1 = att_final(0), att_final(1)
    pp = p3_prep()
    def att_extra(reads):
        R = att_reads() if reads else []
        ex = [spread(R, [0, 1, 2, 3, 4, 5, 6])] if R else []
        ex.append({0: w2_prep() + rot_prep()})
        order = dma_stage(0) + dma_stage(1) + dma_stage(2)
        if OPT.v2:
            order += dma_stage(5) + dma_stage(6)
            ex.append(spread(order, [1, 2, 3, 4, 5, 6, 7, 8, 9]))
            ex.append(spread(dma_stage(7) + dma_stage(8) + dma_stage(3) + dma_stage(4), [10, 11, 12, 13, 14, 15]))
        else:
            ex.append(spread(order, list(range(OPT.sa0, OPT.sa1 + 1))))
            ex.append(spread(dma_stage(3) + dma_stage(4), list(range(OPT.sb0, OPT.sb1 + 1))))
        ex.append(spread(pp, [3, 4, 5]))
        ex.append({OPT.gh: [flag_store(flag_kt_nb(WS_FH), "fh", "h")]})
        ex.append({8: [Group(["s_waitcnt lgkmcnt(0)", "s_barrier"])]})
        ex.append({OPT.gph: [Group(FH_SOFF + [poll("ph", vPoll, sT2)])]})
        if OPT.ea:
            ex.append({OPT.gch: [poll_check("ph", vPoll, FH_SOFF, sT2, "h" + ("a" if reads else "b"))]})
            ex.append(spread([frag_load(k) for k in range(OPT.ea)], list(range(OPT.gch + 1, 16))))
        m = {}
        for G in range(16):
            cats = [list(d.get(G, [])) for d in ex]
            pre = [c for c in cats if c and getattr(c[0], "first", False)]
            out = []
            cats = [c for c in cats if c]
            while any(cats):
                for c in cats:
                    if c: out.append(c.pop(0))
            m[G] = out
        return m
    tail0 = stamps_move() + stamp("att0", True) + (["s_waitcnt vmcnt(0)", "s_endpgm"] if OPT.quit.strip() == "att0" else [])
    hist = A[-30:] + B[-30:]
    T0 = finish(tail0, st, errors, hist)
    AT1 = finish(attention(att_extra(True), True), st, errors, B[-30:] + T0)
    AT1 = auto_nop(AT1, A[-30:] + T0)
    tail = f0 + f1 + stamp("att1", True)
    if OPT.stop == "att":
        tail += [flag_store(flag_kt_nb(WS_FO), "fo", "o")] + dump_q()
    else:
        early_o = [Ins("s_waitcnt vmcnt(0)")] + [Ins(x) for x in flag_kt_nb(WS_FO)] + \
                  [Ins("s_mov_b64 exec, 1"), Ins(f"buffer_store_dword {vTag}, off, {srd(SWS)}, {sT1} sc0 sc1"), Ins("s_mov_b64 exec, -1")]
        if not OPT.ea:
            tail += [poll_check("ph", vPoll, FH_SOFF, sT2, "h", pre=early_o)]
        tail += stamp("pollH", 2)
        tail += phase3()
        if OPT.amp:
            K = int(OPT.amp.strip().split(":")[2])
            if OPT.amp.strip().split(":")[1] == "fin":
                tail += ["s_memtime s[0:1]", "s_waitcnt lgkmcnt(0)", "s_sub_u32 s33, s0, s3"]
            tail += [f"s_mul_i32 s33, s33, {K}", "s_memtime s[0:1]", "s_waitcnt lgkmcnt(0)", "s_mov_b32 s34, s0", Raw("L_amp:"),
                     "s_memtime s[0:1]", "s_waitcnt lgkmcnt(0)", "s_sub_u32 s35, s0, s34", "s_cmp_lt_u32 s35, s33", "s_cbranch_scc1 L_amp"]
        if OPT.calib:
            tail += [f"s_mov_b32 s3, {OPT.calib}", Raw("L_cal:"), "s_sub_u32 s3, s3, 1", "s_cmp_lg_u32 s3, 0", "s_cbranch_scc1 L_cal"]
        tail += stamp("end", 2) + stamps_out() + (epoch_update() if not OPT.noep else [])
    tail += ["s_waitcnt vmcnt(0)"]
    T = finish(tail, st, errors, AT1[-30:])
    hazards(A[-40:] + T0 + AT1 + T, errors, "att/var0")
    hazards(B[-40:] + T0 + AT1 + T, errors, "att/var1")
    fresh_store_check(AT1 + T, errors, "tail")
    out += T0 + AT1 + [Raw("L_att_join:")] + T
    out += [Raw("L_end:"), Ins("s_endpgm")]
    C = flatten(cold)
    hazards(C, errors, "cold")
    out += C + [Raw("L_hot_end:")]
    C = flatten(cold_big)
    hazards(C, errors, "cold")
    out += C
    info = dict(est_a=est_cycles(A), est_b=est_cycles(B), est_att=est_cycles(AT1), est_t=est_cycles(T), prefix=n, na=len(A), nb=len(B))
    return out, errors, info

HEADER = """; Fused LayerNorm -> QKV -> sliding-window attention -> Wo, gated by SiLU(channel MLP), one persistent launch.
; @launch grid=(256,1,1) block=(256,1,1) lds=163840
.amdgcn_target "amdgcn-amd-amdhsa--gfx950"
.text
.globl {name}
.p2align 8
.type {name},@function
{name}:
"""
FOOTER = """.section .rodata,"a"
.p2align 6
.amdhsa_kernel {name}
  .amdhsa_next_free_vgpr 512
  .amdhsa_next_free_sgpr 102
  .amdhsa_accum_offset 256
  .amdhsa_group_segment_fixed_size 0
  .amdhsa_kernarg_size 88
  .amdhsa_user_sgpr_count 2
  .amdhsa_user_sgpr_kernarg_segment_ptr 1
  .amdhsa_system_sgpr_workgroup_id_x 1
  .amdhsa_float_denorm_mode_32 3
.end_amdhsa_kernel
"""

def main():
    args = sys.argv[1:]
    outp = args[0]
    for kv in args[1:]:
        k, v = kv.split("=")
        cur = getattr(OPT, k)
        setattr(OPT, k, (v not in ("0", "False")) if isinstance(cur, bool) else (int(v) if isinstance(cur, int) else (" " + v if v else "")))
    items, errors, info = build()
    if OPT.nocheck: errors = []
    for e in errors:
        print("ERROR:", e)
    print(info)
    if OPT.stamps: print("STAMPS", len(STAMP_NAMES), ",".join(STAMP_NAMES))
    txt = HEADER.format(name=NAME) + text_of(items) + FOOTER.format(name=NAME)
    open(outp, "w").write(txt)
    if errors:
        sys.exit(1)

if __name__ == "__main__":
    main()
```

```python
import re

class Item:
    pass

class Ins(Item):
    __slots__ = ("text", "vm", "lg", "note", "nocount")
    def __init__(self, text, vm=None, lg=None, note=None, nocount=False):
        self.nocount = nocount
        self.text = text.strip()
        self.vm = vm
        self.lg = lg
        self.note = note
    def __repr__(self):
        return self.text

class WaitVM(Item):
    def __init__(self, *tags):
        self.tags = tags

class WaitLG(Item):
    def __init__(self, *tags):
        self.tags = tags

class Raw(Item):
    def __init__(self, text):
        self.text = text

class Group(Item):
    def __init__(self, items):
        self.items = list(items)

def flatten(items):
    out = []
    for it in items:
        if isinstance(it, Group):
            out += flatten(it.items)
        elif isinstance(it, (list, tuple)):
            out += flatten(it)
        elif isinstance(it, str):
            out.append(Ins(it))
        elif it is None:
            continue
        else:
            out.append(it)
    return out

_REG = re.compile(r"^(-|\|)?([vas])(\d+)\|?$")
_RNG = re.compile(r"^(-)?([vas])\[(\d+):(\d+)\]$")

def regs_of(op):
    op = op.strip()
    if op.startswith("abs(") and op.endswith(")"):
        op = op[4:-1]
    if op.startswith("-abs(") and op.endswith(")"):
        op = op[5:-1]
    m = _REG.match(op)
    if m:
        return [(m.group(2), int(m.group(3)))]
    m = _RNG.match(op)
    if m:
        return [(m.group(2), i) for i in range(int(m.group(3)), int(m.group(4)) + 1)]
    if op == "vcc":
        return [("s", "vcc")]
    if op == "exec":
        return [("s", "exec")]
    if op == "m0":
        return [("s", "m0")]
    return []

TRANS = ("v_exp_f32", "v_rcp_f32", "v_rsq_f32", "v_log_f32", "v_sqrt_f32")

class Dec:
    def __init__(self, text):
        self.text = text
        parts = text.split(None, 1)
        self.mn = mn = parts[0]
        rest = parts[1] if len(parts) > 1 else ""
        ops, cur, depth = [], "", 0
        for ch in rest:
            if ch == "[" or ch == "(":
                depth += 1
            if ch == "]" or ch == ")":
                depth -= 1
            if ch == "," and depth == 0:
                ops.append(cur.strip()); cur = ""
            else:
                cur += ch
        if cur.strip():
            ops.append(cur.strip())
        mods = ""
        if ops:
            last = ops[-1].split(None, 1)
            if len(last) > 1 and not last[0].endswith(":"):
                ops[-1] = last[0]; mods = last[1]
        self.ops, self.mods = ops, mods
        R = lambda i: regs_of(ops[i]) if i < len(ops) else []
        self.reads, self.writes = [], []
        self.kind = "other"
        self.ws = 1
        if mn == "s_nop":
            self.kind = "nop"; self.ws = int(ops[0], 0) + 1
        elif mn.startswith("v_mfma"):
            self.kind = "mfma"
            self.D, self.A, self.B, self.C = R(0), R(1), R(2), R(3)
            self.writes = self.D; self.reads = self.A + self.B + self.C
        elif mn.startswith("v_"):
            self.kind = "valu"
            self.trans = mn.replace("_e32", "").replace("_e64", "") in TRANS
            if mn.startswith("v_cmp"):
                self.writes = R(0); self.reads = sum((R(i) for i in range(1, len(ops))), [])
            elif mn.startswith("v_permlane32_swap") or mn.startswith("v_permlane16_swap"):
                self.writes = R(0) + R(1); self.reads = R(0) + R(1)
            elif mn.startswith("v_add_co") or mn.startswith("v_addc_co"):
                self.writes = R(0) + R(1); self.reads = sum((R(i) for i in range(2, len(ops))), [])
            else:
                self.writes = R(0); self.reads = sum((R(i) for i in range(1, len(ops))), [])
                if mn.startswith("v_fmac") or mn.startswith("v_writelane"):
                    self.reads += R(0)
        elif mn.startswith("ds_read"):
            self.kind = "ds"; self.writes = R(0); self.reads = R(1); self.load = True
        elif mn.startswith("ds_write"):
            self.kind = "ds"; self.reads = R(0) + R(1); self.load = False
        elif mn.startswith("buffer_load"):
            self.kind = "vmem"
            if " lds" in (" " + mods):
                self.lds = True; self.reads = R(0) + R(1) + R(2) + [("s", "m0")]
            else:
                self.lds = False; self.writes = R(0); self.reads = R(1) + R(2) + R(3)
            self.store = False
        elif mn.startswith("buffer_store"):
            self.kind = "vmem"; self.lds = False; self.store = True
            self.data = R(0); self.reads = R(0) + R(1) + R(2) + R(3)
            self.wide = mn.endswith("x4") or mn.endswith("x3")
        elif mn.startswith("global_load"):
            self.kind = "vmem"; self.lds = False; self.store = False
            self.writes = R(0); self.reads = R(1) + R(2)
        elif mn.startswith("global_store"):
            self.kind = "vmem"; self.lds = False; self.store = True
            self.data = R(1); self.reads = R(0) + R(1) + R(2)
            self.wide = mn.endswith("x4") or mn.endswith("x3")
        elif mn.startswith("global_atomic"):
            self.kind = "vmem"; self.lds = False; self.store = True; self.wide = False
            self.data = R(1); self.reads = R(0) + R(1) + R(2)
        elif mn.startswith("buffer_inv") or mn.startswith("buffer_wbl2"):
            self.kind = "vmem"; self.lds = False; self.store = False
        elif mn.startswith("s_load") or mn.startswith("s_memtime") or mn.startswith("s_memrealtime"):
            self.kind = "smem"; self.writes = R(0); self.reads = R(1)
        elif mn.startswith("s_cmp"):
            self.kind = "salu"; self.reads = R(0) + R(1)
        elif mn.startswith("s_waitcnt") or mn in ("s_barrier", "s_endpgm", "s_setprio", "s_sleep") or mn.startswith("s_cbranch") or mn == "s_branch":
            self.kind = "ctl"
        elif mn.startswith("s_"):
            self.kind = "salu"; self.writes = R(0); self.reads = sum((R(i) for i in range(1, len(ops))), [])
        else:
            raise ValueError("unknown instruction: " + text)

class State:
    def __init__(self):
        self.vm = {}
        self.lg = {}
        self.vm_regs = {}
        self.lg_regs = {}
        self.n = 0
        self.seen = set()
    def copy(self):
        s = State()
        s.seen = set(self.seen)
        s.vm = dict(self.vm); s.lg = dict(self.lg)
        s.vm_regs = dict(self.vm_regs); s.lg_regs = dict(self.lg_regs)
        s.n = self.n
        return s
    @staticmethod
    def merge(a, b):
        s = State()
        for (da, db, ra, rb, d, r) in ((a.vm, b.vm, a.vm_regs, b.vm_regs, s.vm, s.vm_regs),
                                       (a.lg, b.lg, a.lg_regs, b.lg_regs, s.lg, s.lg_regs)):
            for t in set(da) | set(db):
                d[t] = min(da.get(t, 10 ** 9), db.get(t, 10 ** 9))
                rr = set(ra.get(t, ())) | set(rb.get(t, ()))
                if rr:
                    r[t] = rr
        s.n = max(a.n, b.n)
        s.seen = a.seen | b.seen
        return s

_auto = [0]

def resolve(items, st, errors):
    out = []
    def retire(d, r, n):
        for t in [t for t, c in d.items() if c >= n or n == 0]:
            del d[t]; r.pop(t, None)
    for it in flatten(items):
        if isinstance(it, Raw):
            out.append(it); continue
        if isinstance(it, WaitVM) or isinstance(it, WaitLG):
            isvm = isinstance(it, WaitVM)
            d, r, cap, nm = (st.vm, st.vm_regs, 63, "vmcnt") if isvm else (st.lg, st.lg_regs, 15, "lgkmcnt")
            for t in it.tags:
                if (isvm, t) not in st.seen:
                    errors.append(f"wait for an operation that has not been issued: {t}")
            ns = [d[t] for t in it.tags if t in d]
            if not ns:
                continue
            n = max(0, min(min(ns), cap))
            if isvm and min(ns) > 63:
                n = 63
            out.append(Ins(f"s_waitcnt {nm}({n})"))
            retire(d, r, n)
            continue
        assert isinstance(it, Ins), it
        dec = Dec(it.text)
        if dec.mn == "s_waitcnt":
            m = re.search(r"vmcnt\((\d+)\)", it.text)
            if m: retire(st.vm, st.vm_regs, int(m.group(1)))
            m = re.search(r"lgkmcnt\((\d+)\)", it.text)
            if m: retire(st.lg, st.lg_regs, int(m.group(1)))
            out.append(it); continue
        touched = (set(dec.reads) | set(dec.writes)) if not it.nocount else set()
        for nm, r in (("vm", st.vm_regs), ("lg", st.lg_regs)):
            for t, rr in r.items():
                bad = touched & set(rr)
                if bad:
                    errors.append(f"pending {nm} load '{t}' regs {sorted(bad, key=str)[:4]} touched by: {it.text}")
        if dec.kind == "vmem" and it.nocount:
            pass
        elif dec.kind == "vmem":
            for t in st.vm: st.vm[t] += 1
            tag = it.vm
            if tag is None:
                _auto[0] += 1; tag = f"_vm{_auto[0]}"
            st.vm[tag] = 0
            st.seen.add((True, tag))
            if dec.writes:
                st.vm_regs[tag] = set(st.vm_regs.get(tag, set())) | set(dec.writes)
        elif dec.kind == "ds":
            for t in st.lg: st.lg[t] += 1
            tag = it.lg
            if tag is None:
                _auto[0] += 1; tag = f"_lg{_auto[0]}"
            st.lg[tag] = 0
            st.seen.add((False, tag))
            if dec.writes:
                st.lg_regs[tag] = set(st.lg_regs.get(tag, set())) | set(dec.writes)
        elif dec.kind == "smem":
            _auto[0] += 1; tag = f"_sm{_auto[0]}"
            for t in st.lg: st.lg[t] = -10 ** 6
            st.lg[tag] = 0
            st.lg_regs[tag] = set(dec.writes)
        out.append(it)
    return out

def isvec(r):
    return r[0] in ("v", "a")

def hazards(items, errors, label=""):
    seq = [Dec(it.text) for it in items if isinstance(it, Ins)]
    W = 24
    for i, c in enumerate(seq):
        dist = 0
        for j in range(i - 1, max(-1, i - 40), -1):
            p = seq[j]
            def err(need, why):
                if dist < need:
                    errors.append(f"{label} hazard {why}: need {need} have {dist}: [{p.text}] -> [{c.text}]")
            pw, cr, cw = set(p.writes), set(c.reads), set(c.writes)
            pwv = {r for r in pw if isvec(r)}
            if p.kind == "valu":
                if c.kind == "mfma" and pwv & cr: err(2, "valu->mfma")
                if c.kind == "valu":
                    if (c.mn.startswith("v_permlane")) and pwv & cr: err(2, "valu->permlane")
                    if (c.mn.startswith("v_readfirstlane") or c.mn.startswith("v_readlane")) and pwv & cr: err(1, "valu->readlane")
                    if p.trans and not c.trans and pwv & cr: err(1, "trans->valu")
                    ps = {r for r in pw if r[0] == "s"}
                    if ps & cr: err(2, "valu sgpr->valu")
                if c.kind in ("vmem", "ds"):
                    ps = {r for r in pw if r[0] == "s"}
                    if ps & cr: err(5, "valu sgpr->vmem")
                    if p.trans and pwv & cr: err(1, "trans->mem")
                if c.kind == "salu":
                    ps = {r for r in pw if r[0] == "s"}
                    if ps & cr: err(1, "valu sgpr->salu")
            if p.kind == "mfma":
                D = set(p.D)
                if c.kind == "mfma":
                    if D & (set(c.A) | set(c.B)): err(12, "mfma D->A/B")
                    if D & set(c.C) and set(c.C) != D: err(10, "mfma D->C partial")
                elif c.kind in ("valu", "vmem", "ds"):
                    if D & (cr | cw): err(12, "mfma D->valu/mem")
                if c.kind == "valu" and set(p.C) & {r for r in cw if isvec(r)}: err(7, "mfma C WAR")
            if p.kind == "salu" and ("s", "m0") in pw and c.kind == "vmem" and c.lds: err(1, "m0->dma")
            if p.kind == "vmem" and p.store and p.wide and c.kind == "valu" and set(p.data) & cw: err(2, "store data WAR")
            dist += p.ws
            if dist > W:
                break
    return errors

def cost(it):
    if isinstance(it, (WaitVM, WaitLG)):
        return 4
    if isinstance(it, Raw):
        return 0
    if isinstance(it, Group):
        return sum(cost(x) for x in flatten(it.items))
    if isinstance(it, str):
        it = Ins(it)
    mn = it.text.split()[0]
    if mn.startswith("v_mfma"):
        return 8
    if mn.replace("_e32", "") in TRANS:
        return 8
    if mn == "s_nop":
        return 4 * (int(it.text.split()[1], 0) + 1)
    return 4

def interleave(steps, fillers, start=0, end=None):
    n = len(steps)
    end = n if end is None else end
    fillers = list(fillers)
    total = sum(cost(f) for f in fillers)
    out = []
    k = 0
    acc = 0
    for i, stp in enumerate(steps):
        out += stp
        if start <= i < end:
            target = total * (i - start + 1) / (end - start)
            while k < len(fillers) and (acc + cost(fillers[k]) / 2 <= target or i == end - 1):
                out.append(fillers[k]); acc += cost(fillers[k]); k += 1
    assert k == len(fillers)
    return out

def text_of(items):
    lines = []
    for it in items:
        if isinstance(it, Raw):
            lines.append(it.text)
        else:
            lines.append("  " + it.text + (f"   ; {it.note}" if it.note else ""))
    return "\n".join(lines) + "\n"

def est_cycles(items):
    t = 0; vec_free = 0; mfma_free = 0
    for it in items:
        if not isinstance(it, Ins):
            continue
        mn = it.text.split()[0]
        if mn.startswith("v_mfma"):
            t = max(t, vec_free, mfma_free); mfma_free = t + 32; vec_free = t + 8; t += 4
        elif mn.startswith("v_") or mn.startswith("ds_") or mn.startswith("buffer") or mn.startswith("global"):
            t = max(t, vec_free); c = 8 if mn.replace("_e32", "") in TRANS else 4; vec_free = t + c; t += 4
        elif mn == "s_nop":
            t += 4 * (int(it.text.split()[1], 0) + 1)
        else:
            t += 4
    return max(t, mfma_free)


def place(steps, at, fillers, start=0, end=None):
    n = len(steps)
    end = n if end is None else end
    fillers = list(fillers)
    assert all(0 <= k < n for k in at), ("item placed outside the steps", sorted(at), n)
    base = [sum(cost(x) for x in at.get(i, [])) for i in range(n)]
    total = sum(cost(f) for f in fillers) + sum(base[start:end])
    out = []
    k = 0
    acc = 0
    for i, stp in enumerate(steps):
        out += stp
        out += at.get(i, [])
        if start <= i < end:
            acc += base[i]
            target = total * (i - start + 1) / (end - start)
            while k < len(fillers) and (acc + cost(fillers[k]) / 2 <= target or i == end - 1):
                out.append(fillers[k]); acc += cost(fillers[k]); k += 1
    assert k == len(fillers)
    return out

def steps_for(items, first, stride):
    d = {}
    for n, it in enumerate(items):
        d.setdefault(first + int(n * stride), []).append(it)
    return d

def merge_at(*ds):
    out = {}
    for d in ds:
        for k, v in d.items():
            out.setdefault(k, []).extend(v)
    return out

_SCC_W = ("s_add_u32", "s_sub_u32", "s_addc_u32", "s_lshl_b32", "s_lshr_b32", "s_and_b32", "s_or_b32", "s_xor_b32",
          "s_min_u32", "s_max_u32", "s_ashr_i32", "s_add_i32", "s_sub_i32", "s_and_b64", "s_or_b64")
_MOVABLE = ("s_add_u32", "s_sub_u32", "s_mov_b32", "s_movk_i32", "s_lshl_b32", "s_lshr_b32", "s_and_b32", "s_or_b32",
            "s_xor_b32", "s_mul_i32", "s_cselect_b32", "s_cmp_eq_u32", "s_cmp_ge_u32", "s_cmp_lt_u32")

def _rw(d):
    r, w = set(d.reads), set(d.writes)
    mn = d.mn
    if mn in _SCC_W or mn.startswith("s_cmp"): w = w | {("s", "scc")}
    if mn.startswith("s_cselect") or mn.startswith("s_cbranch_scc") or mn == "s_addc_u32": r = r | {("s", "scc")}
    return r, w

def shadow_fill(items, window=48):
    items = list(items)
    dec = [Dec(it.text) if isinstance(it, Ins) else None for it in items]
    def is_long(d): return d is not None and (d.kind == "mfma" or (d.kind == "valu" and d.trans))
    def is_vec(d): return d is not None and d.kind in ("mfma", "valu", "ds", "vmem")
    p = 0
    moved = 0
    while p < len(items):
        d = dec[p]
        if d is not None and d.kind == "salu" and d.mn in _MOVABLE and not (p > 0 and is_long(dec[p - 1])):
            r, w = _rw(d)
            best = None
            q = p - 1
            while q >= 0 and p - q <= window:
                e = dec[q]
                if e is None or (e.kind == "ctl" and not e.mn.startswith("s_waitcnt") and e.mn != "s_barrier"):
                    break
                er, ew = _rw(e)
                if (ew & (r | w)) or (er & w):
                    break
                if q >= 1 and is_long(dec[q - 1]) and is_vec(e):
                    best = q
                q -= 1
            if best is not None:
                it = items.pop(p); dd = dec.pop(p)
                items.insert(best, it); dec.insert(best, dd)
                moved += 1
        p += 1
    return items

def _need(p, c):
    n = 0
    pw, cr, cw = set(p.writes), set(c.reads), set(c.writes)
    pwv = {r for r in pw if isvec(r)}
    if p.kind == "valu":
        ps = {r for r in pw if r[0] == "s"}
        if c.kind == "mfma" and pwv & cr: n = max(n, 2)
        if c.kind == "valu":
            if c.mn.startswith("v_permlane") and pwv & cr: n = max(n, 2)
            if (c.mn.startswith("v_readfirstlane") or c.mn.startswith("v_readlane")) and pwv & cr: n = max(n, 1)
            if p.trans and not c.trans and pwv & cr: n = max(n, 1)
            if ps & cr: n = max(n, 2)
        if c.kind in ("vmem", "ds"):
            if ps & cr: n = max(n, 5)
            if p.trans and pwv & cr: n = max(n, 1)
        if c.kind == "salu" and ps & cr: n = max(n, 1)
    if p.kind == "mfma":
        D = set(p.D)
        if c.kind == "mfma":
            if D & (set(c.A) | set(c.B)): n = max(n, 12)
            if D & set(c.C) and set(c.C) != D: n = max(n, 10)
        elif c.kind in ("valu", "vmem", "ds"):
            if D & (cr | cw): n = max(n, 12)
        if c.kind == "valu" and set(p.C) & {r for r in cw if isvec(r)}: n = max(n, 7)
    if p.kind == "salu" and ("s", "m0") in pw and c.kind == "vmem" and c.lds: n = max(n, 1)
    if p.kind == "vmem" and p.store and p.wide and c.kind == "valu" and set(p.data) & cw: n = max(n, 2)
    return n

def auto_nop(items, history=()):
    out = list(history); h = len(out)
    dec = [Dec(it.text) if isinstance(it, Ins) else None for it in out]
    added = 0
    for it in items:
        if isinstance(it, Ins):
            c = Dec(it.text)
            dist = 0; deficit = 0
            for j in range(len(out) - 1, max(-1, len(out) - 60), -1):
                p = dec[j]
                if p is None: continue
                deficit = max(deficit, _need(p, c) - dist)
                dist += p.ws
                if dist > 24: break
            while deficit > 0:
                n = min(deficit, 16)
                nop = Ins(f"s_nop {n-1}")
                out.append(nop); dec.append(Dec(nop.text)); deficit -= n; added += n
            out.append(it); dec.append(c)
        else:
            out.append(it); dec.append(None)
    return out[h:]

def fresh_store_check(items, errors, label=""):
    fresh = {}
    for it in items:
        if not isinstance(it, Ins): continue
        d = Dec(it.text)
        if d.kind == "vmem" and getattr(d, "store", False) and it.vm in ("kv", "h", "o", "out"):
            for r in d.data:
                if not fresh.get(r, False):
                    errors.append(f"{label} store of stale register {r}: {it.text}")
                fresh[r] = False
        for r in d.writes:
            fresh[r] = True

def shadow_sink(items, window=48):
    items = list(items)
    dec = [Dec(it.text) if isinstance(it, Ins) else None for it in items]
    def is_long(d): return d is not None and (d.kind == "mfma" or (d.kind == "valu" and d.trans))
    def is_vec(d): return d is not None and d.kind in ("mfma", "valu", "ds", "vmem")
    p = len(items) - 1
    while p >= 0:
        d = dec[p]
        if d is not None and d.kind == "salu" and d.mn in _MOVABLE and not (p > 0 and is_long(dec[p - 1])):
            r, w = _rw(d)
            best = None
            q = p + 1
            while q < len(items) and q - p <= window:
                e = dec[q]
                if e is None or (e.kind == "ctl" and not e.mn.startswith("s_waitcnt") and e.mn != "s_barrier"):
                    break
                er, ew = _rw(e)
                if (ew & (r | w)) or (er & w):
                    break
                if is_long(e) and q + 1 < len(items) and is_vec(dec[q + 1]):
                    best = q
                q += 1
            if best is not None:
                it = items.pop(p); dd = dec.pop(p)
                items.insert(best, it); dec.insert(best, dd)
        p -= 1
    return items
```

```python
import sys, os, math, struct
from asmlib import *

NAME = "recurrent_scan__sliding_block__mixer_channel_mlp__prompt_kernel"

def f2u(x):
    return struct.unpack("<I", struct.pack("<f", x))[0]

WS_E = 0x0
WS_FKV = 0x1000
WS_FH = 0x2000
WS_FO = 0x3000
WS_KV = 0x10000
REC = 4096
WS_O = 0x500000
WS_H = 0x700000
WS_DBG = 0xE00000
WS_SIZE = 0x2000000

SX, SWQ, SWO, SW1, SW2, SOUT, SWS, SB1, SB2 = 4, 8, 12, 16, 20, 24, 28, 32, 36
def srd(b): return f"s[{b}:{b+3}]"
sMB, sNB, sW, sTAG, sKT, sHB0 = "s40", "s41", "s42", "s43", "s44", "s45"
sI, sVAR = "s46", "s47"
sT0, sT1, sT2, sT3 = "s48", "s49", "s50", "s51"
sXO, sLW, sQB, sH1, sLD = "s52", "s53", "s54", "s55", "s56"
sKV, sHo, sW2B = "s57", "s58", "s59"
sBIT0, sBIT1, sBIT2, sBIT3, sBIT4 = "s[60:61]", "s[62:63]", "s[64:65]", "s[66:67]", "s[68:69]"
sWOB, sH3, sO3, sF3, sX3 = "s52", "s53", "s54", "s55", "s45"
sPaH, sHr, sPaW, sWr = "s8", "s9", "s10", "s11"
sKVL = "s16"

vL = "v0"
vL16, vWq, vW1, vTr = "v1", "v2", "v3", "v4"
vTrA, vTrB = "v5", "v11"
vK1, vK2, vKinv, vR1, vQs = "v6", "v7", "v8", "v9", "v10"
vPoll, vTag, vPollR, vTmp = "v12", "v13", "v14", "v15"
ACC = (16, 32)
WF = 48
DMEAN = 64
D2 = 80
TT = 80
BINV, RFRAG, CHALF = 84, 88, 92
PB = (96, 104)
CONSTA, SEL0, SEL1 = 112, 116, 120
QF = 112
ABIAS = 120
XS = 124
XF = 128

def vr(b, n=1):
    return f"v{b}" if n == 1 else f"v[{b}:{b+n-1}]"
def ar(b, n=1):
    return f"a{b}" if n == 1 else f"a[{b}:{b+n-1}]"
def X(s): return vr(XF + 4 * s, 4)
def MFMA(d, a, b, c):
    return f"v_mfma_f32_32x32x16_bf16 {d}, {a}, {b}, {c}"

AK, AV = 0, 72
def aK(t, hh): return ar(AK + 8 * t + 4 * hh, 4)
def aV(t, s, hh): return ar(AV + 16 * t + 8 * s + 4 * hh, 4)

SLOT = 32768
KVL = SLOT
KVR = 4160

class Opt:
    stop = None
    stamps = False
    sc = " sc1"
    la = 10
    touch = True
    rot = True
    gh = 3
    gph = 11
    kpo = 30
    kco = 40
    st1 = 24
    st2 = 30
    dstart = 1
    dstride10 = 27
    mall = True
    outsc = ""
    out4 = True
    esc = ""
    opt = True
    gst = False
    lk = 5
    fend = 30
    tlb = 0
    h0s = 4
    gV = -8
    gVs = 10
    wst = 27
    gH0 = 2
    gH1 = 33
    gH2 = 65
    gTq = 118
    gH3 = 96
    gTq1 = 90
    gQ1 = 112
    gQ0 = 144
    gFkv = 122
    gPkv = 150
    gKv = 162
    kst = 13
    early = False
    v2 = False
    gTwo = 188
    nohl = False
    hsc = " sc1"
    lk3 = 4
    nowait = False
    nobar = False
    nocheck = False
    only = ""
    calib = 0
    quit = ""
    noep = False
    w2 = True
    ea = 10
    gch = 14
    kfo = 8
    ost = 10
    ks5 = 0
    ks6 = 0
    ks7 = 0
    ks8 = 0
    kss = 10
    probe = ""
    elate = False
    tx = True
    sa0 = 1
    sa1 = 8
    sb0 = 9
    sb1 = 15
    amp = ""
    q0first = 0
    ws0 = 27
    ws1 = 27
    ws2 = 27
    earlyq = False
    tq1 = False
    gTm1 = 134
    stg = "78"
    nse = 1
    stag = 0
    kvlate = 1
    rge = 6
    gbar = 8
    w1p = ""
    w3p = ""
    xp = ""
    gTh = 99
    skipg = 99
    nofb = False
    mid = False
    e0s = False
    e0g = 10
    e0st = 22
    nost = False
    nodma = False
    nostage = False
    nokv = False
OPT = Opt()

STAMP_NAMES = ["start"]
def sreg(i):
    return 180 + i
LATE = {}
LATE_REGS = [33, 34, 35, 19, 46] + list(range(70, 102))
def stamp(name, late=False):
    if OPT.amp:
        a, b, K = OPT.amp.strip().split(":")
        if name == a: return [Group(["s_memtime s[0:1]", "s_waitcnt lgkmcnt(0)", "s_mov_b32 s3, s0"])]
        if name == b: return [Group(["s_memtime s[0:1]", "s_waitcnt lgkmcnt(0)", "s_sub_u32 s33, s0, s3"])]
        return []
    if not OPT.stamps:
        return []
    if OPT.only and name not in OPT.only.replace(" ", "").split("+"):
        return []
    if name not in STAMP_NAMES:
        STAMP_NAMES.append(name)
    i = STAMP_NAMES.index(name)
    if late:
        if name not in LATE:
            pool = LATE_REGS[:5] if late is True else LATE_REGS[5:]
            LATE[name] = [r for r in pool if r not in LATE.values()][0]
        mv = f"s_mov_b32 s{LATE[name]}, s0"
    else:
        mv = f"v_accvgpr_write_b32 a{sreg(i)}, s0"
    return [Group(["s_memtime s[0:1]", "s_waitcnt lgkmcnt(0)", mv])]

def stamps_move():
    if not OPT.stamps: return []
    I = ["s_lshl_b32 s3, s2, 2", f"s_add_u32 s3, s3, {sW}", "s_lshl_b32 s3, s3, 7", f"s_add_u32 s3, s3, {WS_DBG + (4 << 20)}"]
    n = len(STAMP_NAMES)
    for i in range(n):
        I.append(f"v_accvgpr_read_b32 v{128+i}, a{sreg(i)}")
    I.append("v_accvgpr_read_b32 v160, a179")
    for i in range(n):
        I.append(Ins(f"buffer_store_dword v{128+i}, off, {srd(SWS)}, s3 offset:{4*i}"))
    I.append(Ins(f"buffer_store_dword v160, off, {srd(SWS)}, s3 offset:120"))
    return I

def stamps_out():
    if not OPT.stamps: return []
    I = ["s_memrealtime s[0:1]", "s_waitcnt lgkmcnt(0)", "v_mov_b32 v16, s0",
         Ins(f"buffer_store_dword v16, off, {srd(SWS)}, s3 offset:124")]
    if OPT.probe:
        I += ["v_mov_b32 v40, s33", "v_mov_b32 v41, s34", Ins(f"buffer_store_dword v40, off, {srd(SWS)}, s3 offset:112"), Ins(f"buffer_store_dword v41, off, {srd(SWS)}, s3 offset:116")]
    for n, (name, r) in enumerate(LATE.items()):
        I += [f"v_mov_b32 v{17+n}, s{r}", Ins(f"buffer_store_dword v{17+n}, off, {srd(SWS)}, s3 offset:{4*STAMP_NAMES.index(name)}")]
    return I

def prologue():
    I = []
    a = I.append
    a("s_cmp_ge_u32 s2, 256" if OPT.quit.strip() != "start" else "s_cmp_ge_u32 s2, 0")
    a("s_cbranch_scc1 L_end")
    for (b, off) in ((SX, 0), (SWQ, 8), (SWS, 80), (SB1, 40), (SW1, 32), (SWO, 16), (SW2, 48), (SB2, 56), (SOUT, 64)):
        a(f"s_load_dwordx2 s[{b}:{b+1}], s[0:1], {off}")
    if OPT.amp and OPT.amp.strip().startswith("start"):
        a("s_memtime s[98:99]")
    if OPT.stamps:
        a("s_memtime s[98:99]")
        a("s_memrealtime s[96:97]")
    a("s_getpc_b64 s[60:61]")
    a(Raw("L_pc:"))
    a("v_lshrrev_b32 v2, 6, v0")
    a("v_and_b32 v1, 3, v0")
    a("v_lshl_add_u32 v1, v2, 2, v1")
    a(f"s_lshr_b32 {sI}, s2, 3")
    a(f"s_lshl_b32 s49, {sI}, 11")
    a("v_lshlrev_b32 v1, 7, v1")
    a("v_add_u32 v1, s49, v1")
    a("s_mov_b32 s50, L_hot_end-L_pc-4")
    a("v_min_u32 v1, s50, v1")
    a("v_readfirstlane_b32 s42, v2")
    a(Ins("global_load_dword a255, v1, s[60:61]", vm="pf"))
    a("s_and_b32 s49, s2, 7")
    a("s_lshr_b32 s50, s49, 1")
    a("s_lshl_b32 s50, s50, 2")
    a(f"s_and_b32 s51, {sI}, 3")
    a(f"s_add_u32 {sMB}, s50, s51")
    a("s_and_b32 s50, s49, 1")
    a("s_lshl_b32 s50, s50, 3")
    a(f"s_lshr_b32 s51, {sI}, 2")
    a(f"s_add_u32 {sNB}, s50, s51")
    a("v_and_b32 v0, 63, v0")
    for (b, size) in ((SX, 2048*512*2), (SWQ, 512*1536*2), (SWS, WS_SIZE), (SB1, 1792*2)):
        a(f"s_mov_b32 s{b+2}, {size}")
        a(f"s_mov_b32 s{b+3}, 0x20000")
    a(f"s_lshr_b32 s50, {sNB}, 1")
    a("s_mul_i32 s50, s50, 7")
    a(f"s_and_b32 {sVAR}, {sNB}, 1")
    a(f"s_lshl_b32 s51, {sVAR}, 2")
    a(f"s_add_u32 {sHB0}, s50, s51")
    if OPT.touch and OPT.kvlate:
        a(f"s_lshr_b32 s50, {sMB}, 2")
        a("s_lshl_b32 s50, s50, 9")
        a(f"s_lshl_b32 s51, {sI}, 4")
        a("s_add_u32 s50, s50, s51")
        a(f"s_lshl_b32 s51, {sW}, 2")
        a("s_add_u32 s50, s50, s51")
        a("s_lshl_b32 s50, s50, 10")
        a(f"v_bfe_u32 v1, {vL}, 3, 2")
        a(f"v_and_b32 v2, 7, {vL}")
        a("v_lshlrev_b32 v2, 7, v2")
        a("v_lshl_add_u32 v1, v1, 10, v2")
        a("s_waitcnt lgkmcnt(0)")
        a(Ins(f"buffer_load_dword a254, v1, {srd(SX)}, s50 offen", vm="t1"))
    elif OPT.touch:
        a(f"s_cmp_lt_u32 {sW}, 2")
        a("s_cbranch_scc0 L_tw")
        a(f"s_lshr_b32 s50, {sMB}, 2")
        a("s_lshl_b32 s50, s50, 9")
        a(f"s_lshl_b32 s51, {sI}, 4")
        a("s_add_u32 s50, s50, s51")
        a(f"s_lshl_b32 s51, {sW}, 3")
        a("s_add_u32 s50, s50, s51")
        a("s_lshl_b32 s50, s50, 10")
        a(f"v_lshrrev_b32 v1, 3, {vL}")
        a(f"v_and_b32 v2, 7, {vL}")
        a("v_lshlrev_b32 v2, 7, v2")
        a("v_lshl_add_u32 v1, v1, 10, v2")
        a("s_waitcnt lgkmcnt(0)")
        a(Ins(f"buffer_load_dword a254, v1, {srd(SX)}, s50 offen", vm="t1") if OPT.tx else Ins(f"buffer_load_dword a254, off, {srd(SX)}, s50", vm="t1"))
        a("s_branch L_td")
        a(Raw("L_tw:"))
        a(f"s_mul_i32 s50, {sI}, {16*3072}")
        a(f"s_lshr_b32 s51, {sNB}, 3")
        a("s_lshl_b32 s51, s51, 9")
        a("s_add_u32 s50, s50, s51")
        a(f"s_sub_u32 s51, {sW}, 1")
        a("s_lshl_b32 s51, s51, 10")
        a("s_add_u32 s50, s50, s51")
        a(f"v_lshrrev_b32 v1, 2, {vL}")
        a(f"v_and_b32 v2, 3, {vL}")
        a("v_lshlrev_b32 v2, 7, v2")
        a("s_movk_i32 s51, 3072")
        a("v_mad_u32_u24 v1, v1, s51, v2")
        a("s_waitcnt lgkmcnt(0)")
        a(Ins(f"buffer_load_dword a254, v1, {srd(SWQ)}, s50 offen", nocount=True))
        a(Raw("L_td:"))
    a("s_waitcnt lgkmcnt(0)")
    if OPT.amp and OPT.amp.strip().startswith("start"):
        a("s_mov_b32 s3, s98")
    I += stamp("karg")
    if not OPT.elate:
        I += e_bias_loads()
    if OPT.tlb == 1:
        for (b, size) in ((SW1, 512*1792*2), (SWO, 512*512*2), (SW2, 1792*512*2), (SB2, 512*2), (SOUT, 2048*512*2)):
            a(f"s_mov_b32 s{b+2}, {size}")
            a(f"s_mov_b32 s{b+3}, 0x20000")
        I += tlb_loads()
    a(f"s_lshl_b32 {sKT}, {sMB}, 2")
    a(f"s_add_u32 {sKT}, {sKT}, {sW}")
    a(f"s_lshl_b32 {sXO}, {sKT}, 15")
    a(f"s_lshl_b32 {sLW}, {sW}, 15")
    a(f"v_lshrrev_b32 v14, 4, {vL}")
    a(f"v_and_b32 v12, 15, {vL}")
    a("v_xor_b32 v12, v12, v14")
    a("v_lshlrev_b32 v12, 4, v12")
    a(f"v_lshl_add_u32 v{XS}, v14, 10, v12")
    for j in range(1, 4):
        a(f"v_xor_b32 v{XS+j}, {64*j}, v{XS}")
    a(f"s_lshl_b32 {sLD}, {sW}, 13")
    a(f"s_mul_i32 {sQB}, {sW}, {8*16*3072}")
    a(f"s_lshl_b32 s50, {sNB}, 6")
    a(f"s_add_u32 {sQB}, {sQB}, s50")
    a(f"v_lshlrev_b32 {vL16}, 4, {vL}")
    a(f"v_lshrrev_b32 v14, 2, {vL}")
    a(f"v_and_b32 v12, 3, {vL}")
    a("v_lshlrev_b32 v12, 4, v12")
    a("s_movk_i32 s50, 3072")
    a("s_movk_i32 s51, 3584")
    a(f"v_mad_u32_u24 {vWq}, v14, s50, v12")
    a(f"v_mad_u32_u24 {vW1}, v14, s51, v12")
    a(f"s_mul_i32 {sH1}, {sW}, {8*16*3584}")
    a(f"s_lshl_b32 s50, {sHB0}, 6")
    a(f"s_add_u32 {sH1}, {sH1}, s50")
    a(f"s_lshl_b32 s50, {sNB}, 6")
    a(f"s_add_u32 s50, s50, {sKT}")
    a(f"s_lshl_b32 {sKV}, s50, 12")
    a(f"s_add_u32 {sKV}, {sKV}, {WS_KV}")
    a(f"s_mul_i32 s50, {sKT}, 112")
    a(f"s_lshl_b32 s51, {sHB0}, 1")
    a("s_add_u32 s50, s50, s51")
    a("s_lshl_b32 s50, s50, 10")
    a(f"s_add_u32 {sHo}, s50, {WS_H}")
    for (b, size) in ((SW1, 512*1792*2), (SWO, 512*512*2), (SW2, 1792*512*2), (SB2, 512*2), (SOUT, 2048*512*2)):
        a(f"s_mov_b32 s{b+2}, {size}")
        a(f"s_mov_b32 s{b+3}, 0x20000")
    if OPT.stamps:
        a("v_accvgpr_write_b32 a180, s98"); a("v_accvgpr_write_b32 a179, s96")
    return I

def e_bias_loads():
    I = [Ins(f"buffer_load_dword {vTag}, off, {srd(SWS)}, 0 offset:{WS_E}{OPT.sc}", vm="E"),
         Group([f"v_and_b32 v14, 31, {vL}", "v_lshlrev_b32 v14, 1, v14", f"s_lshl_b32 {sT1}, {sHB0}, 6"] +
               [Ins(f"buffer_load_ushort v{104+j}, v14, {srd(SB1)}, {sT1} offen offset:{64*j}", vm="bias") for j in range(4)])]
    return I

def tlb_loads():
    I = [Ins(f"buffer_load_dword a{240+n}, off, {srd(b)}, 0", vm=("tlb", n)) for n, b in enumerate((SW2, SWO, SB2, SOUT))]
    I.append(Group([f"v_and_b32 v12, 7, {vL}", "v_lshlrev_b32 v12, 21, v12",
                    Ins(f"buffer_load_dword a245, v12, {srd(SWS)}, 0 offen offset:2048 sc1", vm=("tlb", 5))]))
    return I

def dma_x(kq):
    I = []
    for g in range(8):
        I.append(Group([f"s_add_u32 m0, {sLW}, {kq*8192 + g*1024}",
                        f"s_add_u32 {sT0}, {sXO}, {g*4096 + kq*256}",
                        Ins(f"buffer_load_dwordx4 v{XS + (g & 3)}, {srd(SX)}, {sT0} offen{OPT.xp} lds", vm=("x", kq))]))
    return I

def dma_w(tag, slot, kind, j=0):
    I = []
    if OPT.nodma and tag not in ("wK", "wV"): return I
    for i8 in range(8):
        if kind == "H":
            base, voff, s, c = sH1, vW1, SW1, j * 64 + i8 * 16 * 3584
        else:
            base, voff, s, c = sQB, vWq, SWQ, {"Q": 0, "K": 1024, "V": 2048}[kind] + i8 * 16 * 3072
        I.append(Group([f"s_add_u32 m0, {sLD}, {slot*SLOT + i8*1024}",
                        f"s_add_u32 {sT0}, {base}, {c}",
                        Ins(f"buffer_load_dwordx4 {voff}, {srd(s)}, {sT0} offen{OPT.w1p} lds", vm=tag)]))
    return I

def touch_kv():
    return Group([f"v_bfe_u32 {vPoll}, {vL}, 2, 3", f"v_and_b32 {vTmp}, 3, {vL}", f"v_lshlrev_b32 {vTmp}, 7, {vTmp}",
                  f"s_movk_i32 {sT2}, 3072", f"v_mad_u32_u24 {vTmp}, {vPoll}, {sT2}, {vTmp}",
                  f"s_lshl_b32 {sT2}, {sI}, 1", f"s_and_b32 {sT3}, {sW}, 1", f"s_add_u32 {sT2}, {sT2}, {sT3}", f"s_mul_i32 {sT2}, {sT2}, {8*3072}",
                  f"s_lshr_b32 {sT3}, {sNB}, 3", f"s_lshl_b32 {sT3}, {sT3}, 9", f"s_add_u32 {sT2}, {sT2}, {sT3}",
                  f"s_lshr_b32 {sT3}, {sW}, 1", f"s_add_u32 {sT3}, {sT3}, 1", f"s_lshl_b32 {sT3}, {sT3}, 10", f"s_add_u32 {sT2}, {sT2}, {sT3}",
                  Ins(f"buffer_load_dword a253, {vTmp}, {srd(SWQ)}, {sT2} offen", vm="t1b")])

def touch_h():
    return Group([f"v_and_b32 {vTmp}, 3, {vL}", f"s_lshl_b32 {sT2}, {sW}, 2", f"v_add_u32 {vTmp}, {sT2}, {vTmp}",
                  f"v_min_u32 {vTmp}, 13, {vTmp}", f"v_lshlrev_b32 {vTmp}, 7, {vTmp}",
                  f"v_lshrrev_b32 {vPoll}, 2, {vL}", f"s_movk_i32 {sT2}, 3584", f"v_mad_u32_u24 {vTmp}, {vPoll}, {sT2}, {vTmp}",
                  f"s_mul_i32 {sT2}, {sI}, {16*3584}", f"s_lshr_b32 {sT3}, {sNB}, 3", f"s_mul_i32 {sT3}, {sT3}, 1792",
                  f"s_add_u32 {sT2}, {sT2}, {sT3}",
                  Ins(f"buffer_load_dword a248, {vTmp}, {srd(SW1)}, {sT2} offen", vm="t2")])

def touch_q():
    return Group([f"v_bfe_u32 {vPoll}, {vL}, 2, 2", f"v_and_b32 {vTmp}, 3, {vL}", f"v_lshlrev_b32 {vTmp}, 7, {vTmp}",
                  f"s_movk_i32 {sT2}, 3072", f"v_mad_u32_u24 {vTmp}, {vPoll}, {sT2}, {vTmp}",
                  f"s_lshl_b32 {sT2}, {sI}, 2", f"s_add_u32 {sT2}, {sT2}, {sW}", f"s_mul_i32 {sT2}, {sT2}, {4*3072}",
                  f"s_lshr_b32 {sT3}, {sNB}, 3", f"s_lshl_b32 {sT3}, {sT3}, 9", f"s_add_u32 {sT2}, {sT2}, {sT3}",
                  Ins(f"buffer_load_dword a252, {vTmp}, {srd(SWQ)}, {sT2} offen", vm="t3")])

def touch_q1():
    return Group([f"v_bfe_u32 {vPoll}, {vL}, 2, 3", f"v_and_b32 {vTmp}, 3, {vL}", f"v_lshlrev_b32 {vTmp}, 7, {vTmp}",
                  f"s_movk_i32 {sT2}, 3072", f"v_mad_u32_u24 {vTmp}, {vPoll}, {sT2}, {vTmp}",
                  f"s_lshr_b32 {sT2}, {sI}, 3", f"s_lshl_b32 {sT2}, {sT2}, 2", f"s_and_b32 {sT3}, {sI}, 3", f"s_add_u32 {sT2}, {sT2}, {sT3}",
                  f"s_lshl_b32 {sT2}, {sT2}, 2", f"s_add_u32 {sT2}, {sT2}, {sW}", f"s_mul_i32 {sT2}, {sT2}, {8*3072}",
                  f"s_lshr_b32 {sT3}, {sNB}, 3", f"s_lshl_b32 {sT3}, {sT3}, 9", f"s_add_u32 {sT2}, {sT2}, {sT3}",
                  Ins(f"buffer_load_dword a252, {vTmp}, {srd(SWQ)}, {sT2} offen", vm="t3")])

def touch_mall1():
    idx = [f"s_lshr_b32 {sT2}, s2, 6", f"s_lshl_b32 {sT2}, {sT2}, 5", f"s_and_b32 {sT3}, s2, 31", f"s_add_u32 {sT2}, {sT2}, {sT3}",
           f"s_lshl_b32 {sT2}, {sT2}, 2", f"s_add_u32 {sT2}, {sT2}, {sW}"]
    return [Group([f"v_and_b32 {vTmp}, 31, {vL}", f"v_lshlrev_b32 {vTmp}, 7, {vTmp}"] + idx + [f"s_lshl_b32 {sT2}, {sT2}, 12",
                   Ins(f"buffer_load_dword a251, {vTmp}, {srd(SW2)}, {sT2} offen", vm="t5")]),
            Group([f"v_and_b32 {vTmp}, 7, {vL}", f"v_lshlrev_b32 {vTmp}, 7, {vTmp}"] + idx + [f"s_lshl_b32 {sT2}, {sT2}, 10",
                   Ins(f"buffer_load_dword a250, {vTmp}, {srd(SWO)}, {sT2} offen", vm="t6")])]

def touch_wo():
    return Group([f"v_bfe_u32 {vPollR}, {vL}, 3, 2", f"v_and_b32 {vTmp}, 7, {vL}", f"v_lshlrev_b32 {vTmp}, 7, {vTmp}",
                  f"v_lshl_add_u32 {vTmp}, {vPollR}, 10, {vTmp}",
                  f"s_lshl_b32 {sT2}, {sI}, 2", f"s_add_u32 {sT2}, {sT2}, {sW}", f"s_lshl_b32 {sT2}, {sT2}, 12",
                  Ins(f"buffer_load_dword a249, {vTmp}, {srd(SWO)}, {sT2} offen", vm="t4")])

def setup_idle():
    I = []
    a = I.append
    a(f"v_lshrrev_b32 v14, 5, {vL}")
    a("v_lshlrev_b32 v14, 2, v14")
    a(f"v_bfe_u32 v15, {vL}, 2, 2")
    a("v_add_u32 v14, v14, v15")
    a("v_lshlrev_b32 v14, 6, v14")
    a(f"v_bfe_u32 v15, {vL}, 4, 1")
    a("v_lshl_add_u32 v14, v15, 5, v14")
    a(f"v_and_b32 v15, 3, {vL}")
    a(f"v_lshl_add_u32 {vTr}, v15, 3, v14")
    a(f"v_and_b32 v14, 31, {vL}")
    a(f"v_lshrrev_b32 v15, 5, {vL}")
    a(f"v_and_b32 v96, 15, {vL}")
    a("v_xor_b32 v15, v15, v96")
    a("v_lshlrev_b32 v15, 4, v15")
    a("v_lshl_add_u32 v14, v14, 8, v15")
    a(f"v_add_u32 v96, {sLW}, v14")
    for sp in range(1, 8):
        a(f"v_xor_b32 v{96+sp}, {32*sp}, v96")
    for r in range(4):
        a(f"v_mov_b32 v{CONSTA+r}, 0xbb00bb00")
    a(f"v_and_b32 v14, 31, {vL}")
    a(f"v_lshrrev_b32 v15, 5, {vL}")
    a("v_lshlrev_b32 v15, 3, v15")
    a("v_sub_u32 v14, v14, v15")
    a("v_and_b32 v15, 1, v14")
    a("v_lshlrev_b32 v15, 4, v15")
    a("v_mov_b32 v16, 0x3f80")
    a("v_lshlrev_b32 v15, v15, v16")
    a("v_lshrrev_b32 v16, 1, v14")
    a("v_subrev_u32 v17, 8, v16")
    for (sel, src) in ((SEL0, "v16"), (SEL1, "v17")):
        for j in range(4):
            p = 60 + 2 * (j & 1)
            a(f"v_cmp_eq_u32 s[{p}:{p+1}], {j}, {src}")
            a(f"v_cndmask_b32 v{sel+j}, 0, v15, s[{p}:{p+1}]")
    for (p, val) in ((60, 0xAAAAAAAA), (62, 0xCCCCCCCC), (64, 0xF0F0F0F0), (66, 0xFF00FF00), (68, 0xFFFF0000)):
        a(f"s_mov_b32 s{p}, {hex(val)}")
        a(f"s_mov_b32 s{p+1}, {hex(val)}")
    a(f"v_and_b32 v14, 31, {vL}")
    a(f"v_lshrrev_b32 v15, 5, {vL}")
    a("v_lshlrev_b32 v15, 2, v15")
    a("v_sub_u32 v14, v14, v15")
    for r in range(16):
        a(f"v_cmp_le_i32 s[{70+2*r}:{71+2*r}], {8*(r>>2) + (r&3)}, v14")
    return I

def pass1():
    if OPT.q0first == 0:
        I = dma_x(0) + dma_x(1) + stamp("xissued")
    elif OPT.q0first == 1:
        I = dma_x(1) + stamp("xissued")
    else:
        I = stamp("xissued")
    t2 = [touch_h()] if (OPT.touch and OPT.gTh == 99) else []
    if OPT.early: t2 += ([touch_q()] if OPT.touch else []) + (touch_mall() if OPT.mall else [])
    if OPT.earlyq and OPT.touch: t2 += [touch_q()]
    if OPT.tlb == 2: t2 += tlb_loads()
    kvt = [touch_kv()] if (OPT.touch and OPT.kvlate) else []
    later = [dma_x(2), dma_x(3) + (kvt if OPT.kvlate == 2 else []), (kvt if OPT.kvlate == 1 else []) + dma_w("wK", 4, "K"), t2 + (e_bias_loads() if OPT.elate else [])]
    for kq in range(4):
        I.append(WaitVM(("x", kq)))
        if kq in (0, 3): I += stamp(f"x{kq}")
        for sp in range(8):
            s = 8 * kq + sp
            I.append(Ins(f"ds_read_b128 {X(s)}, v{96+sp} offset:{kq*8192}", lg=("xr", s)))
        if kq == 2 and not OPT.elate:
            I.append(WaitVM("bias"))
            I += [f"v_mov_b32 v{XS+j}, v{104+j}" for j in range(4)]
        steps = []
        for sp in range(8):
            s = 8 * kq + sp
            steps.append([WaitLG(("xr", s)),
                          MFMA(vr(DMEAN, 16), vr(CONSTA, 4), X(s), vr(DMEAN, 16) if s else "0"),
                          MFMA(vr(D2, 16), X(s), X(s), vr(D2, 16) if s else "0")])
        I += place(steps, steps_for(later[kq], 0, 1 if len(later[kq]) <= 8 else 7.99 / len(later[kq])), [])
    I += stamp("pass1")
    if OPT.quit.strip() == "pass1": I += ["s_waitcnt vmcnt(0)", "s_endpgm"]
    I.append("s_barrier")
    return I

def stats():
    I = []
    a = I.append
    d = lambda i: f"v{D2+i}"
    for p in range(8): a(f"v_cndmask_b32 {d(2*p)}, {d(2*p)}, {d(2*p+1)}, {sBIT0}")
    for p in range(4): a(f"v_cndmask_b32 {d(4*p)}, {d(4*p)}, {d(4*p+2)}, {sBIT1}")
    for p in range(2): a(f"v_cndmask_b32 {d(8*p)}, {d(8*p)}, {d(8*p+4)}, {sBIT3}")
    a(f"v_cndmask_b32 {d(0)}, {d(0)}, {d(8)}, {sBIT4}")
    a(f"v_mul_f32 {d(2)}, v{DMEAN}, v{DMEAN}")
    a(f"v_mov_b32 {d(1)}, {d(0)}")
    a(f"v_mov_b32 {d(3)}, 0x3b000000")
    a(f"v_permlane32_swap_b32 {d(0)}, {d(1)}")
    a(f"v_mov_b32 {d(4)}, 0x3727c5ac")
    a(f"v_cndmask_b32 {d(0)}, {d(0)}, {d(1)}, {sBIT2}")
    a(f"v_fma_f32 {d(0)}, {d(0)}, {d(3)}, -{d(2)}")
    a(f"v_max_f32 {d(0)}, 0, {d(0)}")
    a(f"v_add_f32 {d(1)}, {d(0)}, {d(4)}")
    a(f"v_rsq_f32 {vR1}, {d(1)}")
    a(f"v_mul_f32 {d(1)}, {vR1}, {vR1}")
    a(f"v_fma_f32 {d(1)}, {d(0)}, {d(1)}, {d(4)}")
    a(f"v_rsq_f32 {d(1)}, {d(1)}")
    a(f"v_mul_f32 {d(1)}, {d(1)}, {vR1}")
    a(f"v_mul_f32 {vQs}, {hex(f2u(math.log2(math.e) / 4))}, {vR1}")
    a(f"v_rcp_f32 {vKinv}, {d(1)}")
    c1 = -2 * math.log2(math.e) * math.sqrt(2 / math.pi)
    a(f"v_mul_f32 {vK1}, {hex(f2u(c1))}, {d(1)}")
    a(f"v_mul_f32 {d(2)}, {d(1)}, {d(1)}")
    a(f"v_mul_f32 {d(2)}, {d(2)}, {d(1)}")
    a(f"v_mul_f32 {vK2}, {hex(f2u(c1 * 0.044715))}, {d(2)}")
    a(f"v_mul_f32 {d(0)}, 0.5, {vKinv}")
    a(f"v_cvt_pk_bf16_f32 {d(1)}, {d(0)}, {d(0)}")
    a(f"v_cvt_pk_bf16_f32 {d(2)}, {vR1}, {vR1}")
    a(f"v_and_b32 {d(1)}, 0xffff0000, {d(1)}")
    a(f"v_and_b32 {d(2)}, 0xffff0000, {d(2)}")
    a(f"v_sub_f32 {d(1)}, {d(0)}, {d(1)}")
    a(f"v_sub_f32 {d(2)}, {vR1}, {d(2)}")
    a(f"v_cvt_pk_bf16_f32 v{BINV}, {d(0)}, {d(1)}")
    a(f"v_cvt_pk_bf16_f32 v{RFRAG}, {vR1}, {d(2)}")
    a(f"v_mov_b32 v{CHALF}, 0x3f003f00")
    for b in (BINV, RFRAG, CHALF):
        for r in range(1, 4):
            a(f"v_mov_b32 v{b+r}, 0")
    return I

def center_cvts(j):
    buf = (ACC[1], ACC[0], WF)[j % 3]
    return [f"v_cvt_pk_bf16_f32 v{XF + 8*j + q}, v{buf + 2*q}, v{buf + 2*q + 1}" for q in range(8)]

def centering(at, fillers, mid):
    steps = []
    bufs = (ACC[1], ACC[0], WF)
    for j in range(16):
        st = []
        buf = vr(bufs[j % 3], 16)
        st.append(MFMA(buf, vr(SEL0, 4), X(2 * j), vr(DMEAN, 16)))
        if j >= 2:
            st += center_cvts(j - 2)[:4]
        st.append(MFMA(buf, vr(SEL1, 4), X(2 * j + 1), buf))
        if j >= 2:
            st += center_cvts(j - 2)[4:]
        steps.append(st)
    I = place(steps, at, fillers, start=3, end=15)
    I += mid
    I += stamp("center")
    return I

AWF = 216
def wf(n): return ar(AWF + 4 * (n % 8), 4)

def tr_reads(gstep, s, addr):
    b = AWF + 4 * (gstep % 8)
    return [Ins(f"ds_read_b64_tr_b16 {ar(b, 2)}, {addr} offset:{s*1024}", lg=("w", gstep)),
            Ins(f"ds_read_b64_tr_b16 {ar(b+2, 2)}, {addr} offset:{s*1024 + 512}", lg=("w", gstep))]

def epi_scale(acc, scale, pbuf):
    I = []
    for g in range(4):
        for r in range(4 * g, 4 * g + 4):
            sc = scale(r) if callable(scale) else scale
            I.append(f"v_mul_f32 v{acc+r}, v{acc+r}, {sc}")
        I.append(f"v_cvt_pk_bf16_f32 v{pbuf+2*g}, v{acc+4*g}, v{acc+4*g+1}")
        I.append(f"v_cvt_pk_bf16_f32 v{pbuf+2*g+1}, v{acc+4*g+2}, v{acc+4*g+3}")
    return I

def st_frag(reg, soff, off, tag):
    if OPT.nost and tag in ("kv", "h"): return "s_nop 0"
    return Ins(f"buffer_store_dwordx4 {vr(reg, 4)}, {vL16}, {srd(SWS)}, {soff} offen offset:{off}{OPT.sc}", vm=tag)

def epi_k(acc):
    return epi_scale(acc, vR1, PB[0])
def st_k():
    return [st_frag(PB[0], sKV, 0, "kv"), st_frag(PB[0] + 4, sKV, 1024, "kv")]

def epi_v(acc):
    return epi_scale(acc, lambda r: f"v{DMEAN+r}", PB[1])
def st_v():
    return [st_frag(PB[1], sKV, 2048, "kv"), st_frag(PB[1] + 4, sKV, 3072, "kv")]

def epi_q(acc):
    return epi_scale(acc, vQs, QF)

def epi_h(acc, j):
    p = PB[j & 1]
    I = []
    for g in range(4):
        u = [f"v{acc + 4*g + i}" for i in range(4)]
        t = [f"v{TT + i}" for i in range(4)]
        for i in range(4): I.append(f"v_mul_f32 {t[i]}, {u[i]}, {u[i]}")
        for i in range(4): I.append(f"v_fma_f32 {t[i]}, {t[i]}, {vK2}, {vK1}")
        for i in range(4): I.append(f"v_mul_f32 {t[i]}, {u[i]}, {t[i]}")
        for i in range(4): I.append(f"v_exp_f32 {t[i]}, {t[i]}")
        for i in range(4): I.append(f"v_fma_f32 {t[i]}, {t[i]}, {vKinv}, {vKinv}")
        for i in range(4): I.append(f"v_rcp_f32 {t[i]}, {t[i]}")
        for i in range(4): I.append(f"v_mul_f32 {t[i]}, {u[i]}, {t[i]}")
        I.append(f"v_cvt_pk_bf16_f32 v{p+2*g}, {t[0]}, {t[1]}")
        I.append(f"v_cvt_pk_bf16_f32 v{p+2*g+1}, {t[2]}, {t[3]}")
    return I

def st_h(j):
    p = PB[j & 1]
    return [Group([f"s_add_u32 {sT1}, {sHo}, {j*2048}", st_frag(p + 4 * s, sT1, s * 1024, "h")]) for s in range(2)]

def stores_at(st):
    return {OPT.st1: [st[0]], OPT.st2: [st[1]]}

def bias_prep(j):
    return [f"v_lshl_or_b32 v{ABIAS}, v{XS+j}, 16, v{XS+j}"]

def run_blocks(blocks):
    I = []
    trs = (vTrA, vTrB)
    nb = len(blocks)
    I.append(WaitLG(("w", 1 if OPT.w2 else 0)))
    for bi, B in enumerate(blocks):
        addr = trs[bi & 1]
        naddr = trs[(bi + 1) & 1]
        steps = []
        accr = vr(B["acc"], 16)
        for s in range(32):
            g = 32 * bi + s
            st = []
            if s == 0 and B.get("bias") is not None:
                st.append(MFMA(accr, vr(ABIAS, 4), vr(BINV, 4), "0"))
            c = accr if (s or B.get("bias") is not None) else "0"
            if B.get("swap"):
                st.append(MFMA(accr, X(s), wf(g), c))
            else:
                st.append(MFMA(accr, wf(g), X(s), c))
            last = 32 * nb - 1
            if OPT.w2:
                if g % 2 == 1 and g + 1 <= last:
                    st.append(WaitLG(("w", min(g + 2, last))))
            elif g + 1 <= last:
                st.append(WaitLG(("w", g + 1)))
            LK = OPT.lk
            if s + LK < 32:
                st += tr_reads(g + LK, s + LK, addr)
            elif bi + 1 < nb:
                if s == 32 - LK:
                    st += stamp(f"xa{bi}") + [WaitVM(blocks[bi + 1]["tag"])] + stamp(f"xw{bi}") + ["s_barrier"] + stamp(f"xb{bi}")
                st += tr_reads(g + LK, s + LK - 32, naddr)
            if s in (4, 8, 12, 16, 20, 24, 28): st += stamp(f"b{bi}s{s}")
            steps.append(st)
        fill = list(B.get("fill", []))
        if bi + 1 < nb:
            fill = [f"v_add_u32 {naddr}, {blocks[bi+1]['slot']*SLOT}, {vTr}"] + fill
        I += place(steps, B.get("at", {}), fill, start=B.get("fstart", 2), end=OPT.fend)
        I += stamp(f"blk{bi}" if B["name"] != "Q" else "blkQ")
    return I

def touch_mall():
    return [Group([f"v_and_b32 {vTmp}, 15, {vL}", f"v_lshlrev_b32 {vTmp}, 7, {vTmp}",
                   f"s_lshl_b32 {sT2}, s2, 2", f"s_add_u32 {sT2}, {sT2}, {sW}", f"s_lshl_b32 {sT2}, {sT2}, 11",
                   Ins(f"buffer_load_dword a251, {vTmp}, {srd(SW2)}, {sT2} offen", vm="t5")]),
            Group([f"v_and_b32 {vTmp}, 3, {vL}", f"v_lshlrev_b32 {vTmp}, 7, {vTmp}",
                   f"s_lshl_b32 {sT2}, s2, 2", f"s_add_u32 {sT2}, {sT2}, {sW}", f"s_lshl_b32 {sT2}, {sT2}, 9",
                   Ins(f"buffer_load_dword a250, {vTmp}, {srd(SWO)}, {sT2} offen", vm="t6")])]

def probe(item, p3=False):
    fl = flatten([item])
    out = []
    for x in fl:
        if isinstance(x, Ins) and x.text.startswith("buffer_"):
            reg = "s34" if ("store" in x.text or (p3 and " lds" in x.text)) else "s33"
            out += ["s_memtime s[0:1]", "s_waitcnt lgkmcnt(0)", "s_mov_b32 s35, s0", x,
                    "s_memtime s[0:1]", "s_waitcnt lgkmcnt(0)", "s_sub_u32 s0, s0, s35", f"s_add_u32 {reg}, {reg}, s0"]
        else:
            out.append(x)
    return Group(out)

def sched(*entries):
    at = {}
    for items, g0, stride in entries:
        for n, it in enumerate(items):
            at.setdefault(g0 + int(n * stride), []).append(it)
    return at

def sub_at(at, lo, hi):
    return {g - lo: v for g, v in at.items() if lo <= g < hi}

def phase1(variant):
    O = OPT
    I = []
    I += prologue()
    if OPT.q0first == 1:
        I += dma_x(0) + setup_idle()
    elif OPT.q0first == 2:
        su = setup_idle()
        I += dma_x(0) + su[:len(su) // 2] + dma_x(1) + su[len(su) // 2:]
    else:
        I += setup_idle()
    if OPT.probe: I += ["s_mov_b32 s33, 0", "s_mov_b32 s34, 0"]
    I += pass1()
    first = stamp("ka") + [WaitVM("wK")] + stamp("kw") + ["s_barrier", f"v_add_u32 {vTrA}, {4*SLOT}, {vTr}"]
    for s in range(OPT.lk):
        first += tr_reads(s, s, vTrA)
    A, B_ = ACC
    flag_kv = flag_store([f"s_lshl_b32 {sT1}, {sNB}, 8", f"s_lshl_b32 {sT2}, {sKT}, 2", f"s_add_u32 {sT1}, {sT1}, {sT2}",
                          f"s_add_u32 {sT1}, {sT1}, {WS_FKV}"], "fkv", "kv")
    st = O.wst / 10
    E = [(dma_w("wV", 0, "V"), O.gV, O.gVs / 10),
         (dma_w("wH0", 1, "H", 0), O.gH0, O.ws0 / 10), (dma_w("wH1", 2, "H", 1), O.gH1, O.ws1 / 10), (dma_w("wH2", 3, "H", 2), O.gH2, O.ws2 / 10)]
    tq = ([touch_q()] if O.touch and not O.earlyq else []) + (touch_mall() if O.mall else [])
    if O.tq1:
        if variant == 1:
            E.append(([touch_q1()] if not O.earlyq else [], O.gTq1, 1))
            E.append((touch_mall1() if O.mall else [], O.gTm1, 1))
    elif not O.early: E.append((tq, O.gTq if variant == 0 else O.gTq1, 1))
    if O.touch and O.gTh != 99: E.append(([touch_h()], O.gTh, 1))
    def S(stl, b): return [([stl[0]], 32 * b + O.st1, 1), ([stl[1]], 32 * b + O.st2, 1)]
    E += S(st_k(), 1) + S(st_v(), 2) + S(st_h(0), 3) + S(st_h(1), 4) + S(st_h(2), 5)
    E.append(([Group(stamp("fa") + [flag_kv] + stamp("fb"))], O.gFkv, 1))
    E.append((poll_kv_issue(), O.gPkv, 1))
    if variant == 0:
        E += [(dma_w("wH3", 0, "H", 3), O.gH3, st), (dma_w("wQ", 4, "Q"), O.gQ0, st)] + S(st_h(3), 6)
    else:
        E += [(dma_w("wQ", 4, "Q"), O.gQ1, st)]
    ck, ld = kv_stage(variant)
    E += [([Group(stamp("ca") + ck + stamp("cb"))], O.gKv, 1), (ld, O.gKv + 1, O.kst / 10)]
    if O.touch:
        E.append(([touch_wo()], O.gTwo, 1))
    if O.e0s:
        last = 32 * (6 if variant == 0 else 5)
        if variant == 1:
            E.append((["s_barrier"], last + 1, 1))
        if variant == 0:
            E.append(([Group(w2_prep()), Group(rot_prep())], last + 2, 1))
            E.append((dma_stage(0), last + O.e0g, O.e0st / 10))
        else:
            g = O.gKv + 1 + int(11 * O.kst / 10) + 1
            E.append(([Group(w2_prep()), Group(rot_prep())], g, 1))
            E.append((dma_stage(0), g + 2, (190 - g - 2) / 8))
    at = sched(*E)
    I += centering(merge_at(sub_at(at, -16, 0), {1: ["s_nop 2"]}), stats(), first)
    zero_abias = [f"v_mov_b32 v{ABIAS+r}, 0" for r in range(1, 4)]
    tagcalc = [WaitVM("E"),
               Group([f"v_readfirstlane_b32 {sTAG}, {vTag}",
                      f"s_mul_i32 {sTAG}, {sTAG}, 0x41c64e6d", f"s_add_u32 {sTAG}, {sTAG}, 0x3039"]),
               f"v_mov_b32 {vTag}, {sTAG}"]
    rt = [MFMA(vr(DMEAN, 16), vr(RFRAG, 4), vr(CHALF, 4), "0")]
    blocks = [
        dict(name="K", slot=4, acc=A, tag="wK", fill=center_cvts(14) + center_cvts(15) + rt + zero_abias + tagcalc +
             ([WaitVM("bias")] + [f"v_mov_b32 v{XS+j}, v{104+j}" for j in range(4)] if OPT.elate else []), fstart=1),
        dict(name="V", slot=0, acc=B_, swap=True, tag="wV", fill=epi_k(A) + bias_prep(0)),
        dict(name="H0", slot=1, acc=A, bias=0, tag="wH0", fill=epi_v(B_) + bias_prep(1) + mask_regs()),
        dict(name="H1", slot=2, acc=B_, bias=1, tag="wH1", fill=epi_h(A, 0) + bias_prep(2)),
    ]
    if variant == 0:
        blocks += [
            dict(name="H2", slot=3, acc=A, bias=2, tag="wH2", fill=epi_h(B_, 1) + bias_prep(3) + kv_prep()),
            dict(name="H3", slot=0, acc=B_, bias=3, tag="wH3", fill=epi_h(A, 2)),
            dict(name="Q", slot=4, acc=A, tag="wQ", fill=epi_h(B_, 3))]
        qacc = A
    else:
        blocks += [
            dict(name="H2", slot=3, acc=A, bias=2, tag="wH2", fill=epi_h(B_, 1) + kv_prep()),
            dict(name="Q", slot=4, acc=B_, tag="wQ", fill=epi_h(A, 2))]
        qacc = B_
    for bi, B in enumerate(blocks):
        B["at"] = sub_at(at, 32 * bi, 32 * bi + 32)
        if OPT.probe and str(bi) in OPT.probe:
            for stp, lst in B["at"].items():
                B["at"][stp] = [probe(x) for x in lst]
    assert max(at) < 32 * len(blocks), max(at)
    I += run_blocks(blocks)
    I += stamp("ea") + [WaitVM("kvs")] + stamp("ew") + ["s_barrier"] + stamp("eb")
    I += att_first_reads() + epi_q(qacc)
    return I

VA = 124
vKa = "v3"
MM = 88
SBUF = (16, 32)
SDIAG = 64
PBUF = (96, 104)
PFAR = 80
OACC = (48, 64)
OPK = (16, 20)
cold = []
cold_big = []

def mask_regs():
    I = []
    for j in range(8):
        I.append(Group([f"v_cndmask_b32 v{MM+j}, 0, -1, s[{70+4*j}:{71+4*j}]",
                        f"v_cndmask_b32 {vTmp}, 0, -1, s[{72+4*j}:{73+4*j}]", f"s_mov_b32 {sT2}, 0xffff",
                        f"v_bfi_b32 v{MM+j}, {sT2}, v{MM+j}, {vTmp}"]))
    return I

def poll(tag, voff, soff, res=vPollR):
    return Ins(f"buffer_load_dword {res}, {voff}, {srd(SWS)}, {soff} offen sc1", vm=tag)

def poll_check(tag, voff, soff_setup, soff, name, res=vPollR, pre=()):
    cold.extend([Raw(f"L_spin_{name}:")] + [Ins(x) if isinstance(x, str) else x for x in pre] +
                [Ins(f"s_mov_b32 {sT3}, 0x20000"), Raw(f"L_spin2_{name}:")] +
                [Ins(x) for x in soff_setup] +
                [Ins(f"buffer_load_dword {res}, {voff}, {srd(SWS)}, {soff} offen sc1"),
                 Ins("s_waitcnt vmcnt(0)"),
                 Ins(f"v_cmp_ne_u32 vcc, {sTAG}, {res}"),
                 Ins("s_nop 0"),
                 Ins(f"s_cbranch_vccz L_back_{name}"),
                 Ins(f"s_sub_u32 {sT3}, {sT3}, 1"),
                 Ins(f"s_cmp_lg_u32 {sT3}, 0"),
                 Ins(f"s_cbranch_scc1 L_spin2_{name}"),
                 Ins(f"s_branch L_back_{name}")])
    return Group([WaitVM(tag), f"v_cmp_ne_u32 vcc, {sTAG}, {res}", "s_nop 0",
                  f"s_cbranch_vccnz L_spin_{name}", Raw(f"L_back_{name}:")])

KV_SOFF = [f"s_lshl_b32 {sT2}, {sNB}, 8", f"s_add_u32 {sT2}, {sT2}, {WS_FKV}"]
def poll_kv_issue():
    return [Group([f"v_min_u32 {vPoll}, 11, {vL}", f"s_lshl_b32 {sT2}, {sMB}, 2", f"s_sub_u32 {sT2}, {sT2}, 8",
                   f"v_add_u32 {vPoll}, {sT2}, {vPoll}", f"v_max_i32 {vPoll}, 0, {vPoll}", f"v_lshlrev_b32 {vPoll}, 2, {vPoll}"]
                  + KV_SOFF + [poll("pkv", vPoll, sT2)])]

def kv_prep():
    I = [f"s_mul_i32 {sT2}, {sW}, {KVR}", f"s_add_u32 {sT2}, {sT2}, {KVL}", f"v_add_u32 {vKa}, {sT2}, {vL16}",
         f"v_add_u32 v{VA}, 2048, {vKa}", f"v_add_u32 v{VA+1}, 3072, {vKa}",
         f"s_add_u32 {sT2}, {sT2}, 4096", f"v_mov_b32 {vTmp}, {sT2}"]
    I = [Group(I),
         f"v_cndmask_b32 v{VA+2}, {vTmp}, v{VA}, {sBIT4}", f"v_cndmask_b32 v{VA+3}, {vTmp}, v{VA+1}, {sBIT4}",
         f"v_cndmask_b32 v{VA}, v{VA}, {vTmp}, {sBIT4}", f"v_cndmask_b32 v{VA+1}, v{VA+1}, {vTmp}, {sBIT4}",
         Group([f"s_lshl_b32 {sT2}, {sNB}, 6", f"s_lshl_b32 {sT3}, {sMB}, 2", f"s_add_u32 {sT2}, {sT2}, {sT3}",
                f"s_mul_i32 {sT3}, {sW}, 3", f"s_add_u32 {sT2}, {sT2}, {sT3}", f"s_lshl_b32 {sKVL}, {sT2}, 12",
                f"s_add_u32 {sKVL}, {sKVL}, {WS_KV - 8*REC}",
                f"s_mul_i32 s17, {sW}, {3*KVR}"])]
    return I

def kv_stage(variant):
    ones = Group([f"v_min_u32 {vTmp}, 11, {vL}", f"s_lshl_b32 {sT2}, {sMB}, 2", f"s_sub_u32 {sT2}, {sT2}, 8",
                  f"v_add_u32 {vPollR}, {sT2}, {vTmp}", f"v_cmp_le_i32 s[18:19], 0, {vPollR}",
                  f"s_movk_i32 {sT2}, {KVR}", f"v_mul_u32_u24 {vTmp}, {sT2}, {vTmp}",
                  f"v_add_u32 {vTmp}, {KVL + 4096}, {vTmp}", f"v_mov_b32 {vPollR}, 0x3f803f80",
                  f"v_cndmask_b32 {vPollR}, 0, {vPollR}, s[18:19]",
                  Ins(f"ds_write2_b32 {vTmp}, {vPollR}, {vPollR} offset0:0 offset1:1", lg="ones"),
                  Ins(f"ds_write2_b32 {vTmp}, {vPollR}, {vPollR} offset0:2 offset1:3", lg="ones")])
    L = []
    for q in range(3):
        for u in range(4):
            pre = []
            if u == 0:
                pre = [f"s_mul_i32 {sT2}, {sW}, 3", f"s_lshl_b32 {sT3}, {sMB}, 2", f"s_add_u32 {sT2}, {sT2}, {sT3}",
                       f"s_add_u32 {sT2}, {sT2}, {q}", f"s_cmp_lt_u32 {sT2}, 8", f"s_cselect_b32 {sT2}, 0x40000000, 0",
                       f"v_add_u32 {vPoll}, {sT2}, {vL16}",
                       f"s_add_u32 m0, s17, {KVL + q*KVR}", f"s_add_u32 s18, {sKVL}, {q*REC}"]
            L.append(Group(pre + [Ins(f"buffer_load_dwordx4 {vPoll}, {srd(SWS)}, s18 offen offset:{u*1024}{OPT.sc} lds", vm="kvs")]))
    return [Group([poll_check("pkv", vPoll, KV_SOFF, sT2, f"kv{variant}"), ones])], (L if not OPT.nokv else [])

def rdK(t, hh):
    return Ins(f"ds_read_b128 {aK(t, hh)}, {vKa} offset:{t*KVR + hh*1024}", lg=("k", t, hh))
def rdV(t, s, hh):
    return Ins(f"ds_read_b128 {aV(t, s, hh)}, v{VA + 2*hh + s} offset:{t*KVR}", lg=("v", t, hh))

def att_first_reads():
    return [rdK(0, 0), rdK(8, 0), rdK(1, 0), rdK(2, 0)]

def att_reads():
    L = []
    V = lambda t, hh: [rdV(t, 0, hh), rdV(t, 1, hh)]
    L += V(0, 0) + V(8, 0) + [rdK(3, 0)] + V(1, 0) + [rdK(4, 0)] + V(2, 0) + [rdK(5, 0)] + V(3, 0) + [rdK(6, 0)]
    L += V(4, 0) + [rdK(7, 0)] + V(5, 0) + V(6, 0) + V(7, 0)
    L += [rdK(0, 1), rdK(8, 1), rdK(1, 1)] + V(0, 1) + V(8, 1) + [rdK(2, 1)]
    for t in range(1, 8):
        L += V(t, 1) + ([rdK(t + 2, 1)] if t + 2 <= 7 else [])
    return L

def fallback(hh):
    S, P, M, T = 24, 96, 40, 41
    O = OACC[hh]; Q = vr(QF + 4*hh, 4)
    C = [Raw(f"L_fb{hh}:"), Ins("s_nop 15"), Ins(f"v_mov_b32 v{M}, 0xff800000"), Ins(f"v_mov_b32 v{T+1}, 0xff800000")]
    def scores(t):
        c = [Ins(MFMA(vr(S, 16), aK(t, hh), Q, "0")), Ins("s_nop 15")]
        if t == 8:
            c += [Ins(f"v_cndmask_b32 v{S+r}, v{T+1}, v{S+r}, s[{70+2*r}:{71+2*r}]") for r in range(16)]
        if t == 0:
            c += [Ins(f"v_cndmask_b32 v{S+r}, v{S+r}, v{T+1}, s[{70+2*r}:{71+2*r}]") for r in range(16)]
        return c
    def guard(t, lab):
        if t == 8: return []
        return [Ins(f"s_add_u32 {sT2}, {sKT}, {t}"), Ins(f"s_cmp_lt_u32 {sT2}, 8"), Ins(f"s_cbranch_scc1 {lab}")]
    for t in range(9):
        lab = f"L_fb{hh}_a{t}"
        C += guard(t, lab) + scores(t)
        C += [Ins(f"v_max3_f32 v{M}, v{M}, v{S+2*j}, v{S+2*j+1}") for j in range(8)]
        C.append(Raw(lab + ":"))
    C += [Ins(f"v_mov_b32 v{T}, v{M}"), Ins("s_nop 1"), Ins(f"v_permlane32_swap_b32 v{M}, v{T}"), Ins("s_nop 1"),
          Ins(f"v_max_f32 v{M}, v{M}, v{T}")]
    C += [Ins(f"v_mov_b32 v{O+r}, 0") for r in range(16)]
    for t in range(9):
        lab = f"L_fb{hh}_b{t}"
        C += guard(t, lab) + scores(t)
        C += [Ins(f"v_sub_f32 v{S+r}, v{S+r}, v{M}") for r in range(16)]
        C += [Ins(f"v_exp_f32 v{S+r}, v{S+r}") for r in range(16)]
        C += [Ins("s_nop 0")]
        C += [Ins(f"v_cvt_pk_bf16_f32 v{P+j}, v{S+2*j}, v{S+2*j+1}") for j in range(8)]
        C += [Ins("s_nop 1")]
        for s in range(2):
            C.append(Ins(MFMA(vr(O, 16), aV(t, s, hh), vr(P + 4*s, 4), vr(O, 16))))
        C += [Ins("s_nop 7"), Raw(lab + ":")]
    C += [Ins("s_nop 15"), Ins(f"s_branch L_fb{hh}_back")]
    cold_big.extend(C)

def att_final(hh):
    O = OACC[hh]
    ol, ll = (O, O + 8) if hh == 0 else (O + 8, O)
    pk = OPK[hh]
    fallback(hh)
    I = [Group([f"v_subrev_u32 {vTmp}, 0x2b800000, v{ll}", f"v_cmp_lt_u32 vcc, 0x28000000, {vTmp}", "s_nop 0",
                (f"s_cbranch_vccnz L_fb{hh}" if not OPT.nofb else "s_nop 0"), Raw(f"L_fb{hh}_back:")]),
         f"v_rcp_f32 {vTmp}, v{ll}"]
    I += [f"v_mul_f32 v{ol+r}, v{ol+r}, {vTmp}" for r in range(8)]
    I += [f"v_cvt_pk_bf16_f32 v{pk+j}, v{ol+2*j}, v{ol+2*j+1}" for j in range(4)]
    I.append(Group([f"s_lshl_b32 {sT1}, {sKT}, 5", f"s_lshl_b32 {sT2}, {sNB}, 1", f"s_add_u32 {sT1}, {sT1}, {sT2}",
                    f"s_lshl_b32 {sT1}, {sT1}, 10", f"s_add_u32 {sT1}, {sT1}, {WS_O}",
                    Ins(f"buffer_store_dwordx4 {vr(pk, 4)}, {vL16}, {srd(SWS)}, {sT1} offen offset:{hh*1024}{OPT.sc}", vm="o")]))
    return I

def flag_store(idx_setup, tag, wait):
    return Group([WaitVM(wait)] + idx_setup + ["s_mov_b64 exec, 1",
                  Ins(f"buffer_store_dword {vTag}, off, {srd(SWS)}, {sT1} sc0 sc1", vm=tag),
                  "s_mov_b64 exec, -1"])

def flag_kt_nb(base):
    return [f"s_lshl_b32 {sT1}, {sKT}, 6", f"s_lshl_b32 {sT2}, {sNB}, 2", f"s_add_u32 {sT1}, {sT1}, {sT2}",
            f"s_add_u32 {sT1}, {sT1}, {base}"]

def attention(extra, reads):
    W = WaitLG if reads else (lambda *a: None)
    def s_mfma(G):
        hh, g = divmod(G, 8)
        Q = vr(QF + 4*hh, 4)
        b = vr(SBUF[G & 1], 16)
        if g == 0:
            return [[W(("k", 0, hh)), MFMA(b, aK(0, hh), Q, "0")],
                    [W(("k", 8, hh)), MFMA(vr(SDIAG, 16), aK(8, hh), Q, "0")]]
        return [[W(("k", g, hh)), MFMA(b, aK(g, hh), Q, "0")]]
    def pv(G):
        hh, g = divmod(G, 8)
        O = vr(OACC[hh], 16)
        P = PBUF[G & 1]
        if g == 0:
            return [[W(("v", 0, hh)), MFMA(O, aV(0, 0, hh), vr(PFAR, 4), "0")],
                    [MFMA(O, aV(0, 1, hh), vr(PFAR + 4, 4), O)],
                    [W(("v", 8, hh)), MFMA(O, aV(8, 0, hh), vr(P, 4), O)],
                    [MFMA(O, aV(8, 1, hh), vr(P + 4, 4), O)]]
        return [[W(("v", g, hh)), MFMA(O, aV(g, 0, hh), vr(P, 4), O)],
                [MFMA(O, aV(g, 1, hh), vr(P + 4, 4), O)]]
    I = []
    for m in s_mfma(0): I += m
    for G in range(16):
        hh, g = divmod(G, 8)
        S, P = SBUF[G & 1], PBUF[G & 1]
        mf = (s_mfma(G + 1) if G < 15 else []) + (pv(G - 1) if G > 0 else [])
        chunks = []
        if g == 0:
            cn = [f"v_cndmask_b32 v{S+r}, v{S+r}, v{SDIAG+r}, s[{70+2*r}:{71+2*r}]" for r in range(16)]
            chunks += [cn[0:4], cn[4:8], cn[8:12], cn[12:16]]
        for q in range(4):
            c = [f"v_exp_f32 v{S+4*q+i}, v{S+4*q+i}" for i in range(4)]
            if q > 0:
                c += [f"v_cvt_pk_bf16_f32 v{P+2*q-2}, v{S+4*q-4}, v{S+4*q-3}", f"v_cvt_pk_bf16_f32 v{P+2*q-1}, v{S+4*q-2}, v{S+4*q-1}"]
            chunks.append(c)
        chunks.append([f"v_cvt_pk_bf16_f32 v{P+6}, v{S+12}, v{S+13}", f"v_cvt_pk_bf16_f32 v{P+7}, v{S+14}, v{S+15}"])
        if g == 0:
            chunks.append([f"v_bfi_b32 v{PFAR+j}, v{MM+j}, 0, v{P+j}" for j in range(8)])
            chunks.append([f"v_and_b32 v{P+j}, v{MM+j}, v{P+j}" for j in range(8)])
        if G >= OPT.skipg:
            chunks = [[] for _ in chunks]
        ex = list(extra.get(G, []))
        def is_vm(it):
            return any(isinstance(x, Ins) and x.text.startswith("buffer_") for x in flatten([it]))
        vm = [x for x in ex if is_vm(x)]
        ot = [x for x in ex if not is_vm(x)]
        seq = []
        k = 0
        ngap = len(chunks) - 1
        first_gap = 4 if g == 0 else 0
        slots = [[] for _ in range(ngap)]
        pos = 0
        nv = 0
        order = []
        for x in ex:
            order.append(x)
        per = max(1, -(-len(ot) // max(1, ngap)))
        gi = 0; cnt = 0
        for x in order:
            if is_vm(x):
                if any(is_vm(y) for y in slots[min(gi, ngap - 1)]) and gi < ngap - 1: gi += 1; cnt = 0
                slots[min(gi, ngap - 1)].append(x)
            else:
                if cnt >= per and gi < ngap - 1: gi += 1; cnt = 0
                slots[min(gi, ngap - 1)].append(x); cnt += 1
        ex = []
        for ci, c in enumerate(chunks):
            if k < len(mf):
                I += mf[k]; k += 1
            I += c
            if ci < ngap:
                I += slots[ci]
        while k < len(mf):
            I += mf[k]; k += 1
        I += ex
        if OPT.gst and G in (0, 1, 2, 3, 5, 7, 8, 9, 11, 13): I += stamp(f"g{G}", True)
    for m in pv(15): I += m
    return I

SIG = [3, 0, 4, 1, 2, 3, 0, 4, 1]
EXS = 2
vW2 = "v2"
ACB = (16, 32); ACS = (64, 128)
W3 = ((48, 52), (56, 60), (96, 100), (104, 108), (112, 116), (80, 84))
T3L = ("v8", "v9")
T3 = (("v5", "v6"), ("v11", "v7"))
vXo = "v3"
XR = 168
RX = 176
CQ = 88

def w2_prep():
    return [f"v_lshrrev_b32 {vTmp}, 3, {vL}", f"v_lshlrev_b32 {vTmp}, 10, {vTmp}",
            f"v_bfe_u32 {vW2}, {vL}, 4, 1", f"v_lshlrev_b32 {vW2}, 2, {vW2}",
            f"v_xor_b32 {vW2}, {vW2}, {vL}", f"v_and_b32 {vW2}, 7, {vW2}",
            f"v_lshl_add_u32 {vW2}, {vW2}, 4, {vTmp}"]

def rot_prep():
    rot = [f"s_and_b32 {sT2}, {sNB}, 7", f"s_and_b32 {sT3}, {sMB}, 3", f"s_lshl_b32 {sT3}, {sT3}, 1", f"s_add_u32 {sPaW}, {sT2}, {sT3}",
           f"s_cmp_ge_u32 {sPaW}, 7", f"s_cselect_b32 {sT2}, 7, 0", f"s_sub_u32 {sPaW}, {sPaW}, {sT2}"]
    if not OPT.rot:
        rot = [f"s_mov_b32 {sPaW}, 0"]
    return rot + [f"s_mov_b32 {sPaH}, {sPaW}",
                  f"s_lshr_b32 {sT2}, {sW}, 1", f"s_mul_i32 {sW2B}, {sT2}, 917504", f"s_lshl_b32 {sWOB}, {sT2}, 18",
                  f"s_and_b32 {sT2}, {sW}, 1", f"s_lshl_b32 {sT2}, {sT2}, 16",
                  f"s_add_u32 {sW2B}, {sW2B}, {sT2}", f"s_add_u32 {sWOB}, {sWOB}, {sT2}",
                  f"s_and_b32 {sT2}, {sNB}, 7", f"s_lshl_b32 {sT2}, {sT2}, 7",
                  f"s_add_u32 {sW2B}, {sW2B}, {sT2}", f"s_add_u32 {sWOB}, {sWOB}, {sT2}"]

def advance(pa):
    return [f"s_add_u32 {pa}, {pa}, 1", f"s_cmp_eq_u32 {pa}, 7", f"s_cselect_b32 {pa}, 0, {pa}"]

def stage_base(p):
    return [f"s_add_u32 {sWr}, {sPaW}, {p}", f"s_cmp_ge_u32 {sWr}, 7", f"s_cselect_b32 {sT3}, 7, 0", f"s_sub_u32 {sWr}, {sWr}, {sT3}",
            f"s_lshl_b32 {sWr}, {sWr}, 17", f"s_add_u32 {sWr}, {sWr}, {sW2B}"]

SG = 128
def pos(p):
    if OPT.mid:
        return [("B", 0), ("B", 1), ("B", 2), ("B", 3), ("B", 4), ("S", 0), ("S", 1), ("B", 5), ("B", 6)][p]
    return ("B", p) if p <= 6 else ("S", p - 7)
def sg_reg(p, n):
    if OPT.mid: return SG + 32 * (2 + pos(p)[1]) + 4 * n
    return SG + 32 * (p - 5) + 4 * n
def staged(p):
    if OPT.mid: return pos(p)[0] == "S"
    return p >= 5 and (OPT.v2 or str(p) in OPT.stg)

def dma_stage(p):
    I = []
    if OPT.nostage: return I
    for jj in range(4):
        for half in range(2):
            n = 2 * jj + half
            pre = []
            kind, idx = pos(p)
            if kind == "B":
                base, s, c = sWr, SW2, (16 * jj + 8 * half) * 1024
                if n == 0: pre = stage_base(idx)
            else:
                base, s, c = sWOB, SWO, (16 * (8 * idx + jj) + 8 * half) * 1024
            if p <= 4 or not staged(p):
                I.append(Group(pre + [f"s_add_u32 m0, {sLD}, {SIG[p]*SLOT + jj*2048 + half*1024}",
                                      f"s_add_u32 {sT0}, {base}, {c}",
                                      Ins(f"buffer_load_dwordx4 {vW2}, {srd(s)}, {sT0} offen{OPT.w3p} lds", vm=("st", p))]))
            else:
                I.append(Group(pre + [f"s_add_u32 {sT0}, {base}, {c}",
                                      Ins(f"buffer_load_dwordx4 {vr(sg_reg(p, n), 4)}, {vW2}, {srd(s)}, {sT0} offen{OPT.w3p}", vm=("sg", p))]))
    return I

def write_stage(p):
    I = [Group([WaitVM(("sg", p)), f"s_add_u32 {sT2}, {sLD}, {SIG[p]*SLOT}", f"v_add_u32 v4, {sT2}, {vL16}"])]
    for n in range(8):
        I.append(Ins(f"ds_write_b128 v4, {vr(sg_reg(p, n), 4)} offset:{n*1024}", lg=("sw", p)))
    return I

def p3_prep():
    I = [Group([f"s_lshr_b32 {sT2}, {sNB}, 3", f"s_lshl_b32 {sT2}, {sT2}, 1", f"s_and_b32 {sT3}, {sW}, 1",
                f"s_add_u32 {sT2}, {sT2}, {sT3}", f"s_lshl_b32 {sT3}, {sMB}, 2", f"s_add_u32 {sT2}, {sT2}, {sT3}",
                f"s_lshr_b32 {sT3}, {sW}, 1",
                f"s_mul_i32 {sH3}, {sT2}, 112", f"s_mul_i32 {sO3}, {sT3}, 56", f"s_add_u32 {sH3}, {sH3}, {sO3}",
                f"s_lshl_b32 {sH3}, {sH3}, 10", f"s_add_u32 {sH3}, {sH3}, {WS_H}",
                f"s_lshl_b32 {sO3}, {sT2}, 5", f"s_lshl_b32 {sF3}, {sT3}, 4", f"s_add_u32 {sO3}, {sO3}, {sF3}",
                f"s_lshl_b32 {sO3}, {sO3}, 10", f"s_add_u32 {sO3}, {sO3}, {WS_O}",
                f"s_lshl_b32 {sF3}, {sT2}, 6", f"s_lshl_b32 {sX3}, {sT3}, 5", f"s_add_u32 {sF3}, {sF3}, {sX3}",
                f"s_lshl_b32 {sX3}, {sT2}, 15", f"s_and_b32 {sT2}, {sNB}, 7", f"s_lshl_b32 {sT2}, {sT2}, 7",
                f"s_add_u32 {sX3}, {sX3}, {sT2}", f"s_lshl_b32 {sT3}, {sT3}, 6", f"s_add_u32 {sX3}, {sX3}, {sT3}"])]
    a = I.append
    a(f"v_lshrrev_b32 {T3L[0]}, 5, {vL}")
    a(f"v_lshlrev_b32 {T3L[0]}, 2, {T3L[0]}")
    a(f"v_bfe_u32 {vTmp}, {vL}, 2, 2")
    a(f"v_add_u32 {T3L[0]}, {T3L[0]}, {vTmp}")
    a(f"v_lshlrev_b32 {T3L[0]}, 7, {T3L[0]}")
    a(f"v_bfe_u32 {vTmp}, {vL}, 4, 1")
    a(f"v_lshlrev_b32 {vTmp}, 1, {vTmp}")
    a(f"v_bfe_u32 {T3L[1]}, {vL}, 1, 1")
    a(f"v_add_u32 {vTmp}, {vTmp}, {T3L[1]}")
    a(f"v_bfe_u32 {T3L[1]}, {vL}, 3, 1")
    a(f"v_lshl_add_u32 {vTmp}, {T3L[1]}, 2, {vTmp}")
    a(f"v_lshl_add_u32 {T3L[0]}, {vTmp}, 4, {T3L[0]}")
    a(f"v_and_b32 {vTmp}, 1, {vL}")
    a(f"v_lshl_add_u32 {T3L[0]}, {vTmp}, 3, {T3L[0]}")
    a(Group([f"s_lshr_b32 {sT3}, {sW}, 1", f"s_lshl_b32 {sT2}, {sT3}, 6", f"s_lshl_b32 {sT3}, {sT3}, 14",
             f"v_xor_b32 {T3L[0]}, {sT2}, {T3L[0]}", f"v_add_u32 {T3L[0]}, {sT3}, {T3L[0]}"]))
    a(f"v_xor_b32 {T3L[1]}, 64, {T3L[0]}")
    a(f"v_and_b32 {vPoll}, 7, {vL}")
    a(f"v_lshlrev_b32 {vPoll}, 2, {vPoll}")
    a(Group([f"v_and_b32 {vTmp}, 31, {vL}", f"v_lshlrev_b32 {vTmp}, 1, {vTmp}",
             f"s_and_b32 {sT2}, {sNB}, 7", f"s_lshl_b32 {sT2}, {sT2}, 7", f"s_lshr_b32 {sT3}, {sW}, 1",
             f"s_lshl_b32 {sT3}, {sT3}, 6", f"s_add_u32 {sT2}, {sT2}, {sT3}",
             Ins(f"buffer_load_ushort v10, {vTmp}, {srd(SB2)}, {sT2} offen", vm="b2")]))
    return I

def x_resid():
    I = [Group([f"v_and_b32 {vXo}, 31, {vL}", f"v_lshlrev_b32 {vXo}, 10, {vXo}", f"v_lshrrev_b32 {vTmp}, 5, {vL}",
                f"v_lshl_add_u32 {vXo}, {vTmp}, 3, {vXo}"])]
    for q in range(4):
        I.append(Ins(f"buffer_load_dwordx2 {vr(XR + 2*q, 2)}, {vXo}, {srd(SX)}, {sX3} offen offset:{16*q}", vm="xr"))
    return I

FH_SOFF = [f"s_add_u32 {sT2}, {sF3}, {WS_FH}"]
FO_SOFF = [f"s_add_u32 {sT2}, {sF3}, {WS_FO}"]

def frag_reg(k):
    if k < 10: return 216 + 4*k
    if OPT.mid: return 4 * ((k - 10) % 54)
    if k < 56: return 4*(k - 10)
    return 184 + 4*(k - 56)

sHq = "s17"
def frag_load(k):
    pre = []
    kind, idx = pos(k >> 3)
    j8 = k & 7
    if kind == "B":
        if j8 == 0:
            pre = [f"s_lshl_b32 {sHr}, {sPaH}, 13", f"s_add_u32 {sHr}, {sHr}, {sH3}"] + advance(sPaH)
        elif j8 == 4:
            pre = [f"s_add_u32 {sHr}, {sHr}, 4096"]
        so = sHr
    else:
        j = 8 * idx + j8
        if (j & 3) == 0:
            pre = [f"s_add_u32 {sHq}, {sO3}, {(j >> 2)*4096}"]
        so = sHq
    if OPT.nohl: return Group(pre)
    return Group(pre + [Ins(f"buffer_load_dwordx4 {ar(frag_reg(k), 4)}, {vL16}, {srd(SWS)}, {so} offen offset:{(k & 3)*1024}{OPT.hsc}", vm=("f", k))])

def p3_reads(k):
    p, j8 = divmod(k, 8)
    I = []
    for j in range(2):
        b = W3[k % 6][j]; ad = T3[p & 1][j]
        I += [Ins(f"ds_read_b64_tr_b16 {vr(b, 2)}, {ad} offset:{j8*2048}", lg=("w3", k)),
              Ins(f"ds_read_b64_tr_b16 {vr(b+2, 2)}, {ad} offset:{j8*2048 + 1024}", lg=("w3", k))]
    return I

def t3_set(p):
    return [f"v_add_u32 {T3[p & 1][j]}, {SIG[p]*SLOT}, {T3L[j]}" for j in range(2)]

def phase3():
    LA = OPT.la
    I = []
    for k in range(OPT.ea, LA):
        I.append(frag_load(k))
    I += [f"v_mov_b32 v{CQ}, 0x3e803e80"] + [f"v_mov_b32 v{CQ+r}, 0" for r in range(1, 4)]
    I += [WaitVM("b2"), f"v_lshl_or_b32 v{ABIAS}, v10, 16, v10"]
    I += t3_set(0)
    I += [WaitVM(("st", 0), ("st", 1)), "s_barrier"]
    I += stamp("p3start", 2)
    I += [MFMA(vr(ACB[0], 16), vr(ABIAS, 4), vr(CQ, 4), "0")]
    for k in range(OPT.lk3):
        I += p3_reads(k)
    steps = []
    LK = OPT.lk3
    fills = {k: [] for k in range(72)}
    I += [WaitVM(("f", 1 if OPT.w2 else 0)), WaitLG(("w3", 1 if OPT.w2 else 0))]
    for k in range(72):
        p, j8 = divmod(k, 8)
        acc = ACB if pos(p)[0] == "B" else ACS
        st = []
        kS = 40 if OPT.mid else 56
        for j in range(2):
            first = (k == 0 and j == 1) or k == kS
            st.append(MFMA(vr(acc[j], 16), vr(W3[k % 6][j], 4), ar(frag_reg(k), 4), "0" if first else vr(acc[j], 16)))
            if j == 0:
                if OPT.w2:
                    if k % 2 == 1 and k + 1 < 72:
                        st.append(WaitLG(("w3", min(k + 2, 71))))
                elif k + 1 < 72:
                    st.append(WaitLG(("w3", k + 1)))
                if k + LK < 72:
                    k2 = k + LK
                    if k2 % 8 == 0:
                        p2 = k2 // 8
                        if p2 >= 2:
                            st += [WaitLG(("sw", p2)) if staged(p2) else WaitVM(("st", p2))] + ([] if OPT.nobar else ["s_barrier"])
                    st += p3_reads(k2)[:2]
            else:
                if OPT.w2:
                    if k % 2 == 1 and k + 1 < 72 and not OPT.nowait:
                        st.append(WaitVM(("f", min(k + 2, 71))))
                elif k + 1 < 72 and not OPT.nowait:
                    st.append(WaitVM(("f", k + 1)))
                if k + LK < 72:
                    st += p3_reads(k + LK)[2:]
        if j8 == 1 and p + 1 <= 8:
            st += t3_set(p + 1)
        steps.append(st)
    for k in range(LA, 72):
        kk = k - LA
        if pos(k >> 3)[0] == "S":
            kk = OPT.kco + int((k - (40 if OPT.mid else 56)) * OPT.ost / 10)
        fills[kk].append(frag_load(k))
    for p2 in range(2, 6):
        d = write_stage(p2 + 3) if staged(p2 + 3) else dma_stage(p2 + 3)
        for n, g in enumerate(d):
            k0 = max(8 * p2 - LK, (OPT.ks5, OPT.ks6, OPT.ks7, OPT.ks8)[p2 - 2])
            fills[k0 + int(n * OPT.kss / 10)].append(g)
    fills[OPT.kfo].insert(0, Group(stamp("oa", 2) + [flag_store(flag_kt_nb(WS_FO), "fo", "o")] + stamp("ob", 2)))
    fills[OPT.kpo].insert(0, Group(FO_SOFF + [poll("po", vPoll, sT2)]))
    if not OPT.noep:
        fills[46].append(epoch_pre())
    fills[OPT.kco].insert(0, Group(stamp("qa", 2) + [poll_check("po", vPoll, FO_SOFF, sT2, "o")] + stamp("qb", 2)))
    for n, g in enumerate(x_resid()):
        fills[50 + n].append(g)
    if OPT.mid:
        return I + phase3_tail_mid(steps, fills, LK)
    ex = EXS * SLOT
    B0, S0 = ACB[0], ACS[0]
    vEW, vER = "v12", "v14"
    fills[52] += [Group([f"s_add_u32 {sT2}, {sLD}, {ex}", f"v_add_u32 {vEW}, {sT2}, {vL16}",
                         f"s_xor_b32 {sT2}, {sT2}, 16384", f"v_add_u32 {vER}, {sT2}, {vL16}"])]
    for q in range(4):
        fills[57 + q // 2].append(Ins(f"ds_write_b128 {vEW}, {vr(ACB[1] + 4*q, 4)} offset:{q*1024}", lg="exwB"))
    kb = 64 - LK
    steps[kb] = [x for x in steps[kb]]
    i = next(n for n, x in enumerate(steps[kb]) if isinstance(x, str) and x == "s_barrier") if not OPT.nobar else 1
    steps[kb].insert(i, WaitLG("exwB"))
    for q in range(4):
        fills[kb + q // 2].append(Ins(f"ds_read_b128 {vr(RX + 4*q, 4)}, {vER} offset:{q*1024}", lg=("exr", q)))
    T = 208
    gate = [f"v_mov_b32 v10, {hex(f2u(-math.log2(math.e)))}", f"s_mov_b32 {sT3}, 0xffff0000"]
    for q in range(4):
        r = [4*q + i for i in range(4)]
        gate.append(WaitLG(("exr", q)))
        gate += [f"v_add_f32 v{B0+i}, v{B0+i}, v{RX+i}" for i in r]
        gate += [f"v_mul_f32 v{T+i}, v10, v{B0+r[i]}" for i in range(4)]
        gate += [f"v_exp_f32 v{T+i}, v{T+i}" for i in range(4)]
        gate += [f"v_add_f32 v{T+i}, 1.0, v{T+i}" for i in range(4)]
        gate += [f"v_rcp_f32 v{T+i}, v{T+i}" for i in range(4)]
        gate += [f"v_mul_f32 v{B0+r[i]}, v{B0+r[i]}, v{T+i}" for i in range(4)]
    gate.append(WaitVM("xr"))
    XU = RX
    for q in range(4):
        x0, x1 = XR + 2*q, XR + 2*q + 1
        gate += [f"v_lshlrev_b32 v{XU+4*q}, 16, v{x0}", f"v_and_b32 v{XU+4*q+1}, {sT3}, v{x0}",
                 f"v_lshlrev_b32 v{XU+4*q+2}, 16, v{x1}", f"v_and_b32 v{XU+4*q+3}, {sT3}, v{x1}"]
    g0 = kb + 2
    for n, x in enumerate(gate):
        fills[g0 + n * (72 - g0) // len(gate)].append(x)
    if "p" in OPT.probe:
        for k in range(72):
            fills[k] = [probe(x, True) for x in fills[k]]
    for k in range(72):
        I += steps[k] + fills[k]
        if k in (0, 7, 27, 41, 55, 56, 71) and not OPT.gst: I += stamp(f"k{k}", 2)
    for q in range(4):
        I.append(Ins(f"ds_write_b128 {vEW}, {vr(ACS[1] + 4*q, 4)} offset:{4096 + q*1024}", lg="exwS"))
    I += [WaitLG("exwS"), "s_barrier"]
    RS = RX + 16
    for q in range(4):
        I.append(Ins(f"ds_read_b128 {vr(RS + 4*q, 4)}, {vER} offset:{4096 + q*1024}", lg=("exs", q)))
    I += stamp("exch", 2)
    if OPT.out4:
        I += [f"v_lshrrev_b32 {vTmp}, 5, {vL}", f"v_lshl_add_u32 {vXo}, {vTmp}, 3, {vXo}"]
    for q in range(4):
        r = [4*q + i for i in range(4)]
        I.append(WaitLG(("exs", q)))
        I += [f"v_add_f32 v{S0+i}, v{S0+i}, v{RS+i}" for i in r]
        I += [f"v_fma_f32 v{S0+i}, v{S0+i}, v{B0+i}, v{XU+i}" for i in r]
        x0, x1 = XR + 2*q, XR + 2*q + 1
        I += [f"v_cvt_pk_bf16_f32 v{x0}, v{S0+4*q}, v{S0+4*q+1}", f"v_cvt_pk_bf16_f32 v{x1}, v{S0+4*q+2}, v{S0+4*q+3}"]
        if not OPT.out4:
            I.append(Ins(f"buffer_store_dwordx2 {vr(x0, 2)}, {vXo}, {srd(SOUT)}, {sX3} offen offset:{16*q}{OPT.outsc}", vm="out"))
        elif q & 1:
            a0 = XR + 2*(q - 1)
            I += [f"v_permlane32_swap_b32 v{a0}, v{a0+2}", f"v_permlane32_swap_b32 v{a0+1}, v{a0+3}",
                  Ins(f"buffer_store_dwordx4 {vr(a0, 4)}, {vXo}, {srd(SOUT)}, {sX3} offen offset:{16*(q-1)}{OPT.outsc}", vm="out")]
    return I

def phase3_tail_mid(steps, fills, LK):
    I = []
    ex = EXS * SLOT
    B0, S0 = ACB[0], ACS[0]
    vEW, vER = "v12", "v14"
    fills[52] += [Group([f"s_add_u32 {sT2}, {sLD}, {ex}", f"v_add_u32 {vEW}, {sT2}, {vL16}",
                         f"s_xor_b32 {sT2}, {sT2}, 16384", f"v_add_u32 {vER}, {sT2}, {vL16}"])]
    for q in range(4):
        fills[57 + q // 2].append(Ins(f"ds_write_b128 {vEW}, {vr(ACS[1] + 4*q, 4)} offset:{4096 + q*1024}", lg="exwS"))
    kb = 64 - LK
    steps[kb] = [x for x in steps[kb]]
    i = next(n for n, x in enumerate(steps[kb]) if isinstance(x, str) and x == "s_barrier")
    steps[kb].insert(i, WaitLG("exwS"))
    RS, XU, T = RX + 16, 224, 208
    for q in range(4):
        fills[kb + q // 2].append(Ins(f"ds_read_b128 {vr(RS + 4*q, 4)}, {vER} offset:{4096 + q*1024}", lg=("exs", q)))
    pre = [f"v_mov_b32 v10, {hex(f2u(-math.log2(math.e)))}", f"s_mov_b32 {sT3}, 0xffff0000"]
    for q in range(4):
        pre.append(WaitLG(("exs", q)))
        pre += [f"v_add_f32 v{S0+i}, v{S0+i}, v{RS+i}" for i in range(4*q, 4*q + 4)]
    pre.append(WaitVM("xr"))
    for q in range(4):
        x0, x1 = XR + 2*q, XR + 2*q + 1
        pre += [f"v_lshlrev_b32 v{XU+4*q}, 16, v{x0}", f"v_and_b32 v{XU+4*q+1}, {sT3}, v{x0}",
                f"v_lshlrev_b32 v{XU+4*q+2}, 16, v{x1}", f"v_and_b32 v{XU+4*q+3}, {sT3}, v{x1}"]
    pre += [f"v_lshrrev_b32 {vTmp}, 5, {vL}", f"v_lshl_add_u32 {vXo}, {vTmp}, 3, {vXo}"]
    g0 = kb + 2
    for n, x in enumerate(pre):
        fills[g0 + n * (72 - g0) // len(pre)].append(x)
    for k in range(72):
        I += steps[k] + fills[k]
        if k in (0, 7, 27, 41, 55, 56, 71) and not OPT.gst: I += stamp(f"k{k}", 2)
    for q in range(4):
        I.append(Ins(f"ds_write_b128 {vEW}, {vr(ACB[1] + 4*q, 4)} offset:{q*1024}", lg="exwB"))
    I += [WaitLG("exwB"), "s_barrier"]
    for q in range(4):
        I.append(Ins(f"ds_read_b128 {vr(RX + 4*q, 4)}, {vER} offset:{q*1024}", lg=("exr", q)))
    I += stamp("exch", 2)
    for q in range(4):
        r = [4*q + i for i in range(4)]
        I.append(WaitLG(("exr", q)))
        I += [f"v_add_f32 v{B0+i}, v{B0+i}, v{RX+i}" for i in r]
        I += [f"v_mul_f32 v{T+i}, v10, v{B0+r[i]}" for i in range(4)]
        I += [f"v_exp_f32 v{T+i}, v{T+i}" for i in range(4)]
        I += [f"v_mul_f32 v{S0+i}, v{S0+i}, v{B0+i}" for i in r]
        I += [f"v_add_f32 v{T+i}, 1.0, v{T+i}" for i in range(4)]
        I += [f"v_rcp_f32 v{T+i}, v{T+i}" for i in range(4)]
        I += [f"v_fma_f32 v{S0+r[i]}, v{S0+r[i]}, v{T+i}, v{XU+r[i]}" for i in range(4)]
        x0, x1 = XR + 2*q, XR + 2*q + 1
        I += [f"v_cvt_pk_bf16_f32 v{x0}, v{S0+4*q}, v{S0+4*q+1}", f"v_cvt_pk_bf16_f32 v{x1}, v{S0+4*q+2}, v{S0+4*q+3}"]
        if q & 1:
            a0 = XR + 2*(q - 1)
            I += [f"v_permlane32_swap_b32 v{a0}, v{a0+2}", f"v_permlane32_swap_b32 v{a0+1}, v{a0+3}",
                  Ins(f"buffer_store_dwordx4 {vr(a0, 4)}, {vXo}, {srd(SOUT)}, {sX3} offen offset:{16*(q-1)}{OPT.outsc}", vm="out")]
    return I

EP = 240
def epoch_pre():
    C = [Raw("L_epre:"), Ins(f"s_mov_b32 {sT2}, {WS_FKV}")]
    for q in range(4):
        C.append(Ins(f"buffer_load_dwordx4 {vr(EP + 4*q, 4)}, {vL16}, {srd(SWS)}, {sT2} offen offset:{q*1024} sc1"))
    C.append(Ins("s_branch L_epre_back"))
    cold.extend(C)
    return Group([f"s_or_b32 {sT2}, s2, {sW}", f"s_cmp_eq_u32 {sT2}, 0", "s_cbranch_scc1 L_epre", Raw("L_epre_back:")])

def epoch_update():
    C = [Raw("L_epoch:"), Ins(f"s_mov_b32 {sT3}, 0x20000"), Ins(f"s_waitcnt vmcnt({2 if OPT.out4 else 4})"), Ins("s_branch L_epoch4"),
         Raw("L_epoch2:"), Ins(f"s_mov_b32 {sT2}, {WS_FKV}")]
    for q in range(4):
        C.append(Ins(f"buffer_load_dwordx4 {vr(EP + 4*q, 4)}, {vL16}, {srd(SWS)}, {sT2} offen offset:{q*1024} sc1"))
    C += [Ins("s_waitcnt vmcnt(0)"), Raw("L_epoch4:")]
    for r in range(16):
        C.append(Ins(f"v_xor_b32 v{EP+r}, {sTAG}, v{EP+r}"))
    for r in range(1, 16):
        C.append(Ins(f"v_or_b32 v{EP}, v{EP}, v{EP+r}"))
    C += [Ins(f"v_cmp_ne_u32 vcc, 0, v{EP}"), Ins("s_nop 0"), Ins("s_cbranch_vccz L_epoch3"),
          Ins(f"s_sub_u32 {sT3}, {sT3}, 1"), Ins(f"s_cmp_lg_u32 {sT3}, 0"), Ins("s_cbranch_scc1 L_epoch2"),
          Raw("L_epoch3:"), Ins("s_mov_b64 exec, 1"),
          Ins(f"buffer_store_dword {vTag}, off, {srd(SWS)}, 0 offset:{WS_E}{OPT.esc}"),
          Ins("s_endpgm")]
    cold.extend(C)
    return [f"s_or_b32 {sT2}, s2, {sW}", f"s_cmp_eq_u32 {sT2}, 0", "s_cbranch_scc1 L_epoch"]

def dump_q():
    I = [f"s_lshl_b32 {sT1}, {sNB}, 6", f"s_add_u32 {sT1}, {sT1}, {sKT}", f"s_lshl_b32 {sT1}, {sT1}, 11",
         f"s_add_u32 {sT1}, {sT1}, {WS_DBG}"]
    I += [st_frag(QF, sT1, 0, "dq"), st_frag(QF + 4, sT1, 1024, "dq")]
    return I

_stg = [0]
def add_stagger(items, pref):
    out = []
    for it in items:
        out.append(it)
        if isinstance(it, Ins) and it.text == "s_barrier" and OPT.stag:
            for q in range(1, 4):
                for rep in range(OPT.stag):
                    _stg[0] += 1
                    lab = f"L_sg{pref}_{_stg[0]}"
                    out += [Ins(f"s_cmp_ge_u32 {sW}, {q}"), Ins(f"s_cbranch_scc1 {lab}"), Raw(lab + ":")] if rep == 0 else [Ins(f"s_cbranch_scc1 {lab}"), Raw(lab + ":")]
    return out

def common_prefix(a, b):
    n = 0
    while n < len(a) and n < len(b) and type(a[n]) is type(b[n]) and a[n].text == b[n].text:
        n += 1
    return n

def spread(items, groups):
    d = {}
    n = len(items)
    for i, it in enumerate(items if n else []):
        d.setdefault(groups[i * len(groups) // n], []).append(it)
    return d

def finish(items, st, errors, history=()):
    r = resolve(items, st, errors)
    if OPT.opt:
        r = shadow_sink(shadow_fill(r))
    return auto_nop(r, history)

def build():
    errors = []
    sa, sb = State(), State()
    A = finish(phase1(0), sa, errors)
    B = finish(phase1(1), sb, errors)
    hazards(A, errors, "p1/var0"); fresh_store_check(A, errors, "var0")
    hazards(B, errors, "p1/var1"); fresh_store_check(B, errors, "var1")
    n = common_prefix(A, B)
    out = add_stagger(A[:n], "p") + [Ins(f"s_cmp_eq_u32 {sVAR}, 1"), Ins("s_cbranch_scc1 L_var1")] + add_stagger(A[n:], "a") + \
        [Ins("s_branch L_join1"), Raw("L_var1:")] + add_stagger(B[n:], "b") + [Raw("L_join1:")]
    from asmlib import _rw
    for L in (A, B):
        for it in L[n:]:
            if not isinstance(it, Ins): continue
            r, w = _rw(Dec(it.text))
            if ("s", "scc") in r:
                errors.append("SCC live across the variant split: " + it.text)
            if ("s", "scc") in w: break
    st = State.merge(sa, sb)
    f0, f1 = att_final(0), att_final(1)
    pp = p3_prep()
    def att_extra(reads):
        R = att_reads() if reads else []
        ex = [spread(R, list(range(0, OPT.rge + 1)))] if R else []
        if not OPT.e0s:
            ex.append({0: w2_prep() + rot_prep()})
        order = (dma_stage(0) if not OPT.e0s else []) + dma_stage(1) + dma_stage(2)
        sg = [p for p in (5, 6, 7, 8) if staged(p)]
        early = [p for p in sg][:OPT.nse]
        late = [p for p in sg][OPT.nse:]
        for p in early: order += dma_stage(p)
        ex.append(spread(order, list(range(OPT.sa0, OPT.sa1 + 1))))
        lt = []
        for p in late: lt += dma_stage(p)
        ex.append(spread(lt + dma_stage(3) + dma_stage(4), list(range(OPT.sb0, OPT.sb1 + 1))))
        ex.append(spread(pp, [3, 4, 5]))
        ex.append({OPT.gh: [Group(stamp("ha", True) + [flag_store(flag_kt_nb(WS_FH), "fh", "h")] + stamp("hb", True))]})
        ex.append({OPT.gbar: [Group(["s_waitcnt lgkmcnt(0)", "s_barrier"])]})
        ex.append({OPT.gph: [Group(FH_SOFF + [poll("ph", vPoll, sT2)])]})
        if OPT.ea:
            ex.append({OPT.gch: [Group(stamp("pa", True) + [poll_check("ph", vPoll, FH_SOFF, sT2, "h" + ("a" if reads else "b"))] + stamp("pb", True))]})
            ex.append(spread([frag_load(k) for k in range(OPT.ea)], list(range(OPT.gch + 1, 16))))
        m = {}
        for G in range(16):
            cats = [list(d.get(G, [])) for d in ex]
            pre = [c for c in cats if c and getattr(c[0], "first", False)]
            out = []
            cats = [c for c in cats if c]
            while any(cats):
                for c in cats:
                    if c: out.append(c.pop(0))
            m[G] = out
        return m
    tail0 = stamps_move() + stamp("att0", True) + (["s_waitcnt vmcnt(0)", "s_endpgm"] if OPT.quit.strip() == "att0" else [])
    hist = A[-30:] + B[-30:]
    T0 = finish(tail0, st, errors, hist)
    AT1 = finish(attention(att_extra(True), True), st, errors, B[-30:] + T0)
    AT1 = auto_nop(AT1, A[-30:] + T0)
    tail = f0 + f1 + stamp("att1", True)
    if OPT.stop == "att":
        tail += [flag_store(flag_kt_nb(WS_FO), "fo", "o")] + dump_q()
    else:
        early_o = [Ins("s_waitcnt vmcnt(0)")] + [Ins(x) for x in flag_kt_nb(WS_FO)] + \
                  [Ins("s_mov_b64 exec, 1"), Ins(f"buffer_store_dword {vTag}, off, {srd(SWS)}, {sT1} sc0 sc1"), Ins("s_mov_b64 exec, -1")]
        if not OPT.ea:
            tail += [poll_check("ph", vPoll, FH_SOFF, sT2, "h", pre=early_o)]
        tail += stamp("pollH", 2)
        tail += phase3()
        if OPT.amp:
            K = int(OPT.amp.strip().split(":")[2])
            if OPT.amp.strip().split(":")[1] == "fin":
                tail += ["s_memtime s[0:1]", "s_waitcnt lgkmcnt(0)", "s_sub_u32 s33, s0, s3"]
            tail += [f"s_mul_i32 s33, s33, {K}", "s_memtime s[0:1]", "s_waitcnt lgkmcnt(0)", "s_mov_b32 s34, s0", Raw("L_amp:"),
                     "s_memtime s[0:1]", "s_waitcnt lgkmcnt(0)", "s_sub_u32 s35, s0, s34", "s_cmp_lt_u32 s35, s33", "s_cbranch_scc1 L_amp"]
        if OPT.calib:
            tail += [f"s_mov_b32 s3, {OPT.calib}", Raw("L_cal:"), "s_sub_u32 s3, s3, 1", "s_cmp_lg_u32 s3, 0", "s_cbranch_scc1 L_cal"]
        tail += stamp("end", 2) + stamps_out() + (epoch_update() if not OPT.noep else [])
    tail += ["s_waitcnt vmcnt(0)"]
    T = finish(tail, st, errors, AT1[-30:])
    wr = set()
    for it in A[-60:] + T0 + AT1:
        if not isinstance(it, Ins): continue
        d = Dec(it.text)
        if d.kind == "mfma":
            for r in d.A + d.B:
                if r[0] == "a" and r[1] < 216 and r not in wr:
                    errors.append(f"attention reads {r} before it is loaded: {it.text}")
        if d.kind == "ds":
            wr |= set(d.writes)
    hazards(A[-40:] + T0 + AT1 + T, errors, "att/var0")
    hazards(B[-40:] + T0 + AT1 + T, errors, "att/var1")
    fresh_store_check(AT1 + T, errors, "tail")
    out += T0 + add_stagger(AT1, "t") + [Raw("L_att_join:")] + add_stagger(T, "u")
    out += [Raw("L_end:"), Ins("s_endpgm")]
    C = flatten(cold)
    hazards(C, errors, "cold")
    out += C + [Raw("L_hot_end:")]
    C = flatten(cold_big)
    hazards(C, errors, "cold")
    out += C
    info = dict(est_a=est_cycles(A), est_b=est_cycles(B), est_att=est_cycles(AT1), est_t=est_cycles(T), prefix=n, na=len(A), nb=len(B))
    return out, errors, info

HEADER = """; out = x + (attn(LN(x)) Wo) * silu(gelu(LN(LN(x)) W1 + b1) W2 + b2)      one launch, 256 workgroups (one per CU), 4 waves each
;
; Workgroup (mb, nb): 128 tokens x (heads 2nb, 2nb+1 and 3 or 4 blocks of 32 hidden columns); wave = 32 tokens.
;  2. K, V, H0..H3, Q blocks: weights [512][32] streamed through LDS (LDS-DMA, transposed reads), epilogue of block j under
;  3. Sliding-window attention (256 keys = 8 tiles; the diagonal and the oldest tile are complementary triangles and share
;     Run-time guard: if a row sum leaves [2^-40, 2^40] (or is not finite) the wave recomputes the head with the true
; Hand-offs between workgroups (K/V, h, o): write-through stores, s_waitcnt, then a flag word holding this launch's tag;
; The single-dword loads into spare AGPRs are first touches that bring lines (weights, code) into L2 / the memory-side cache.
; @launch grid=(256,1,1) block=(256,1,1) lds=163840
.amdgcn_target "amdgcn-amd-amdhsa--gfx950"
.text
.globl {name}
.p2align 8
.type {name},@function
{name}:
"""
FOOTER = """.section .rodata,"a"
.p2align 6
.amdhsa_kernel {name}
  .amdhsa_next_free_vgpr 512
  .amdhsa_next_free_sgpr 102
  .amdhsa_accum_offset 256
  .amdhsa_group_segment_fixed_size 0
  .amdhsa_kernarg_size 88
  .amdhsa_user_sgpr_count 2
  .amdhsa_user_sgpr_kernarg_segment_ptr 1
  .amdhsa_system_sgpr_workgroup_id_x 1
  .amdhsa_float_denorm_mode_32 3
.end_amdhsa_kernel
"""

def main():
    args = sys.argv[1:]
    outp = args[0]
    for kv in args[1:]:
        k, v = kv.split("=")
        cur = getattr(OPT, k)
        setattr(OPT, k, (v not in ("0", "False")) if isinstance(cur, bool) else (int(v) if isinstance(cur, int) else (" " + v if v else "")))
    items, errors, info = build()
    if OPT.nocheck: errors = []
    for e in errors:
        print("ERROR:", e)
    print(info)
    if OPT.stamps: print("STAMPS", len(STAMP_NAMES), ",".join(STAMP_NAMES))
    txt = HEADER.format(name=NAME) + text_of(items) + FOOTER.format(name=NAME)
    open(outp, "w").write(txt)
    if errors:
        sys.exit(1)

if __name__ == "__main__":
    main()
```
